```python
import torch

def _softmax(x, axis=-1):
    return torch.softmax(x, dim=axis)
def _gelu(x):
    return torch.nn.functional.gelu(x, approximate="tanh")
def _silu(x):
    return torch.nn.functional.silu(x)
def _sigmoid(x):
    return torch.sigmoid(x)
def _layernorm(x, axis=-1, eps=1e-5):
    m = x.mean(dim=axis, keepdim=True)
    v = x.var(dim=axis, keepdim=True, unbiased=False)
    return (x - m) / torch.sqrt(v + eps)
def _scatter_add(tgt, idx, src, axis=0):
    return tgt.clone().index_add_(axis, idx, src)
def _segment_sum(src, seg, n):
    out = torch.zeros((n,) + src.shape[1:], dtype=src.dtype)
    return out.index_add_(0, seg, src)
def _pad(x, pw):
    flat = tuple(v for pair in reversed(pw) for v in pair)
    return torch.nn.functional.pad(x, flat)

kernel_name = 'gated_mix__ssm_conv_h3__dense_activation_gelu__prompt'

def setup_inputs():

    _w = (lambda a: (lambda t: t.to(torch.bfloat16) if t.is_floating_point() else t)(torch.as_tensor(a)))
    def _A_setup():
        B, S, D = 1, 2048, 640
        ks = 4
        return {
            "q": _w((lambda *s: torch.randn(*s, dtype=torch.bfloat16) * 0.05)(B, S, D)),
            "k": _w((lambda *s: torch.randn(*s, dtype=torch.bfloat16) * 0.2)(B, S, D)),
            "v": _w((lambda *s: torch.randn(*s, dtype=torch.bfloat16) * 0.2)(B, S, D)),
            "shift_k": _w((lambda *s: torch.randn(*s, dtype=torch.bfloat16) * 0.2)(D, ks) * 0.5),
            "ssm_k": _w((lambda *s: torch.randn(*s, dtype=torch.bfloat16) * 0.8)(D, S) * (1.0 / S ** 0.5)),
            "ssm_D": _w((lambda *s: torch.randn(*s, dtype=torch.bfloat16) * 0.2)(D)),
        }
    _A_in = _A_setup()

    def _B_setup():
        B, S, D, F = 1, 2048, 640, 1536
        return {
            "x": _w((lambda *s: torch.randn(*s, dtype=torch.bfloat16) * 0.05)(B, S, D)),
            "w1": _w((lambda *s: torch.randn(*s, dtype=torch.bfloat16) * 3.2)(D, F) * (D ** -0.5)),
            "b1": _w((lambda *s: torch.randn(*s, dtype=torch.bfloat16) * 3.2)(F) * 0.01),
            "w2": _w((lambda *s: torch.randn(*s, dtype=torch.bfloat16) * 0.05)(F, D) * (F ** -0.5)),
            "b2": _w((lambda *s: torch.randn(*s, dtype=torch.bfloat16) * 0.1)(D) * 0.01),
        }
    _B_in = _B_setup()

    return {
        "A_q": _A_in["q"],
        "A_k": _A_in["k"],
        "A_v": _A_in["v"],
        "A_shift_k": _A_in["shift_k"],
        "A_ssm_k": _A_in["ssm_k"],
        "A_ssm_D": _A_in["ssm_D"],
        "B_x": _B_in["x"],
        "B_w1": _B_in["w1"],
        "B_b1": _B_in["b1"],
        "B_w2": _B_in["w2"],
        "B_b2": _B_in["b2"],
        "gate_w": _w((lambda *s: torch.randn(*s, dtype=torch.bfloat16) * 0.05)(640) * 16.0),
    }

def reference(A_q, A_k, A_v, A_shift_k, A_ssm_k, A_ssm_D, B_x, B_w1, B_b1, B_w2, B_b2, gate_w):
    def _A_ref(q, k, v, shift_k, ssm_k, ssm_D):
        B, S, D = q.shape
        ks = shift_k.shape[-1]
        k_pad = _pad(k, ((0, 0), (ks - 1, 0), (0, 0)))
        k_shift = torch.zeros_like(k)
        for t in range(ks):
            k_shift = k_shift + k_pad[:, t:t + S, :] * shift_k[:, ks - 1 - t][None, None, :]
        kv = k_shift * v
        L = 2 * S
        kv_pad = _pad(kv, ((0, 0), (0, S), (0, 0)))
        kf_pad = _pad(ssm_k, ((0, 0), (0, S)))
        kv_f = (lambda x, axes=(-2,-1): torch.fft.rfft2(x.float(), dim=axes))(kv_pad[:, None, :, :], axes=(1, 2))
        kf_f = (lambda x, axes=(-2,-1): torch.fft.rfft2(x.float(), dim=axes))(kf_pad[:, None, :], axes=(1, 2))
        kf_f = (lambda x, *d: x.permute(*d))(kf_f, 1, 2, 0)
        y_f = kv_f * kf_f[None, :, :, :]
        y = (lambda x, s, axes=(-2,-1): torch.fft.irfft2(x, s=s, dim=axes).to(torch.bfloat16))(y_f, (1, L), axes=(1, 2))[:, 0, :S, :]
        y = y + kv * ssm_D[None, None, :]
        return q * y

    def _B_ref(x, w1, b1, w2, b2):
        h = torch.einsum("bsd,df->bsf", x, w1) + b1
        h = _gelu(h)
        return torch.einsum("bsf,fd->bsd", h, w2) + b2

    x = A_q
    g = _sigmoid((x * gate_w).sum(-1, keepdims=True))
    a = _A_ref(x, A_k, A_v, A_shift_k, A_ssm_k, A_ssm_D)
    b = _B_ref(x, B_w1, B_b1, B_w2, B_b2)
    return g * a + (1 - g) * b
```

```python
import re

TRANS = ('v_exp_f32', 'v_log_f32', 'v_rcp_f32', 'v_rsq_f32', 'v_sqrt_f32', 'v_sin_f32', 'v_cos_f32')

def parse_regs(tok):
    tok = tok.strip()
    neg = tok.lstrip('-')
    if neg.startswith('abs(') or neg.startswith('|'):
        neg = neg.replace('abs(', '').replace(')', '').replace('|', '')
    tok = neg
    m = re.fullmatch(r'([vas])(\d+)', tok)
    if m:
        return [(m.group(1), int(m.group(2)))]
    m = re.fullmatch(r'([vas])\[(\d+):(\d+)\]', tok)
    if m:
        return [(m.group(1), i) for i in range(int(m.group(2)), int(m.group(3)) + 1)]
    if tok == 'vcc':
        return [('s', 106), ('s', 107)]
    if tok == 'vcc_lo':
        return [('s', 106)]
    if tok == 'exec':
        return [('s', 126), ('s', 127)]
    if tok == 'm0':
        return [('s', 124)]
    return []

def split_ops(s):
    out, depth, cur = [], 0, ''
    for ch in s:
        if ch in '[(':
            depth += 1
        if ch in '])':
            depth -= 1
        if ch == ',' and depth == 0:
            out.append(cur.strip()); cur = ''
        else:
            cur += ch
    if cur.strip():
        out.append(cur.strip())
    return out

class Ins:
    def __init__(self, text):
        self.text = text
        t = text.split(';')[0].strip()
        parts = t.split(None, 1)
        self.op = parts[0]
        rest = parts[1] if len(parts) > 1 else ''
        ops = split_ops(rest)
        mods = ''
        if ops:
            sp = ops[-1].split(None, 1)
            if len(sp) > 1 and not ops[-1].startswith('hwreg'):
                ops[-1] = sp[0]; mods = sp[1]
        self.ops = ops
        self.mods = mods
        op = self.op
        self.kind = 'other'
        self.w = []; self.r = []
        self.srcC = []; self.srcAB = []
        R = lambda i: parse_regs(ops[i]) if i < len(ops) else []
        if op.startswith('v_mfma'):
            self.kind = 'mfma'
            self.w = R(0); self.srcAB = R(1) + R(2); self.srcC = R(3); self.r = self.srcAB + self.srcC
            self.passes = 4 if '16x16x32' in op else 8
        elif op.startswith('v_cmp'):
            self.kind = 'valu'
            self.w = R(0); self.r = R(1) + R(2)
            if op.startswith('v_cmpx'):
                self.w += parse_regs('exec')
        elif op.startswith('v_readfirstlane') or op.startswith('v_readlane'):
            self.kind = 'valu'; self.w = R(0); self.r = R(1) + R(2)
        elif op.startswith('v_permlane'):
            self.kind = 'valu'; self.w = R(0) + R(1); self.r = R(0) + R(1)
        elif op.startswith('v_add_co') or op.startswith('v_sub_co') or op.startswith('v_addc_co') or op.startswith('v_subb_co'):
            self.kind = 'valu'; self.w = R(0) + R(1); self.r = R(2) + R(3) + R(4)
        elif op.startswith('v_'):
            self.kind = 'valu'
            self.w = R(0)
            for i in range(1, len(ops)):
                self.r += R(i)
            if op.startswith('v_fmac') or op.startswith('v_dot2c') or op.startswith('v_writelane') or '_dpp' in op or 'd16' in op:
                self.r += R(0)
            if op.startswith('v_cndmask') and len(ops) == 3:
                self.r += parse_regs('vcc')
        elif op.startswith('ds_'):
            self.kind = 'ds'
            if op.startswith('ds_read') or op.startswith('ds_bpermute') or op.startswith('ds_swizzle') or op.startswith('ds_permute'):
                self.w = R(0)
                for i in range(1, len(ops)):
                    self.r += R(i)
            else:
                for i in range(len(ops)):
                    self.r += R(i)
        elif op.startswith('buffer_') or op.startswith('global_'):
            self.kind = 'vmem'
            islds = (' lds' in (' ' + mods)) or ('_lds_' in op)
            self.islds = islds
            if op in ('buffer_inv', 'buffer_wbl2'):
                pass
            elif 'load' in op and not islds:
                self.w = R(0)
                for i in range(1, len(ops)):
                    self.r += R(i)
            elif 'atomic' in op and ('sc0' in mods) and op.startswith('global_'):
                self.w = R(0)
                for i in range(1, len(ops)):
                    self.r += R(i)
            else:
                for i in range(len(ops)):
                    self.r += R(i)
                if islds:
                    self.r += parse_regs('m0')
            self.store_data = []
            if 'store' in op and ('x4' in op or 'x3' in op):
                self.store_data = R(0) if op.startswith('buffer_') else R(1)
        elif op.startswith('s_'):
            self.kind = 'salu'
            if op.startswith('s_load') or op.startswith('s_memtime') or op.startswith('s_memrealtime'):
                self.kind = 'smem'; self.w = R(0)
                for i in range(1, len(ops)):
                    self.r += R(i)
            elif op.startswith('s_cmp') or op.startswith('s_cbranch') or op.startswith('s_branch') or op in ('s_nop', 's_waitcnt', 's_barrier', 's_endpgm', 's_sleep', 's_setprio'):
                for i in range(len(ops)):
                    self.r += R(i)
            else:
                self.w = R(0)
                for i in range(1, len(ops)):
                    self.r += R(i)
                if 'saveexec' in op:
                    self.w += parse_regs('exec')
        self.is_trans = op.replace('_e32', '').replace('_e64', '') in TRANS
        self.is_dpp = ('_dpp' in op) or ('quad_perm' in mods) or ('row_' in mods)
        self.states = 1
        if op == 's_nop':
            self.states = int(ops[0], 0) + 1

def required_gap(p, c):
    need = 0
    pw = set(p.w); cr = set(c.r); cw = set(c.w)
    vw = {x for x in pw if x[0] in 'va'}
    sw = {x for x in pw if x[0] == 's'}
    if p.kind == 'valu':
        if c.kind == 'mfma' and vw & cr:
            need = max(need, 2)
        if c.kind == 'mfma' and ('s', 126) in pw:
            need = max(need, 4)
        if c.kind == 'valu':
            if c.is_dpp and vw & cr:
                need = max(need, 2)
            if c.is_dpp and ('s', 126) in pw:
                need = max(need, 5)
            if c.op.startswith('v_permlane') and vw & cr:
                need = max(need, 2)
            if (c.op.startswith('v_readfirstlane') or c.op.startswith('v_readlane')) and vw & cr:
                need = max(need, 1)
            if (c.op.startswith('v_readlane') or c.op.startswith('v_writelane')) and sw & cr:
                need = max(need, 4)
            if sw & cr:
                need = max(need, 2)
            if p.is_trans and not c.is_trans and vw & cr:
                need = max(need, 1)
            if ('sdwa' in p.op or 'op_sel' in p.mods) and (vw & (cr | cw)):
                need = max(need, 1)
            if ('s', 126) in pw and (c.op.startswith('v_readfirstlane') or c.op.startswith('v_readlane') or c.op.startswith('v_permlane')):
                need = max(need, 4)
        if c.kind == 'vmem' and sw & cr:
            need = max(need, 5)
        if c.kind in ('salu', 'smem') and sw & cr:
            need = max(need, 1)
        if p.is_trans and c.kind in ('vmem', 'ds', 'mfma') and vw & cr:
            need = max(need, 2)
    if p.kind == 'mfma':
        tab_other = {4: 8, 8: 12}[p.passes]
        tab_cover = {4: 6, 8: 10}[p.passes]
        if c.kind == 'mfma':
            if vw & set(c.srcAB):
                need = max(need, tab_other)
            if vw & set(c.srcC):
                if list(c.srcC) == list(p.w) and c.passes == p.passes:
                    pass
                else:
                    need = max(need, tab_cover)
            elif vw & cw:
                need = max(need, tab_cover)
        elif c.kind in ('valu', 'vmem', 'ds'):
            if vw & (cr | cw):
                need = max(need, tab_other)
        if c.kind in ('valu', 'ds', 'vmem') and set(p.srcC) & cw:
            need = max(need, {4: 3, 8: 7}[p.passes])
    if p.kind == 'salu':
        if ('s', 124) in pw and c.kind == 'vmem' and getattr(c, 'islds', False):
            need = max(need, 1)
    if p.kind == 'vmem' and getattr(p, 'store_data', None):
        if set(p.store_data) & cw:
            need = max(need, 2)
    return need

class Asm:
    glbl = 0
    def __init__(self):
        self.items = []
        self.vm_issued = 0
        self.lgkm_issued = 0
        self.lbl = 0
        self.hist = []

    def raw(self, s):
        self.items.append(s)

    def label(self, name):
        self.items.append(name + ':')

    def newlabel(self, base='L'):
        Asm.glbl += 1
        return '%s_%d' % (base, Asm.glbl)

    def __call__(self, text):
        for line in text.split('\n'):
            line = line.strip()
            if not line or line.startswith(';'):
                continue
            self.emit(line)

    def emit(self, text):
        ins = Ins(text)
        dist = 0
        need = 0
        for p in reversed(self.hist):
            g = required_gap(p, ins)
            if g > dist:
                need = max(need, g - dist)
            dist += p.states
            if dist >= 20:
                break
        while need > 0:
            n = min(need, 16)
            nop = Ins('s_nop %d' % (n - 1))
            self.items.append(nop); self.hist.append(nop)
            need -= n
        self.items.append(ins)
        self.hist.append(ins)
        if len(self.hist) > 40:
            self.hist = self.hist[-40:]
        tag = None
        if ins.kind == 'vmem':
            self.vm_issued += 1
            tag = ('vm', self.vm_issued)
        elif ins.kind == 'ds':
            self.lgkm_issued += 1
            tag = ('lgkm', self.lgkm_issued)
        return tag

    def vm_mark(self):
        return self.vm_issued
    def lgkm_mark(self):
        return self.lgkm_issued
    def wait_vm(self, mark):
        n = self.vm_issued - mark
        assert n >= 0
        n = min(n, 63)
        self.emit('s_waitcnt vmcnt(%d)' % n)
    def wait_lgkm(self, mark):
        n = self.lgkm_issued - mark
        assert n >= 0
        n = min(n, 15)
        self.emit('s_waitcnt lgkmcnt(%d)' % n)
    def flush_hazards(self):
        self.emit('s_nop 7'); self.emit('s_nop 3')

    def text(self):
        out = []
        for it in self.items:
            if isinstance(it, Ins):
                out.append('    ' + it.text)
            else:
                out.append(it)
        return '\n'.join(out) + '\n'

def vr(base, n=1):
    return 'v%d' % base if n == 1 else 'v[%d:%d]' % (base, base + n - 1)
def ar(base, n=1):
    return 'a%d' % base if n == 1 else 'a[%d:%d]' % (base, base + n - 1)
def sr(base, n=1):
    return 's%d' % base if n == 1 else 's[%d:%d]' % (base, base + n - 1)
```

```python
import sys
from asmlib import *
import layout as LY

NAME = 'gated_mix__ssm_conv_h3__dense_activation_gelu__prompt'
HEADER = open('cdna_kernels/%s.s.ref' % NAME).read().split('; Override launch')[0]

S_XCD, S_IDX, S_Q, S_J, S_R, S_CB, S_W = 3, 4, 5, 6, 7, 8, 9
P_Q, P_K, P_V, P_SK, P_HK, P_D, P_BX, P_W1, P_B1, P_W2, P_B2, P_GW, P_OUT, P_DBG, P_WS = range(16, 46, 2)
R_X, R_K, R_V, R_W1, R_W2, R_WS, R_OUT, R_HK = range(48, 80, 4)
ST = 80
NB_SD = 2048 * 1280
SC = ' sc1'

def srd(a, r, p, nbytes):
    a('s_mov_b32 s%d, s%d' % (r, p))
    a('s_and_b32 s%d, s%d, 0xffff' % (r + 1, p + 1))
    a('s_mov_b32 s%d, 0x%x' % (r + 2, nbytes))
    a('s_mov_b32 s%d, 0x20000' % (r + 3))

def prologue(a, end_label):
    a('s_cmp_ge_u32 s2, 256')
    a('s_cbranch_scc1 %s' % end_label)
    a('s_load_dwordx16 s[16:31], s[0:1], 0')
    a('s_load_dwordx8 s[32:39], s[0:1], 64')
    a('s_load_dwordx4 s[40:43], s[0:1], 96')
    a('s_load_dwordx2 s[44:45], s[0:1], 112')
    a('v_lshrrev_b32 v2, 6, v0')
    a('v_and_b32 v1, 63, v0')
    a('s_and_b32 s%d, s2, 7' % S_XCD)
    a('s_lshr_b32 s%d, s2, 3' % S_IDX)
    a('v_readfirstlane_b32 s%d, v2' % S_W)
    a('s_and_b32 s%d, s%d, 3' % (S_Q, S_IDX))
    a('s_lshl_b32 s%d, s%d, 2' % (ST, S_XCD))
    a('s_add_u32 s%d, s%d, s%d' % (S_Q, S_Q, ST))
    a('s_lshr_b32 s%d, s%d, 2' % (S_J, S_IDX))
    a('s_and_b32 s%d, s%d, 1' % (S_R, S_IDX))
    a('s_lshl_b32 s%d, s%d, 1' % (ST, S_XCD))
    a('s_add_u32 s%d, s%d, s%d' % (S_R, S_R, ST))
    a('s_lshr_b32 s%d, s%d, 1' % (S_CB, S_IDX))
    a('s_waitcnt lgkmcnt(0)')
    srd(a, R_X, P_Q, NB_SD)
    srd(a, R_K, P_K, NB_SD)
    srd(a, R_V, P_V, NB_SD)
    srd(a, R_W1, P_W1, 640 * 3072)
    srd(a, R_W2, P_W2, 1536 * 1280)
    srd(a, R_WS, P_WS, 0x10000000)
    srd(a, R_OUT, P_OUT, NB_SD)

def scsel(a, dst, vt, vf):
    a('s_mov_b32 s%d, %d' % (dst, vf))
    a('s_cmov_b32 s%d, %d' % (dst, vt))

def unpack(a, dst_lo, dst_hi, src):
    a('v_lshlrev_b32 v%d, 16, v%d' % (dst_lo, src))
    a('v_and_b32 v%d, 0xffff0000, v%d' % (dst_hi, src))

def prep(a, LKV=0, LW2=10240):
    L_gate = a.newlabel('L_gate'); L_join = a.newlabel('L_prepjoin'); L_skip = a.newlabel('L_prepskip')
    a('s_cmp_eq_u32 s%d, 3' % S_W)
    a('s_cbranch_scc1 %s' % L_gate)
    a('v_mul_u32_u24 v2, 6554, v0')
    a('v_lshrrev_b32 v2, 16, v2')
    a('v_mul_u32_u24 v3, 10, v2')
    a('v_sub_u32 v3, v0, v3')
    a('s_mul_i32 s%d, s%d, %d' % (ST, S_Q, 64 * 1280))
    a('s_mul_i32 s%d, s%d, 160' % (ST + 1, S_J))
    a('s_add_u32 s%d, s%d, s%d' % (ST, ST, ST + 1))
    a('v_mul_u32_u24 v4, 5120, v2')
    a('v_lshl_add_u32 v4, v3, 4, v4')
    a('v_add_u32 v4, s%d, v4' % ST)
    a('v_subrev_u32 v5, 3840, v4')
    a('s_mul_i32 s%d, s%d, 640' % (ST + 1, S_J))
    a('v_lshlrev_b32 v6, 6, v3')
    a('v_add_u32 v6, s%d, v6' % (ST + 1))
    a('v_cmp_gt_u32 vcc, 160, v0')
    a('s_and_saveexec_b64 s[%d:%d], vcc' % (ST + 2, ST + 3))
    KR, VR_, WR, SKR, SF, KF, ACC, VF = 16, 44, 60, 76, 96, 128, 184, 216
    for i in range(4):
        a('global_load_dwordx4 %s, v6, s[%d:%d] offset:%d' % (vr(SKR + 4 * i, 4), P_SK, P_SK + 1, 16 * i))
    m_sk = a.vm_mark()
    for r in range(3):
        a('buffer_load_dwordx4 %s, v5, s[%d:%d], 0 offen offset:%d' % (vr(KR + 4 * r, 4), R_K, R_K + 3, 1280 * r))
    for r in range(4):
        a('buffer_load_dwordx4 %s, v4, s[%d:%d], 0 offen offset:%d' % (vr(KR + 12 + 4 * r, 4), R_K, R_K + 3, 1280 * r))
    m_k = a.vm_mark()
    for r in range(4):
        a('buffer_load_dwordx4 %s, v4, s[%d:%d], 0 offen offset:%d' % (vr(VR_ + 4 * r, 4), R_V, R_V + 3, 1280 * r))
    m_v = a.vm_mark()
    for r in range(4):
        a('buffer_load_dwordx4 %s, v4, s[%d:%d], 0 offen offset:%d' % (vr(WR + 4 * r, 4), R_W2, R_W2 + 3, 1280 * r))
    m_w = a.vm_mark()
    a('v_mul_u32_u24 v8, 640, v2')
    a('v_lshlrev_b32 v9, 4, v3')
    a('v_sub_u32 v7, v9, v8')
    a('v_add_u32 v7, %d, v7' % (LKV + 60 * 160))
    a('v_add_u32 v8, v8, v9')
    a('v_add_u32 v8, %d, v8' % LW2)
    a.wait_vm(m_sk)
    for i in range(8):
        unpack(a, SF + 0 * 8 + i, SF + 1 * 8 + i, SKR + 2 * i)
        unpack(a, SF + 2 * 8 + i, SF + 3 * 8 + i, SKR + 2 * i + 1)
    a.wait_vm(m_k)
    for r in range(7):
        for d in range(4):
            unpack(a, KF + r * 8 + 2 * d, KF + r * 8 + 2 * d + 1, KR + 4 * r + d)
    for r in range(4):
        for p in range(4):
            acc = vr(ACC + r * 8 + 2 * p, 2)
            for j in range(4):
                kf = vr(KF + (r + 3 - j) * 8 + 2 * p, 2); sf = vr(SF + j * 8 + 2 * p, 2)
                if j == 0:
                    a('v_pk_mul_f32 %s, %s, %s' % (acc, kf, sf))
                else:
                    a('v_pk_fma_f32 %s, %s, %s, %s' % (acc, kf, sf, acc))
    a.wait_vm(m_v)
    for r in range(4):
        for d in range(4):
            unpack(a, VF + 2 * d, VF + 2 * d + 1, VR_ + 4 * r + d)
        for d in range(4):
            a('v_pk_mul_f32 %s, %s, %s' % (vr(ACC + r * 8 + 2 * d, 2), vr(ACC + r * 8 + 2 * d, 2), vr(VF + 2 * d, 2)))
        for d in range(4):
            a('v_cvt_pk_bf16_f32 v%d, v%d, v%d' % (KR + 4 * r + d, ACC + r * 8 + 2 * d, ACC + r * 8 + 2 * d + 1))
        a('ds_write_b128 v7, %s offset:%d' % (vr(KR + 4 * r, 4), (3 - r) * 160))
    a.wait_vm(m_w)
    for r in range(4):
        a('ds_write_b128 v8, %s offset:%d' % (vr(WR + 4 * r, 4), r * 160))
    a('s_mov_b64 exec, s[%d:%d]' % (ST + 2, ST + 3))
    a('s_branch %s' % L_join)
    a.label(L_gate)
    a('v_lshrrev_b32 v2, 3, v1')
    a('v_and_b32 v3, 7, v1')
    a('s_lshl_b32 s%d, s%d, 7' % (ST, S_R))
    a('s_lshl_b32 s%d, s%d, 3' % (ST + 1, S_CB))
    a('s_add_u32 s%d, s%d, s%d' % (ST, ST, ST + 1))
    a('v_add_u32 v2, s%d, v2' % ST)
    a('v_mul_u32_u24 v4, 1280, v2')
    a('v_lshlrev_b32 v5, 4, v3')
    a('v_add_u32 v4, v4, v5')
    for n in range(10):
        a('buffer_load_dwordx4 %s, v4, s[%d:%d], 0 offen offset:%d' % (vr(16 + 4 * n, 4), R_X, R_X + 3, 128 * n))
        a('global_load_dwordx4 %s, v5, s[%d:%d] offset:%d' % (vr(56 + 4 * n, 4), P_GW, P_GW + 1, 128 * n))
    a('v_mov_b32 v10, 0')
    a('v_mov_b32 v11, 0')
    a('s_waitcnt vmcnt(0)')
    for n in range(40):
        acc = 10 + (n & 1)
        a('v_dot2_f32_bf16 v%d, v%d, v%d, v%d' % (acc, 16 + n, 56 + n, acc))
    a('s_nop 3')
    a('v_add_f32 v10, v10, v11')
    a('v_add_f32_dpp v10, v10, v10 quad_perm:[1,0,3,2] row_mask:0xf bank_mask:0xf')
    a('v_add_f32_dpp v10, v10, v10 quad_perm:[2,3,0,1] row_mask:0xf bank_mask:0xf')
    a('v_add_f32_dpp v10, v10, v10 row_half_mirror row_mask:0xf bank_mask:0xf')
    a('v_cvt_pk_bf16_f32 v10, v10, v10')
    a('v_lshlrev_b32 v10, 16, v10')
    a('v_mul_f32 v10, 0xbfb8aa3b, v10')
    a('v_exp_f32 v10, v10')
    a('v_add_f32 v10, 1.0, v10')
    a('v_rcp_f32 v10, v10')
    a('v_cvt_pk_bf16_f32 v10, v10, v10')
    a('v_lshlrev_b32 v10, 16, v10')
    a('v_lshlrev_b32 v4, 2, v2')
    a('v_add_u32 v4, 0x%x, v4' % LY.G)
    a('v_cmp_eq_u32 vcc, 0, v3')
    a('s_and_saveexec_b64 s[%d:%d], vcc' % (ST + 2, ST + 3))
    a('buffer_store_dword v10, v4, s[%d:%d], 0 offen%s' % (R_WS, R_WS + 3, SC))
    a('s_mov_b64 exec, s[%d:%d]' % (ST + 2, ST + 3))
    a.label(L_join)
    a('s_waitcnt lgkmcnt(0)')
    a('s_barrier')
    a('v_and_b32 v2, 15, v1')
    a('v_lshrrev_b32 v3, 4, v1')
    a('v_lshrrev_b32 v4, 2, v2')
    a('v_and_b32 v5, 3, v1')
    a('s_and_b32 s%d, s%d, 1' % (ST, S_W))
    a('s_cmp_ge_u32 s%d, 2' % S_W)
    a('s_cselect_b32 s%d, 2, 3' % (ST + 1))
    scsel(a, ST + 2, 2560, 640)
    scsel(a, ST + 3, LW2, LKV)
    scsel(a, ST + 4, 1024, 65536)
    a('s_mul_i32 s%d, s%d, %d' % (ST + 5, ST, 32 * 160))
    a('s_add_u32 s%d, s%d, s%d' % (ST + 3, ST + 3, ST + 5))
    a('v_lshlrev_b32 v6, s%d, v3' % (ST + 1))
    a('v_add_u32 v6, v6, v4')
    a('v_mul_u32_u24 v6, 160, v6')
    a('v_lshl_add_u32 v6, v5, 3, v6')
    a('v_add_u32 v6, s%d, v6' % (ST + 3))
    a('v_add_u32 v7, s%d, v6' % (ST + 2))
    for u in range(5):
        a('ds_read_b64_tr_b16 %s, v6 offset:%d' % (vr(16 + 4 * u, 2), 32 * u))
        a('ds_read_b64_tr_b16 %s, v7 offset:%d' % (vr(18 + 4 * u, 2), 32 * u))
    a('s_mul_i32 s%d, s%d, %d' % (ST + 5, S_J, 80 * 4096))
    a('s_lshl_b32 s%d, s%d, 7' % (ST + 6, S_Q))
    a('s_sub_u32 s%d, s%d, s%d' % (ST + 5, ST + 5, ST + 6))
    a('s_lshl_b32 s%d, s%d, 6' % (ST + 6, ST))
    a('s_add_u32 s%d, s%d, s%d' % (ST + 5, ST + 5, ST + 6))
    a('s_add_u32 s%d, s%d, %d' % (ST + 5, ST + 5, LY.KVT + 2 * 1984))
    a('v_lshlrev_b32 v8, 12, v2')
    a('v_lshl_add_u32 v8, v3, 4, v8')
    a('s_mul_i32 s%d, s%d, 48' % (ST + 6, S_J))
    a('s_lshl_b32 s%d, s%d, 1' % (ST + 7, S_Q))
    a('s_add_u32 s%d, s%d, s%d' % (ST + 6, ST + 6, ST + 7))
    a('s_add_u32 s%d, s%d, s%d' % (ST + 6, ST + 6, ST))
    a('s_mul_i32 s%d, s%d, 5120' % (ST + 6, ST + 6))
    a('s_add_u32 s%d, s%d, 0x%x' % (ST + 6, ST + 6, LY.W2T))
    a('v_lshlrev_b32 v9, 4, v1')
    a('s_cmp_ge_u32 s%d, 2' % S_W)
    a('s_cselect_b32 s%d, s%d, s%d' % (ST + 5, ST + 6, ST + 5))
    a('s_cselect_b64 vcc, -1, 0')
    a('v_cndmask_b32 v8, v8, v9, vcc')
    a('s_cselect_b32 s%d, s%d, 0' % (ST + 7, S_Q))
    a('s_cmp_ge_u32 s%d, 24' % (ST + 7))
    a('s_cbranch_scc1 %s' % L_skip)
    a('s_waitcnt lgkmcnt(0)')
    for u in range(5):
        a('buffer_store_dwordx4 %s, v8, s[%d:%d], s%d offen%s' % (vr(16 + 4 * u, 4), R_WS, R_WS + 3, ST + 5, SC))
        if u < 4:
            a('s_add_u32 s%d, s%d, s%d' % (ST + 5, ST + 5, ST + 4))
    a.label(L_skip)
    a('s_waitcnt vmcnt(0) lgkmcnt(0)')


RB = 20480
SLOT = 28672
NSLOT = 5
def f32hex(x):
    import struct
    return '0x%08x' % struct.unpack('<I', struct.pack('<f', x))[0]

class G1:
    VX, VW, VB = 16, 20, 24
    BIAS, BRAW, ACC, AF, BF = 36, 60, 72, 120, 168
    SX, SWO = 96, 97

    def setup(self, a):
        a('v_lshrrev_b32 v2, 3, v1')
        a('v_and_b32 v3, 7, v1')
        a('s_lshl_b32 s%d, s%d, 7' % (ST, S_R))
        a('s_lshl_b32 s%d, s%d, 5' % (ST + 1, S_W))
        a('s_add_u32 s%d, s%d, s%d' % (ST, ST, ST + 1))
        a('s_mul_i32 s%d, s%d, 1280' % (ST, ST))
        for i in range(4):
            a('v_add_u32 v4, %d, v2' % (8 * i))
            a('v_bfe_u32 v5, v4, 1, 3')
            a('v_xor_b32 v5, v5, v3')
            a('v_mul_u32_u24 v4, 1280, v4')
            a('v_lshl_add_u32 v4, v5, 4, v4')
            a('v_add_u32 v4, s%d, v4' % ST)
            a('v_subrev_u32 v%d, %d, v4' % (self.VX + i, 1024 * i))
        a('s_mul_i32 s%d, s%d, %d' % (ST, S_W, 16 * 3072))
        a('s_mul_i32 s%d, s%d, 192' % (ST + 1, S_CB))
        a('s_add_u32 s%d, s%d, s%d' % (ST, ST, ST + 1))
        for i in range(3):
            a('v_add_u32 v4, %d, v1' % (64 * i))
            a('v_mul_u32_u24 v5, 5462, v4')
            a('v_lshrrev_b32 v5, 16, v5')
            a('v_mul_u32_u24 v6, 12, v5')
            a('v_sub_u32 v6, v4, v6')
            a('v_bfe_u32 v7, v5, 3, 1')
            a('v_lshlrev_b32 v7, 1, v7')
            a('v_sub_u32 v6, v6, v7')
            a('v_add_u32 v7, 12, v6')
            a('v_min_u32 v6, v6, v7')
            a('v_mul_u32_u24 v5, 3072, v5')
            a('v_lshl_add_u32 v5, v6, 4, v5')
            a('v_add_u32 v5, s%d, v5' % ST)
            a('v_subrev_u32 v%d, %d, v5' % (self.VW + i, 1024 * i))
        a('s_mov_b32 s%d, 0' % self.SX)
        a('s_mov_b32 s%d, 0' % self.SWO)
        a('s_lshl_b32 s%d, s%d, 12' % (98, S_W))
        a('s_mul_i32 s%d, s%d, 3072' % (99, S_W))
        a('s_add_u32 s99, s99, 16384')
        self.marks = {}

    def dma(self, a, stage):
        slot = RB + SLOT * (stage % NSLOT)
        a('s_add_u32 m0, s98, %d' % slot)
        for i in range(4):
            a('buffer_load_dwordx4 v%d, s[%d:%d], s%d offen offset:%d lds' % (self.VX + i, R_X, R_X + 3, self.SX, 1024 * i))
        a('s_add_u32 m0, s99, %d' % slot)
        a('s_add_u32 s%d, s%d, 128' % (self.SX, self.SX))
        for i in range(3):
            a('buffer_load_dwordx4 v%d, s[%d:%d], s%d offen offset:%d lds' % (self.VW + i, R_W1, R_W1 + 3, self.SWO, 1024 * i))
        a('s_add_u32 s%d, s%d, %d' % (self.SWO, self.SWO, 64 * 3072))
        self.marks[stage] = a.vm_mark()

    def bias_load(self, a):
        a('v_lshrrev_b32 v3, 4, v1')
        a('s_mul_i32 s%d, s%d, 192' % (ST, S_CB))
        a('v_lshlrev_b32 v4, 3, v3')
        a('v_add_u32 v4, s%d, v4' % ST)
        for ft in range(6):
            a('global_load_dwordx2 %s, v4, s[%d:%d] offset:%d' % (vr(self.BRAW + 2 * ft, 2), P_B1, P_B1 + 1, 32 * ft))
        self.m_bias = a.vm_mark()

    def setup2(self, a):
        a('v_lshrrev_b32 v3, 4, v1')
        a('v_and_b32 v2, 15, v1')
        a('v_lshrrev_b32 v4, 1, v2')
        a('v_xor_b32 v4, v4, v3')
        a('v_lshlrev_b32 v4, 4, v4')
        a('v_lshl_add_u32 v4, v2, 7, v4')
        a('v_add_u32 v4, s98, v4')
        a('v_xor_b32 v5, 64, v4')
        a('v_lshrrev_b32 v6, 2, v2')
        a('v_lshl_add_u32 v6, v3, 3, v6')
        a('v_mul_u32_u24 v6, 192, v6')
        a('v_and_b32 v7, 3, v1')
        a('v_lshl_add_u32 v6, v7, 3, v6')
        a('v_and_b32 v7, 1, v3')
        a('v_lshl_add_u32 v6, v7, 5, v6')
        a('v_mul_u32_u24 v7, 192, v7')
        a('v_sub_u32 v7, v6, v7')
        for grp in range(3):
            off = RB + 2 * SLOT * grp
            a('v_add_u32 v%d, %d, v4' % (self.VB + 4 * grp, off))
            a('v_add_u32 v%d, %d, v5' % (self.VB + 4 * grp + 1, off))
            a('v_add_u32 v%d, %d, v6' % (self.VB + 4 * grp + 2, off + 16384))
            a('v_add_u32 v%d, %d, v7' % (self.VB + 4 * grp + 3, off + 16384))

    def reads(self, stage, kk):
        slot = stage % NSLOT
        grp, so = slot // 2, (slot % 2) * SLOT
        L = []
        for st in range(2):
            L.append('ds_read_b128 %s, v%d offset:%d' % (vr(self.BF + 8 * kk + 4 * st, 4), self.VB + 4 * grp + kk, so + 2048 * st))
        for ft in range(6):
            base = self.VB + 4 * grp + (3 if ft == 5 else 2)
            for h in range(2):
                L.append('ds_read_b64_tr_b16 %s, v%d offset:%d' % (vr(self.AF + 24 * kk + 4 * ft + 2 * h, 2), base, so + 6144 * kk + 768 * h + 32 * ft))
        return L

    def mfmas(self, kk, first):
        L = []
        for ft in range(6):
            for st in range(2):
                acc = vr(self.ACC + 8 * ft + 4 * st, 4)
                c = vr(self.BIAS + 4 * ft, 4) if first else acc
                L.append('v_mfma_f32_16x16x32_bf16 %s, %s, %s, %s' % (acc, vr(self.AF + 24 * kk + 4 * ft, 4), vr(self.BF + 8 * kk + 4 * st, 4), c))
        return L

    def main(self, a):
        a.wait_vm(self.m_bias)
        for ft in range(6):
            for d in range(2):
                unpack(a, self.BIAS + 4 * ft + 2 * d, self.BIAS + 4 * ft + 2 * d + 1, self.BRAW + 2 * ft + d)
        pend = None
        for i in range(10):
            a.wait_vm(self.marks[i])
            a('s_barrier')
            if 1 <= i <= 5:
                self.dma(a, i + 4)
            interleave(a, pend or [], self.reads(i, 0), 2)
            a('s_waitcnt lgkmcnt(0)')
            interleave(a, self.mfmas(0, i == 0), self.reads(i, 1), 2)
            a('s_waitcnt lgkmcnt(0)')
            pend = self.mfmas(1, False)
        interleave(a, pend, [], 2)

    def epilogue(self, a):
        C1, C2, ONE, T = 16, 18, 20, 120
        c1 = -2.0 * 1.4426950408889634 * 0.7978845608028654
        for r, val in ((C1, c1), (C2, c1 * 0.044715), (ONE, 1.0)):
            a('v_mov_b32 v%d, %s' % (r, f32hex(val)))
            a('v_mov_b32 v%d, %s' % (r + 1, f32hex(val)))
        a('s_lshl_b32 s%d, s%d, 3' % (ST, S_R))
        a('s_lshl_b32 s%d, s%d, 1' % (ST + 1, S_W))
        a('s_add_u32 s%d, s%d, s%d' % (ST, ST, ST + 1))
        a('s_mul_i32 s%d, s%d, 48' % (ST, ST))
        a('s_mul_i32 s%d, s%d, 3' % (ST + 1, S_CB))
        a('s_add_u32 s%d, s%d, s%d' % (ST, ST, ST + 1))
        a('s_lshl_b32 s%d, s%d, 10' % (ST, ST))
        a('s_add_u32 s%d, s%d, 0x%x' % (ST, ST, LY.HF))
        a('s_add_u32 s%d, s%d, %d' % (ST + 1, ST, 48 * 1024))
        a('v_lshlrev_b32 v2, 4, v1')
        k = 0
        for st in range(2):
            for J in range(3):
                o = 184 + 4 * (k % 4); t0 = T + 16 * (k % 2); k += 1
                prs = [self.ACC + 8 * (2 * J + h) + 4 * st + 2 * p for h in range(2) for p in range(2)]
                for n, x in enumerate(prs):
                    a('v_pk_mul_f32 %s, %s, %s' % (vr(t0 + 2 * n, 2), vr(x, 2), vr(x, 2)))
                for n, x in enumerate(prs):
                    a('v_pk_fma_f32 %s, %s, %s, %s' % (vr(t0 + 2 * n, 2), vr(t0 + 2 * n, 2), vr(C2, 2), vr(C1, 2)))
                for n, x in enumerate(prs):
                    a('v_pk_mul_f32 %s, %s, %s' % (vr(t0 + 2 * n, 2), vr(t0 + 2 * n, 2), vr(x, 2)))
                for n in range(8):
                    a('v_exp_f32 v%d, v%d' % (t0 + n, t0 + n))
                for n, x in enumerate(prs):
                    a('v_pk_add_f32 %s, %s, %s' % (vr(t0 + 2 * n, 2), vr(t0 + 2 * n, 2), vr(ONE, 2)))
                for n in range(8):
                    a('v_rcp_f32 v%d, v%d' % (t0 + n, t0 + n))
                for n, x in enumerate(prs):
                    a('v_pk_mul_f32 %s, %s, %s' % (vr(t0 + 2 * n, 2), vr(t0 + 2 * n, 2), vr(x, 2)))
                for n in range(4):
                    a('v_cvt_pk_bf16_f32 v%d, v%d, v%d' % (o + n, t0 + 2 * n, t0 + 2 * n + 1))
                a('buffer_store_dwordx4 %s, v2, s[%d:%d], s%d offen offset:%d%s' % (vr(o, 4), R_WS, R_WS + 3, ST + st, 1024 * J, SC))

def interleave(a, main, fill, per):
    fi = 0
    if not main:
        for f in fill:
            a(f)
        return
    for m in main:
        a(m)
        for _ in range(per):
            if fi < len(fill):
                a(fill[fi]); fi += 1
    while fi < len(fill):
        a(fill[fi]); fi += 1

def g1_body(a):
    g = G1()
    g.bias_load(a)
    g.setup(a)
    for s_ in range(5):
        g.dma(a, s_)
    g.setup2(a)
    g.main(a)
    g.epilogue(a)
    a('s_waitcnt vmcnt(0)')


PP = 4160
QO0 = 16656
QO1 = QO0 + 4640
CS = 25856
CB = 0
TOP = [7, 6, 5, 2]
BOT = [4, 3, 1, 0]

class Conv:
    VA, VQ, VU, VS = 16, 17, 18, 19
    F0, F1, ACC, TMP = 32, 96, 160, 176
    PRAW, QRAW = 200, 220
    SCH = 90
    S_SLOT, S_CH, S_D, S_PASS = 93, 94, 95, 100

    def channels(self, a):
        a('s_mul_i32 s%d, s%d, 80' % (ST, S_J))
        a('s_lshr_b32 s%d, s%d, 1' % (ST + 1, S_Q))
        a('s_mul_i32 s%d, s%d, 5' % (ST + 1, ST + 1))
        a('s_add_u32 s%d, s%d, s%d' % (ST, ST, ST + 1))
        a('s_and_b32 s%d, s%d, 1' % (ST + 1, S_Q))
        a('s_mul_i32 s%d, s%d, 3' % (ST + 1, ST + 1))
        a('s_add_u32 s%d, s%d, s%d' % (self.SCH, ST, ST + 1))
        a('s_add_u32 s%d, s%d, 1' % (self.SCH + 1, self.SCH))
        a('s_add_u32 s%d, s%d, 2' % (self.SCH + 2, ST))

    def load_p(self, a):
        a('v_lshlrev_b32 v2, 4, v0')
        a('v_subrev_u32 v3, 8, v2')
        a('s_mov_b32 s%d, 4096' % (R_HK + 2))
        a('s_mov_b32 s%d, 0x20000' % (R_HK + 3))
        for sl in range(3):
            a('s_lshl_b32 s%d, s%d, 12' % (ST, self.SCH + sl))
            a('s_add_u32 s%d, s%d, s%d' % (R_HK, P_HK, ST))
            a('s_addc_u32 s%d, s%d, 0' % (R_HK + 1, P_HK + 1))
            a('s_and_b32 s%d, s%d, 0xffff' % (R_HK + 1, R_HK + 1))
            a('buffer_load_dwordx2 %s, v3, s[%d:%d], 0 offen' % (vr(self.PRAW + 6 * sl, 2), R_HK, R_HK + 3))
            a('buffer_load_dwordx4 %s, v2, s[%d:%d], 0 offen' % (vr(self.PRAW + 6 * sl + 2, 4), R_HK, R_HK + 3))
        self.m_p = a.vm_mark()

    def load_q(self, a):
        a('v_lshlrev_b32 v2, 4, v0')
        for sl in range(3):
            a('s_lshl_b32 s%d, s%d, 12' % (ST + sl, self.SCH + sl))
            if LY.KVT:
                a('s_add_u32 s%d, s%d, 0x%x' % (ST + sl, ST + sl, LY.KVT))
            a('buffer_load_dwordx4 %s, v2, s[%d:%d], s%d offen%s' % (vr(self.QRAW + 4 * sl, 4), R_WS, R_WS + 3, ST + sl, SC))
        self.m_q = a.vm_mark()

    def zero_fill(self, a):
        L = a.newlabel('L_zf')
        a('s_cmp_ge_u32 s%d, 3' % S_W)
        a('s_cbranch_scc1 %s' % L)
        for i in range(4):
            a('v_mov_b32 v%d, 0' % (8 + i))
        a('s_mul_i32 s%d, s%d, %d' % (ST, S_W, CS))
        a('v_lshlrev_b32 v2, 4, v1')
        a('v_add_u32 v2, s%d, v2' % ST)
        a('v_bfe_u32 v3, v1, 2, 2')
        a('v_mul_u32_u24 v3, %d, v3' % PP)
        a('v_and_b32 v4, 3, v1')
        a('v_lshl_add_u32 v3, v4, 4, v3')
        a('v_add_u32 v3, s%d, v3' % ST)
        a('v_cmp_gt_u32 vcc, 29, v1')
        a('s_and_saveexec_b64 s[%d:%d], vcc' % (ST + 2, ST + 3))
        a('ds_write_b128 v2, v[8:11] offset:%d' % (CB + QO0 + 4080))
        a('ds_write_b128 v2, v[8:11] offset:%d' % (CB + QO1 + 4096))
        a('ds_write_b128 v3, v[8:11] offset:%d' % CB)
        a('s_mov_b64 exec, s[%d:%d]' % (ST + 2, ST + 3))
        a.label(L)

    def build_p(self, a):
        a('v_lshlrev_b32 v2, 4, v0')
        a.wait_vm(self.m_p)
        for sl in range(3):
            D = self.PRAW + 6 * sl
            T = self.F0 + 16 * sl
            base = CB + CS * sl + 48
            if base + 3 * PP > 65535:
                a('v_add_u32 v3, %d, v2' % base); ad, base = 3, 0
            else:
                ad = 2
            for k in range(4):
                a('v_alignbit_b32 v%d, v%d, v%d, 16' % (T + k, D + k + 1, D + k))
            for k in range(4):
                a('v_mov_b32 v%d, v%d' % (T + 4 + k, D + 1 + k))
            for k in range(3):
                a('v_mov_b32 v%d, v%d' % (T + 8 + k, T + 1 + k))
            a('v_alignbit_b32 v%d, v%d, v%d, 16' % (T + 11, D + 5, D + 4))
            a('ds_write_b128 v%d, %s offset:%d' % (ad, vr(T, 4), base))
            a('ds_write_b128 v%d, %s offset:%d' % (ad, vr(T + 4, 4), base + PP))
            a('ds_write_b128 v%d, %s offset:%d' % (ad, vr(T + 8, 4), base + 2 * PP))
            a('ds_write_b128 v%d, %s offset:%d' % (ad, vr(D + 2, 4), base + 3 * PP))

    def build_q(self, a):
        a('v_lshlrev_b32 v2, 4, v0')
        for sl in range(3):
            a('v_add_u32 v%d, %d, v2' % (4 + sl, CB + CS * sl + QO0 - 8))
        a.wait_vm(self.m_q)
        for sl in range(3):
            Q = self.QRAW + 4 * sl
            a('ds_write_b128 v%d, %s offset:%d' % (4 + sl, vr(Q, 4), QO1 - QO0 + 8))
            a('ds_write2_b64 v%d, %s, %s offset0:0 offset1:1' % (4 + sl, vr(Q, 2), vr(Q + 2, 2)))

    def task_setup(self, a):
        a('v_and_b32 v2, 15, v1')
        a('v_lshrrev_b32 v3, 4, v1')
        a('v_and_b32 v4, 3, v1')
        a('v_lshrrev_b32 v5, 2, v2')
        a('v_add_u32 v5, v5, v3')
        a('v_mul_u32_u24 v4, %d, v4' % PP)
        a('v_lshl_add_u32 v20, v5, 4, v4')
        a('v_and_b32 v4, 1, v1')
        a('v_lshrrev_b32 v5, 1, v2')
        a('v_lshlrev_b32 v5, 6, v5')
        a('v_lshlrev_b32 v6, 4, v3')
        a('v_mul_u32_u24 v7, 4640, v4')
        a('v_add_u32 v7, v7, v6')
        a('v_sub_u32 v7, v7, v5')
        a('v_add_u32 v21, %d, v7' % (QO0 + 448))
        a('v_add_u32 v5, v5, v6')
        a('v_lshl_add_u32 v23, v4, 3, v5')
        a('v_sub_u32 v22, %d, v23' % (QO1 + 504))

    def task_addr(self, a):
        a('s_mul_i32 s%d, s%d, %d' % (ST, self.S_SLOT, CS))
        if CB:
            a('s_add_u32 s%d, s%d, %d' % (ST, ST, CB))
        a('v_add_u32 v%d, s%d, v20' % (self.VA, ST))
        a('v_add_u32 v%d, s%d, v21' % (self.VQ, ST))
        a('v_add_u32 v%d, s%d, v22' % (self.VU, ST))
        a('s_cmp_eq_u32 s%d, 1' % self.S_SLOT)
        a('s_cselect_b32 s%d, s%d, s%d' % (self.S_CH, self.SCH + 1, self.SCH))
        a('s_cmp_eq_u32 s%d, 2' % self.S_SLOT)
        a('s_cselect_b32 s%d, s%d, s%d' % (self.S_CH, self.SCH + 2, self.S_CH))
        a('s_lshr_b32 s%d, s%d, 1' % (ST, self.S_CH))
        a('s_lshl_b32 s%d, s%d, 2' % (ST, ST))
        a('s_load_dword s%d, s[%d:%d], s%d' % (self.S_D, P_D, P_D + 1, ST))
        a('s_lshl_b32 s%d, s%d, 12' % (ST + 1, self.S_CH))
        a('s_add_u32 s%d, s%d, 0x%x' % (ST + 1, ST + 1, LY.Y2T))
        a('v_add_u32 v%d, s%d, v23' % (self.VS, ST + 1))
        a('s_waitcnt lgkmcnt(0)')
        a('s_lshl_b32 s%d, s%d, 16' % (ST, self.S_D))
        a('s_and_b32 s%d, s%d, 0xffff0000' % (self.S_D, self.S_D))
        a('s_bitcmp0_b32 s%d, 0' % self.S_CH)
        a('s_cselect_b32 s%d, s%d, s%d' % (self.S_D, ST, self.S_D))

    def reads(self, tiles, r):
        n = max(tiles) + 1
        F = self.F0 if r % 2 == 0 else self.F1
        L = []
        for p in range(n):
            L.append('ds_read_b128 %s, v%d offset:%d' % (vr(F + 4 * p, 4), self.VA, 512 * p + 64 * r))
            L.append('ds_read_b128 %s, v%d offset:%d' % (vr(F + 32 + 4 * p, 4), self.VQ, 512 * (7 - p) + 64 * r))
        return L

    def mfmas(self, tiles, r):
        F = self.F0 if r % 2 == 0 else self.F1
        items = []
        for ti, t in enumerate(tiles):
            for p in range(t + 1):
                items.append((max(p, t - p), ti, t, p))
        items.sort()
        L = []
        seen = set()
        for _, ti, t, p in items:
            acc = vr(self.ACC + 4 * ti, 4)
            c = acc if (r > 0 or ti in seen) else '0'
            seen.add(ti)
            L.append('v_mfma_f32_16x16x32_bf16 %s, %s, %s, %s' % (acc, vr(F + 4 * p, 4), vr(F + 32 + 4 * (t - p), 4), c))
        return L

    def task(self, a, tiles):
        for x in self.reads(tiles, 0):
            a(x)
        for r in range(8):
            a('s_waitcnt lgkmcnt(0)')
            if r < 7:
                fill = self.reads(tiles, r + 1)
            else:
                fill = ['ds_read_b64 %s, v%d offset:%d' % (vr(self.TMP + 2 * ti, 2), self.VU, 512 * (7 - t)) for ti, t in enumerate(tiles)]
            interleave(a, self.mfmas(tiles, r), fill, 1)
        a('s_waitcnt lgkmcnt(0)')
        for ti, t in enumerate(tiles):
            U = self.TMP + 2 * ti; X = self.TMP + 8 + 4 * ti; A = self.ACC + 4 * ti
            unpack(a, X + 3, X + 2, U)
            unpack(a, X + 1, X + 0, U + 1)
            for k in range(4):
                a('v_fma_f32 v%d, v%d, s%d, v%d' % (X + k, X + k, self.S_D, A + k))
            a('v_cvt_pk_bf16_f32 v%d, v%d, v%d' % (U, X, X + 1))
            a('v_cvt_pk_bf16_f32 v%d, v%d, v%d' % (U + 1, X + 2, X + 3))
            a('buffer_store_dwordx2 %s, v%d, s[%d:%d], 0 offen offset:%d%s' % (vr(U, 2), self.VS, R_WS, R_WS + 3, 512 * t, SC))

    def run(self, a):
        L_bot = a.newlabel('L_bot'); L_done = a.newlabel('L_cdone')
        self.task_setup(a)
        a('s_cmp_eq_u32 s%d, 3' % S_W)
        a('s_cselect_b32 s%d, 0, s%d' % (self.S_SLOT, S_W))
        a('s_cselect_b32 s%d, 0, 1' % self.S_PASS)
        a('s_and_b32 s%d, s%d, 1' % (ST + 4, S_Q))
        a('s_add_u32 s%d, s%d, s%d' % (ST + 4, ST + 4, S_W))
        a('s_cmp_ge_u32 s%d, 3' % (ST + 4))
        a('s_cbranch_scc1 %s' % L_bot)
        self.task_addr(a)
        self.task(a, TOP)
        a('s_branch %s' % L_done)
        a.label(L_bot)
        a.flush_hazards()
        self.task_addr(a)
        self.task(a, BOT)
        a('s_mov_b32 s%d, 1' % self.S_SLOT)
        a('s_cmp_eq_u32 s%d, 0' % self.S_PASS)
        a('s_mov_b32 s%d, 1' % self.S_PASS)
        a('s_cbranch_scc1 %s' % L_bot)
        a.label(L_done)

def conv_body(a):
    c = Conv()
    c.channels(a)
    c.load_p(a)
    c.load_q(a)
    c.zero_fill(a)
    a('s_waitcnt lgkmcnt(0)')
    a('s_barrier')
    c.build_p(a)
    c.build_q(a)
    a('s_waitcnt lgkmcnt(0)')
    a('s_barrier')
    c.run(a)
    a('s_waitcnt vmcnt(0)')


RED = 0
YL = 61440
class G2:
    ACC, HF_, VL = 16, 64, 2
    QR, B2R, B2F, GR, YR, YT = 64, 74, 84, 104, 106, 56

    def load_w2(self, a, lo=0, hi=60):
        if lo == 0:
            a('v_lshlrev_b32 v%d, 4, v1' % self.VL)
            a('s_mul_i32 s%d, s%d, 48' % (96, S_J))
            a('s_mul_i32 s%d, s%d, 12' % (ST, S_W))
            a('s_add_u32 s96, s96, s%d' % ST)
            a('s_mul_i32 s96, s96, 5120')
            a('s_add_u32 s96, s96, 0x%x' % LY.W2T)
        for n in range(lo, hi):
            a('buffer_load_dwordx4 %s, v%d, s[%d:%d], s96 offen offset:%d%s' % (ar(4 * n, 4), self.VL, R_WS, R_WS + 3, 1024 * (n % 4), SC))
            if n % 4 == 3:
                a('s_add_u32 s96, s96, 4096')
        self.m_w2 = a.vm_mark()

    def load_h(self, a):
        self.m_h = {}
        a('v_lshlrev_b32 v%d, 4, v1' % self.VL)
        a('s_mul_i32 s%d, s%d, 12' % (ST, S_W))
        for it in range(4):
            a('s_add_u32 s%d, s%d, %d' % (ST + 1, S_W, 1 + it))
            a('s_and_b32 s%d, s%d, 3' % (ST + 1, ST + 1))
            a('s_lshl_b32 s%d, s%d, 2' % (ST + 2, S_Q))
            a('s_add_u32 s%d, s%d, s%d' % (ST + 2, ST + 2, ST + 1))
            a('s_mul_i32 s%d, s%d, 48' % (ST + 2, ST + 2))
            a('s_add_u32 s%d, s%d, s%d' % (ST + 2, ST + 2, ST))
            a('s_lshl_b32 s%d, s%d, 10' % (ST + 2, ST + 2))
            a('s_add_u32 s%d, s%d, 0x%x' % (ST + 2, ST + 2, LY.HF))
            for ks in range(12):
                a('buffer_load_dwordx4 %s, v%d, s[%d:%d], s%d offen offset:%d%s' % (vr(self.HF_ + 48 * it + 4 * ks, 4), self.VL, R_WS, R_WS + 3, ST + 2, 1024 * (ks % 4), SC))
                self.m_h[(it, ks)] = a.vm_mark()
                if ks % 4 == 3 and ks < 11:
                    a('s_add_u32 s%d, s%d, 4096' % (ST + 2, ST + 2))

    def epi_addr(self, a):
        a('v_and_b32 v10, 15, v1')
        a('v_lshrrev_b32 v11, 4, v1')
        a('s_lshl_b32 s%d, s%d, 6' % (ST, S_Q))
        a('s_lshl_b32 s%d, s%d, 4' % (ST + 1, S_W))
        a('s_add_u32 s%d, s%d, s%d' % (ST, ST, ST + 1))
        a('s_mul_i32 s%d, s%d, 160' % (ST + 1, S_J))
        a('v_add_u32 v10, s%d, v10' % ST)
        a('v_lshlrev_b32 v4, 3, v11')
        a('v_add_u32 v4, s%d, v4' % (ST + 1))
        a('v_mul_u32_u24 v3, 1280, v10')
        a('v_add_u32 v3, v3, v4')
        a('v_lshlrev_b32 v5, 2, v10')
        a('v_add_u32 v5, 0x%x, v5' % LY.G)
        a('s_mul_i32 s%d, s%d, %d' % (ST + 1, S_J, 80 * 4096))
        a('s_lshl_b32 s%d, s%d, 1' % (ST, ST))
        a('s_add_u32 s%d, s%d, s%d' % (ST, ST, ST + 1))
        a('s_add_u32 s%d, s%d, 0x%x' % (ST, ST, LY.Y2T))
        a('v_lshrrev_b32 v6, 1, v1')
        a('v_lshlrev_b32 v6, 12, v6')
        a('v_and_b32 v10, 1, v1')
        a('v_lshl_add_u32 v6, v10, 4, v6')
        a('v_add_u32 v6, s%d, v6' % ST)
        a('s_mul_i32 s%d, s%d, 2560' % (ST, S_W))
        a('s_add_u32 s%d, s%d, %d' % (ST, ST, YL))
        a('v_add_u32 v7, s%d, v%d' % (ST, self.VL))
        a('v_lshlrev_b32 v8, 3, v1')
        a('v_add_u32 v8, s%d, v8' % ST)
        for it in range(3):
            a('s_add_u32 s%d, s%d, %d' % (ST, S_W, 1 + it))
            a('s_and_b32 s%d, s%d, 3' % (ST, ST))
            a('s_mul_i32 s%d, s%d, 15360' % (ST, ST))
            a('s_add_u32 s%d, s%d, %d' % (ST, ST, RED + 5120 * it))
            a('v_add_u32 v%d, s%d, v%d' % (12 + it, ST, self.VL))
        a('s_mul_i32 s%d, s%d, 15360' % (ST, S_W))
        if RED:
            a('s_add_u32 s%d, s%d, %d' % (ST, ST, RED))
        a('v_add_u32 v15, s%d, v%d' % (ST, self.VL))

    def epi_loads_inputs(self):
        L = []
        for dt in range(5):
            L.append('global_load_dwordx2 %s, v4, s[%d:%d] offset:%d' % (vr(self.B2R + 2 * dt, 2), P_B2, P_B2 + 1, 32 * dt))
        for dt in range(5):
            L.append('buffer_load_dwordx2 %s, v3, s[%d:%d], 0 offen offset:%d' % (vr(self.QR + 2 * dt, 2), R_X, R_X + 3, 32 * dt))
        L.append('buffer_load_dword v%d, v5, s[%d:%d], 0 offen%s' % (self.GR, R_WS, R_WS + 3, SC))
        return L

    def y_loads(self, a):
        Y = 112
        self.Y = Y
        a('s_mov_b32 s%d, %d' % (ST, 32 * 4096))
        a('s_mov_b32 s%d, %d' % (ST + 1, 64 * 4096))
        a('buffer_load_dwordx4 %s, v6, s[%d:%d], 0 offen%s' % (vr(Y, 4), R_WS, R_WS + 3, SC))
        a('buffer_load_dwordx4 %s, v6, s[%d:%d], s%d offen%s' % (vr(Y + 4, 4), R_WS, R_WS + 3, ST, SC))
        a('s_mov_b64 exec, 0xffffffff')
        a('buffer_load_dwordx4 %s, v6, s[%d:%d], s%d offen%s' % (vr(Y + 8, 4), R_WS, R_WS + 3, ST + 1, SC))
        a('s_mov_b64 exec, -1')
        self.m_y = a.vm_mark()

    def y_stage(self, a):
        Y = self.Y
        a.wait_vm(self.m_y)
        a('ds_write_b128 v7, %s' % vr(Y, 4))
        a('ds_write_b128 v7, %s offset:1024' % vr(Y + 4, 4))
        a('s_mov_b64 exec, 0xffffffff')
        a('ds_write_b128 v7, %s offset:2048' % vr(Y + 8, 4))
        a('s_mov_b64 exec, -1')
        for dt in range(5):
            a('ds_read_b64_tr_b16 %s, v8 offset:%d' % (vr(124 + 2 * dt, 2), 512 * dt))

    def iteration(self, a, it, fill):
        acc0 = self.ACC + 20 * (it % 2)
        fi = 0
        for ks in range(12):
            a.wait_vm(max(self.m_h[(it, ks)], self.m_w2 if (it == 0 and ks == 0) else 0))
            for dt in range(5):
                acc = vr(acc0 + 4 * dt, 4)
                c = acc if ks > 0 else (vr(self.B2F + 4 * dt, 4) if it == 3 else '0')
                a('v_mfma_f32_16x16x32_bf16 %s, %s, %s, %s' % (acc, ar(4 * (5 * ks + dt), 4), vr(self.HF_ + 48 * it + 4 * ks, 4), c))
                if ks >= 2 and fi < len(fill):
                    f = fill[fi]; fi += 1
                    if callable(f): f(a)
                    else: a(f)
        while fi < len(fill):
            f = fill[fi]; fi += 1
            if callable(f): f(a)
            else: a(f)

    def red_writes(self, it):
        acc0 = self.ACC + 20 * (it % 2)
        return ['ds_write_b128 v%d, %s offset:%d' % (12 + it, vr(acc0 + 4 * dt, 4), 1024 * dt) for dt in range(5)]

    def main(self, a, y_hook=None):
        self.epi_addr(a)
        self.iteration(a, 0, [])
        fl = self.red_writes(0) + self.epi_loads_inputs()
        fl.append(lambda a_: setattr(self, 'm_in', a_.vm_mark()))
        self.iteration(a, 1, fl)
        def unp_b2(a_):
            a_.wait_vm(self.m_in)
            for dt in range(5):
                for d in range(2):
                    unpack(a_, self.B2F + 4 * dt + 2 * d, self.B2F + 4 * dt + 2 * d + 1, self.B2R + 2 * dt + d)
        fl = self.red_writes(1)
        if y_hook: fl.append(y_hook)
        fl += [self.y_loads] + [None] * 30 + [unp_b2]
        fl = [f if f is not None else (lambda a_: None) for f in fl]
        self.iteration(a, 2, fl)
        fl = self.red_writes(2) + [lambda a_: None] * 30 + [self.y_stage]
        self.iteration(a, 3, fl)
        a('s_waitcnt lgkmcnt(0)')
        a('s_barrier')
        R = 160
        for n in range(15):
            a('ds_read_b128 %s, v15 offset:%d' % (vr(R + 4 * n, 4), 1024 * n))
        m0 = a.lgkm_mark()
        G_, OM = 56, 58
        a('v_sub_f32 v%d, 1.0, v%d' % (OM, self.GR))
        a('v_cvt_pk_bf16_f32 v%d, v%d, v%d' % (OM, OM, OM))
        a('v_lshlrev_b32 v%d, 16, v%d' % (OM, OM))
        a('v_mov_b32 v%d, v%d' % (OM + 1, OM))
        a('v_mov_b32 v%d, v%d' % (G_, self.GR))
        a('v_mov_b32 v%d, v%d' % (G_ + 1, self.GR))
        QF, YF = 220, 136
        for dt in range(5):
            for d in range(2):
                unpack(a, QF + 4 * dt + 2 * d, QF + 4 * dt + 2 * d + 1, self.QR + 2 * dt + d)
                unpack(a, YF + 4 * dt + 2 * d, YF + 4 * dt + 2 * d + 1, 124 + 2 * dt + d)
        for n in range(10):
            a('v_pk_mul_f32 %s, %s, %s' % (vr(QF + 2 * n, 2), vr(QF + 2 * n, 2), vr(YF + 2 * n, 2)))
        for n in range(10):
            a('v_pk_mul_f32 %s, %s, %s' % (vr(QF + 2 * n, 2), vr(QF + 2 * n, 2), vr(G_, 2)))
        acc0 = self.ACC + 20
        for sl in range(3):
            a.wait_lgkm(m0 - 10 + 5 * sl)
            for n in range(10):
                a('v_pk_add_f32 %s, %s, %s' % (vr(acc0 + 2 * n, 2), vr(acc0 + 2 * n, 2), vr(R + 20 * sl + 2 * n, 2)))
        for dt in range(5):
            for d in range(2):
                n = 2 * dt + d
                a('v_pk_fma_f32 %s, %s, %s, %s' % (vr(QF + 2 * n, 2), vr(acc0 + 2 * n, 2), vr(OM, 2), vr(QF + 2 * n, 2)))
            for d in range(2):
                n = 2 * dt + d
                a('v_cvt_pk_bf16_f32 v%d, v%d, v%d' % (YF + n, QF + 2 * n, QF + 2 * n + 1))
            a('buffer_store_dwordx2 %s, v3, s[%d:%d], 0 offen offset:%d' % (vr(YF + 2 * dt, 2), R_OUT, R_OUT + 3, 32 * dt))

def g2_body(a):
    g = G2()
    g.load_w2(a)
    g.load_h(a)
    g.main(a)

def kernel_text(name, body, nv=256, acc=256, total=None):
    a = Asm()
    end = 'END_' + name
    prologue(a, end)
    body(a)
    a.label(end)
    a('s_endpgm')
    t = '.text\n.globl %s\n.p2align 8\n.type %s,@function\n%s:\n' % (name, name, name) + a.text()
    t += '.section .rodata,"a"\n.p2align 6\n.amdhsa_kernel %s\n' % name
    t += '  .amdhsa_next_free_vgpr %d\n  .amdhsa_next_free_sgpr 102\n  .amdhsa_accum_offset %d\n' % (total or nv, acc)
    t += '  .amdhsa_group_segment_fixed_size 0\n  .amdhsa_kernarg_size 120\n  .amdhsa_user_sgpr_count 2\n'
    t += '  .amdhsa_user_sgpr_kernarg_segment_ptr 1\n  .amdhsa_system_sgpr_workgroup_id_x 1\n.end_amdhsa_kernel\n'
    return t

def build_multi(kernels, path):
    s = HEADER
    for name, body, lds, kw in kernels:
        s += '; @launch kernel=%s grid=(256,1,1) block=(256,1,1) lds=%d\n' % (name, lds)
    s += '.amdgcn_target "amdgcn-amd-amdhsa--gfx950"\n'
    for name, body, lds, kw in kernels:
        s += kernel_text(name, body, **kw)
    open(path, 'w').write(s)

if __name__ == '__main__':
    ks = [('prep_kernel', prep, 20480, {}), ('g1_kernel', g1_body, 163840, {}), ('conv_kernel', conv_body, 3 * CS, {}), ('g2_kernel', g2_body, 73728, dict(total=512))]
    build_multi(ks, 'k_multi.s')
```

```python
import sys
from asmlib import *
import layout as LY

NAME = 'gated_mix__ssm_conv_h3__dense_activation_gelu__prompt'
HEADER = open('cdna_kernels/%s.s.ref' % NAME).read().split('; Override launch')[0]

S_XCD, S_IDX, S_Q, S_J, S_R, S_CB, S_W = 3, 4, 5, 6, 7, 8, 9
P_Q, P_K, P_V, P_SK, P_HK, P_D, P_BX, P_W1, P_B1, P_W2, P_B2, P_GW, P_OUT, P_DBG, P_WS = range(16, 46, 2)
R_X, R_K, R_V, R_W1, R_W2, R_WS, R_OUT, R_HK = range(48, 80, 4)
ST = 80
NB_SD = 2048 * 1280
SCS = ' sc1'
def SCL():
    return OPT.get('scl', '')

def srd(a, r, p, nbytes):
    a('s_mov_b32 s%d, s%d' % (r, p))
    a('s_and_b32 s%d, s%d, 0xffff' % (r + 1, p + 1))
    a('s_mov_b32 s%d, 0x%x' % (r + 2, nbytes))
    a('s_mov_b32 s%d, 0x20000' % (r + 3))

def prologue(a, end_label, prefetch=False):
    a('s_cmp_ge_u32 s2, 256')
    a('s_cbranch_scc1 %s' % end_label)
    a('s_load_dwordx16 s[16:31], s[0:1], 0')
    a('s_load_dwordx8 s[32:39], s[0:1], 64')
    a('s_load_dwordx4 s[40:43], s[0:1], 96')
    a('s_load_dwordx2 s[44:45], s[0:1], 112')
    if prefetch:
        code_prefetch(a, None)
    a('v_lshrrev_b32 v2, 6, v0')
    a('v_and_b32 v1, 63, v0')
    a('s_and_b32 s%d, s2, 7' % S_XCD)
    a('s_lshr_b32 s%d, s2, 3' % S_IDX)
    a('v_readfirstlane_b32 s%d, v2' % S_W)
    a('s_and_b32 s%d, s%d, 3' % (S_Q, S_IDX))
    a('s_lshl_b32 s%d, s%d, 2' % (ST, S_XCD))
    a('s_add_u32 s%d, s%d, s%d' % (S_Q, S_Q, ST))
    a('s_lshr_b32 s%d, s%d, 2' % (S_J, S_IDX))
    a('s_and_b32 s%d, s%d, 1' % (S_R, S_IDX))
    a('s_lshl_b32 s%d, s%d, 1' % (ST, S_XCD))
    a('s_add_u32 s%d, s%d, s%d' % (S_R, S_R, ST))
    a('s_lshr_b32 s%d, s%d, 1' % (S_CB, S_IDX))
    a('s_waitcnt lgkmcnt(0)')
    srd(a, R_X, P_Q, NB_SD)
    srd(a, R_K, P_K, NB_SD)
    srd(a, R_V, P_V, NB_SD)
    srd(a, R_W1, P_W1, 640 * 3072)
    srd(a, R_W2, P_W2, 1536 * 1280)
    srd(a, R_WS, P_WS, 0x10000000)
    srd(a, R_OUT, P_OUT, NB_SD)

def scsel(a, dst, vt, vf):
    a('s_mov_b32 s%d, %d' % (dst, vf))
    a('s_cmov_b32 s%d, %d' % (dst, vt))

def unpack(a, dst_lo, dst_hi, src):
    a('v_lshlrev_b32 v%d, 16, v%d' % (dst_lo, src))
    a('v_and_b32 v%d, 0xffff0000, v%d' % (dst_hi, src))

class Prep:
    LKV, LW2 = 0, 10240
    KR, VR_, WR, SKR, SF, KF, ACC, VF = 16, 44, 60, 76, 96, 128, 184, 216

    def loads(self, a):
        L_gate = a.newlabel('L_gate'); L_join = a.newlabel('L_pl')
        KR, VR_, WR, SKR = self.KR, self.VR_, self.WR, self.SKR
        a('s_cmp_eq_u32 s%d, 3' % S_W)
        a('s_cbranch_scc1 %s' % L_gate)
        c0 = a.vm_issued
        a('v_mul_u32_u24 v12, 6554, v0')
        a('v_lshrrev_b32 v12, 16, v12')
        a('v_mul_u32_u24 v13, 10, v12')
        a('v_sub_u32 v13, v0, v13')
        a('s_mul_i32 s%d, s%d, %d' % (ST, S_Q, 64 * 1280))
        a('s_mul_i32 s%d, s%d, 160' % (ST + 1, S_J))
        a('s_add_u32 s%d, s%d, s%d' % (ST, ST, ST + 1))
        a('v_mul_u32_u24 v4, 5120, v12')
        a('v_lshl_add_u32 v4, v13, 4, v4')
        a('v_add_u32 v4, s%d, v4' % ST)
        a('v_subrev_u32 v5, 3840, v4')
        a('s_mul_i32 s%d, s%d, 640' % (ST + 1, S_J))
        a('v_lshlrev_b32 v6, 6, v13')
        a('v_add_u32 v6, s%d, v6' % (ST + 1))
        a('v_cmp_gt_u32 vcc, 160, v0')
        a('s_and_saveexec_b64 s[%d:%d], vcc' % (ST + 2, ST + 3))
        for r in range(3):
            a('buffer_load_dwordx4 %s, v5, s[%d:%d], 0 offen offset:%d' % (vr(KR + 4 * r, 4), R_K, R_K + 3, 1280 * r))
        for r in range(4):
            a('buffer_load_dwordx4 %s, v4, s[%d:%d], 0 offen offset:%d' % (vr(KR + 12 + 4 * r, 4), R_K, R_K + 3, 1280 * r))
        self.m_k = a.vm_mark()
        for i in range(4):
            a('global_load_dwordx4 %s, v6, s[%d:%d] offset:%d' % (vr(SKR + 4 * i, 4), P_SK, P_SK + 1, 16 * i))
        self.m_sk = a.vm_mark()
        for r in range(4):
            a('buffer_load_dwordx4 %s, v4, s[%d:%d], 0 offen offset:%d' % (vr(VR_ + 4 * r, 4), R_V, R_V + 3, 1280 * r))
        self.m_v = a.vm_mark()
        for r in range(4):
            a('buffer_load_dwordx4 %s, v4, s[%d:%d], 0 offen offset:%d' % (vr(WR + 4 * r, 4), R_W2, R_W2 + 3, 1280 * r))
        self.m_w = a.vm_mark()
        a('s_mov_b64 exec, s[%d:%d]' % (ST + 2, ST + 3))
        a('s_branch %s' % L_join)
        endA = a.vm_issued
        a.label(L_gate)
        a('v_lshrrev_b32 v12, 3, v1')
        a('v_and_b32 v13, 7, v1')
        a('s_lshl_b32 s%d, s%d, 7' % (ST, S_R))
        a('s_lshl_b32 s%d, s%d, 3' % (ST + 1, S_CB))
        a('s_add_u32 s%d, s%d, s%d' % (ST, ST, ST + 1))
        a('v_add_u32 v12, s%d, v12' % ST)
        a('v_mul_u32_u24 v4, 1280, v12')
        a('v_lshlrev_b32 v5, 4, v13')
        a('v_add_u32 v4, v4, v5')
        for n in range(10):
            a('buffer_load_dwordx4 %s, v4, s[%d:%d], 0 offen offset:%d' % (vr(16 + 4 * n, 4), R_X, R_X + 3, 128 * n))
            a('global_load_dwordx4 %s, v5, s[%d:%d] offset:%d' % (vr(56 + 4 * n, 4), P_GW, P_GW + 1, 128 * n))
        a.label(L_join)
        a.vm_issued = endA
        self.m_g = endA

    def compute(self, a):
        L_gate = a.newlabel('L_gate'); L_join = a.newlabel('L_prepjoin'); L_skip = a.newlabel('L_prepskip')
        KR, VR_, WR, SKR, SF, KF, ACC, VF = self.KR, self.VR_, self.WR, self.SKR, self.SF, self.KF, self.ACC, self.VF
        LKV, LW2 = self.LKV, self.LW2
        a('s_cmp_eq_u32 s%d, 3' % S_W)
        a('s_cbranch_scc1 %s' % L_gate)
        a('v_mul_u32_u24 v8, 640, v12')
        a('v_lshlrev_b32 v9, 4, v13')
        a('v_sub_u32 v7, v9, v8')
        a('v_add_u32 v7, %d, v7' % (LKV + 60 * 160))
        a('v_add_u32 v8, v8, v9')
        a('v_add_u32 v8, %d, v8' % LW2)
        a('v_cmp_gt_u32 vcc, 160, v0')
        a('s_and_saveexec_b64 s[%d:%d], vcc' % (ST + 2, ST + 3))
        a.wait_vm(self.m_k)
        for r in range(7):
            for d in range(4):
                unpack(a, KF + r * 8 + 2 * d, KF + r * 8 + 2 * d + 1, KR + 4 * r + d)
        a.wait_vm(self.m_sk)
        for i in range(8):
            unpack(a, SF + 0 * 8 + i, SF + 1 * 8 + i, SKR + 2 * i)
            unpack(a, SF + 2 * 8 + i, SF + 3 * 8 + i, SKR + 2 * i + 1)
        for j in range(4):
            for r in range(4):
                for p in range(4):
                    acc = vr(ACC + r * 8 + 2 * p, 2)
                    kf = vr(KF + (r + 3 - j) * 8 + 2 * p, 2); sf = vr(SF + j * 8 + 2 * p, 2)
                    if j == 0:
                        a('v_pk_mul_f32 %s, %s, %s' % (acc, kf, sf))
                    else:
                        a('v_pk_fma_f32 %s, %s, %s, %s' % (acc, kf, sf, acc))
        a.wait_vm(self.m_v)
        for r in range(4):
            for d in range(4):
                unpack(a, VF + 2 * d, VF + 2 * d + 1, VR_ + 4 * r + d)
            for d in range(4):
                a('v_pk_mul_f32 %s, %s, %s' % (vr(ACC + r * 8 + 2 * d, 2), vr(ACC + r * 8 + 2 * d, 2), vr(VF + 2 * d, 2)))
            for d in range(4):
                a('v_cvt_pk_bf16_f32 v%d, v%d, v%d' % (KR + 4 * r + d, ACC + r * 8 + 2 * d, ACC + r * 8 + 2 * d + 1))
            a('ds_write_b128 v7, %s offset:%d' % (vr(KR + 4 * r, 4), (3 - r) * 160))
        a.wait_vm(self.m_w)
        for r in range(4):
            a('ds_write_b128 v8, %s offset:%d' % (vr(WR + 4 * r, 4), r * 160))
        a('s_mov_b64 exec, s[%d:%d]' % (ST + 2, ST + 3))
        a('s_branch %s' % L_join)
        cA = a.vm_issued
        a.label(L_gate)
        a('v_mov_b32 v10, 0')
        a('v_mov_b32 v11, 0')
        a.wait_vm(self.m_g)
        for n in range(40):
            acc = 10 + (n & 1)
            a('v_dot2_f32_bf16 v%d, v%d, v%d, v%d' % (acc, 16 + n, 56 + n, acc))
        a('s_nop 3')
        a('v_add_f32 v10, v10, v11')
        a('v_add_f32_dpp v10, v10, v10 quad_perm:[1,0,3,2] row_mask:0xf bank_mask:0xf')
        a('v_add_f32_dpp v10, v10, v10 quad_perm:[2,3,0,1] row_mask:0xf bank_mask:0xf')
        a('v_add_f32_dpp v10, v10, v10 row_half_mirror row_mask:0xf bank_mask:0xf')
        a('v_cvt_pk_bf16_f32 v10, v10, v10')
        a('v_lshlrev_b32 v10, 16, v10')
        a('v_mul_f32 v10, 0xbfb8aa3b, v10')
        a('v_exp_f32 v10, v10')
        a('v_add_f32 v10, 1.0, v10')
        a('v_rcp_f32 v10, v10')
        a('v_cvt_pk_bf16_f32 v10, v10, v10')
        a('v_lshlrev_b32 v10, 16, v10')
        a('v_lshlrev_b32 v4, 2, v12')
        a('v_add_u32 v4, 0x%x, v4' % LY.G)
        a('v_cmp_eq_u32 vcc, 0, v13')
        a('s_and_saveexec_b64 s[%d:%d], vcc' % (ST + 2, ST + 3))
        a('buffer_store_dword v10, v4, s[%d:%d], 0 offen%s' % (R_WS, R_WS + 3, SCS))
        a('s_mov_b64 exec, s[%d:%d]' % (ST + 2, ST + 3))
        a.label(L_join)
        a.vm_issued = cA
        a('v_and_b32 v2, 15, v1')
        a('v_lshrrev_b32 v3, 4, v1')
        a('v_lshrrev_b32 v4, 2, v2')
        a('v_and_b32 v5, 3, v1')
        a('s_and_b32 s%d, s%d, 1' % (ST, S_W))
        a('s_cmp_ge_u32 s%d, 2' % S_W)
        a('s_cselect_b32 s%d, 2, 3' % (ST + 1))
        scsel(a, ST + 2, 2560, 640)
        scsel(a, ST + 3, LW2, LKV)
        scsel(a, ST + 4, 1024, 65536)
        a('s_mul_i32 s%d, s%d, %d' % (ST + 5, ST, 32 * 160))
        a('s_add_u32 s%d, s%d, s%d' % (ST + 3, ST + 3, ST + 5))
        a('v_lshlrev_b32 v6, s%d, v3' % (ST + 1))
        a('v_add_u32 v6, v6, v4')
        a('v_mul_u32_u24 v6, 160, v6')
        a('v_lshl_add_u32 v6, v5, 3, v6')
        a('v_add_u32 v6, s%d, v6' % (ST + 3))
        a('v_add_u32 v7, s%d, v6' % (ST + 2))
        a('s_mul_i32 s%d, s%d, %d' % (ST + 5, S_J, 80 * 4096))
        a('s_lshl_b32 s%d, s%d, 7' % (ST + 6, S_Q))
        a('s_sub_u32 s%d, s%d, s%d' % (ST + 5, ST + 5, ST + 6))
        a('s_lshl_b32 s%d, s%d, 6' % (ST + 6, ST))
        a('s_add_u32 s%d, s%d, s%d' % (ST + 5, ST + 5, ST + 6))
        a('s_add_u32 s%d, s%d, %d' % (ST + 5, ST + 5, LY.KVT + 2 * 1984))
        a('v_lshlrev_b32 v8, 12, v2')
        a('v_lshl_add_u32 v8, v3, 4, v8')
        a('s_mul_i32 s%d, s%d, 48' % (ST + 6, S_J))
        a('s_lshl_b32 s%d, s%d, 1' % (ST + 7, S_Q))
        a('s_add_u32 s%d, s%d, s%d' % (ST + 6, ST + 6, ST + 7))
        a('s_add_u32 s%d, s%d, s%d' % (ST + 6, ST + 6, ST))
        a('s_mul_i32 s%d, s%d, 5120' % (ST + 6, ST + 6))
        a('s_add_u32 s%d, s%d, 0x%x' % (ST + 6, ST + 6, LY.W2T))
        a('v_lshlrev_b32 v9, 4, v1')
        a('s_cmp_ge_u32 s%d, 2' % S_W)
        a('s_cselect_b32 s%d, s%d, s%d' % (ST + 5, ST + 6, ST + 5))
        a('s_cselect_b64 vcc, -1, 0')
        a('v_cndmask_b32 v8, v8, v9, vcc')
        a('s_cselect_b32 s%d, s%d, 0' % (ST + 7, S_Q))
        a('s_waitcnt lgkmcnt(0)')
        a('s_barrier')
        for u in range(5):
            a('ds_read_b64_tr_b16 %s, v6 offset:%d' % (vr(16 + 4 * u, 2), 32 * u))
            a('ds_read_b64_tr_b16 %s, v7 offset:%d' % (vr(18 + 4 * u, 2), 32 * u))
        a('s_cmp_ge_u32 s%d, 24' % (ST + 7))
        a('s_waitcnt lgkmcnt(0)')
        a('s_cbranch_scc1 %s' % L_skip)
        cB = a.vm_issued
        for u in range(5):
            a('buffer_store_dwordx4 %s, v8, s[%d:%d], s%d offen%s' % (vr(16 + 4 * u, 4), R_WS, R_WS + 3, ST + 5, SCS))
            if u < 4:
                a('s_add_u32 s%d, s%d, s%d' % (ST + 5, ST + 5, ST + 4))
        a.label(L_skip)
        a('s_nop 1')
        a.vm_issued = cB
        self.m_st = cB

def prep(a):
    p = Prep()
    p.loads(a)
    p.compute(a)
    a('s_waitcnt vmcnt(0) lgkmcnt(0)')

RB = 20480
SLOT = 28672
NSLOT = 5
def f32hex(x):
    import struct
    return '0x%08x' % struct.unpack('<I', struct.pack('<f', x))[0]

class G1:
    VX, VW, VB = 224, 228, 24
    BIAS, BRAW, ACC, AF, BF = 36, 232, 72, 120, 168
    SX, SWO = 96, 97

    def setup(self, a):
        a('v_lshrrev_b32 v2, 3, v1')
        a('v_and_b32 v3, 7, v1')
        a('s_lshl_b32 s%d, s%d, 7' % (ST, S_R))
        a('s_lshl_b32 s%d, s%d, 5' % (ST + 1, S_W))
        a('s_add_u32 s%d, s%d, s%d' % (ST, ST, ST + 1))
        a('s_mul_i32 s%d, s%d, 1280' % (ST, ST))
        for i in range(4):
            a('v_add_u32 v4, %d, v2' % (8 * i))
            a('v_bfe_u32 v5, v4, 1, 3')
            a('v_xor_b32 v5, v5, v3')
            a('v_mul_u32_u24 v4, 1280, v4')
            a('v_lshl_add_u32 v4, v5, 4, v4')
            a('v_add_u32 v4, s%d, v4' % ST)
            a('v_subrev_u32 v%d, %d, v4' % (self.VX + i, 1024 * i))
        a('s_mul_i32 s%d, s%d, %d' % (ST, S_W, 16 * 3072))
        a('s_mul_i32 s%d, s%d, 192' % (ST + 1, S_CB))
        a('s_add_u32 s%d, s%d, s%d' % (ST, ST, ST + 1))
        for i in range(3):
            a('v_add_u32 v4, %d, v1' % (64 * i))
            a('v_mul_u32_u24 v5, 5462, v4')
            a('v_lshrrev_b32 v5, 16, v5')
            a('v_mul_u32_u24 v6, 12, v5')
            a('v_sub_u32 v6, v4, v6')
            a('v_bfe_u32 v7, v5, 3, 1')
            a('v_lshlrev_b32 v7, 1, v7')
            a('v_sub_u32 v6, v6, v7')
            a('v_add_u32 v7, 12, v6')
            a('v_min_u32 v6, v6, v7')
            a('v_mul_u32_u24 v5, 3072, v5')
            a('v_lshl_add_u32 v5, v6, 4, v5')
            a('v_add_u32 v5, s%d, v5' % ST)
            a('v_subrev_u32 v%d, %d, v5' % (self.VW + i, 1024 * i))
        a('s_mov_b32 s%d, 0' % self.SX)
        a('s_mov_b32 s%d, 0' % self.SWO)
        a('s_lshl_b32 s%d, s%d, 12' % (98, S_W))
        a('s_mul_i32 s%d, s%d, 3072' % (99, S_W))
        a('s_add_u32 s99, s99, 16384')
        self.marks = {}

    def dma(self, a, stage):
        slot = RB + SLOT * (stage % NSLOT)
        a('s_add_u32 m0, s98, %d' % slot)
        for i in range(4):
            a('buffer_load_dwordx4 v%d, s[%d:%d], s%d offen offset:%d lds' % (self.VX + i, R_X, R_X + 3, self.SX, 1024 * i))
        a('s_add_u32 m0, s99, %d' % slot)
        a('s_add_u32 s%d, s%d, 128' % (self.SX, self.SX))
        for i in range(3):
            a('buffer_load_dwordx4 v%d, s[%d:%d], s%d offen offset:%d lds' % (self.VW + i, R_W1, R_W1 + 3, self.SWO, 1024 * i))
        a('s_add_u32 s%d, s%d, %d' % (self.SWO, self.SWO, 64 * 3072))
        self.marks[stage] = a.vm_mark()

    def bias_load(self, a):
        a('v_lshrrev_b32 v3, 4, v1')
        a('s_mul_i32 s%d, s%d, 192' % (ST, S_CB))
        a('v_lshlrev_b32 v4, 3, v3')
        a('v_add_u32 v4, s%d, v4' % ST)
        for ft in range(6):
            a('global_load_dwordx2 %s, v4, s[%d:%d] offset:%d' % (vr(self.BRAW + 2 * ft, 2), P_B1, P_B1 + 1, 32 * ft))
        self.m_bias = a.vm_mark()

    def setup2(self, a):
        a('v_lshrrev_b32 v3, 4, v1')
        a('v_and_b32 v2, 15, v1')
        a('v_lshrrev_b32 v4, 1, v2')
        a('v_xor_b32 v4, v4, v3')
        a('v_lshlrev_b32 v4, 4, v4')
        a('v_lshl_add_u32 v4, v2, 7, v4')
        a('v_add_u32 v4, s98, v4')
        a('v_xor_b32 v5, 64, v4')
        a('v_lshrrev_b32 v6, 2, v2')
        a('v_lshl_add_u32 v6, v3, 3, v6')
        a('v_mul_u32_u24 v6, 192, v6')
        a('v_and_b32 v7, 3, v1')
        a('v_lshl_add_u32 v6, v7, 3, v6')
        a('v_and_b32 v7, 1, v3')
        a('v_lshl_add_u32 v6, v7, 5, v6')
        a('v_mul_u32_u24 v7, 192, v7')
        a('v_sub_u32 v7, v6, v7')
        for grp in range(3):
            off = RB + 2 * SLOT * grp
            a('v_add_u32 v%d, %d, v4' % (self.VB + 4 * grp, off))
            a('v_add_u32 v%d, %d, v5' % (self.VB + 4 * grp + 1, off))
            a('v_add_u32 v%d, %d, v6' % (self.VB + 4 * grp + 2, off + 16384))
            a('v_add_u32 v%d, %d, v7' % (self.VB + 4 * grp + 3, off + 16384))

    def reads(self, stage, kk):
        slot = stage % NSLOT
        grp, so = slot // 2, (slot % 2) * SLOT
        L = []
        for st in range(2):
            L.append('ds_read_b128 %s, v%d offset:%d' % (vr(self.BF + 8 * kk + 4 * st, 4), self.VB + 4 * grp + kk, so + 2048 * st))
        for ft in range(6):
            base = self.VB + 4 * grp + (3 if ft == 5 else 2)
            for h in range(2):
                L.append('ds_read_b64_tr_b16 %s, v%d offset:%d' % (vr(self.AF + 24 * kk + 4 * ft + 2 * h, 2), base, so + 6144 * kk + 768 * h + 32 * ft))
        return L

    def mfmas(self, kk, first):
        L = []
        for ft in range(6):
            for st in range(2):
                acc = vr(self.ACC + 8 * ft + 4 * st, 4)
                c = vr(self.BIAS + 4 * ft, 4) if first else acc
                L.append('v_mfma_f32_16x16x32_bf16 %s, %s, %s, %s' % (acc, vr(self.AF + 24 * kk + 4 * ft, 4), vr(self.BF + 8 * kk + 4 * st, 4), c))
        return L

    def unpack_bias(self, a):
        a.wait_vm(self.m_bias)
        for ft in range(6):
            for d in range(2):
                unpack(a, self.BIAS + 4 * ft + 2 * d, self.BIAS + 4 * ft + 2 * d + 1, self.BRAW + 2 * ft + d)

    def main(self, a, pre=None, post=None, mid=None):
        pre = pre or {}; post = post or {}; mid = mid or {}
        pend = None
        for i in range(10):
            a.wait_vm(max(self.marks[i], pre.get(i, 0)))
            a('s_barrier')
            rd = self.reads(i, 0)
            if pend:
                interleave(a, pend[:7], rd, 2)
            else:
                interleave(a, [], rd, 2)
            if 1 <= i <= 5:
                self.dma(a, i + 4)
            if i in post:
                post[i](a)
            if pend:
                interleave(a, pend[7:], [], 2)
            a('s_waitcnt lgkmcnt(0)')
            interleave(a, self.mfmas(0, i == 0), self.reads(i, 1), 2)
            if i in mid:
                mid[i](a)
            a('s_waitcnt lgkmcnt(0)')
            pend = self.mfmas(1, False)
        interleave(a, pend, [], 2)

    def epilogue(self, a):
        C1, C2, ONE, T = 16, 18, 20, 120
        c1 = -2.0 * 1.4426950408889634 * 0.7978845608028654
        for r, val in ((C1, c1), (C2, c1 * 0.044715), (ONE, 1.0)):
            a('v_mov_b32 v%d, %s' % (r, f32hex(val)))
            a('v_mov_b32 v%d, %s' % (r + 1, f32hex(val)))
        a('s_lshl_b32 s%d, s%d, 3' % (ST, S_R))
        a('s_lshl_b32 s%d, s%d, 1' % (ST + 1, S_W))
        a('s_add_u32 s%d, s%d, s%d' % (ST, ST, ST + 1))
        a('s_mul_i32 s%d, s%d, 48' % (ST, ST))
        a('s_mul_i32 s%d, s%d, 3' % (ST + 1, S_CB))
        a('s_add_u32 s%d, s%d, s%d' % (ST, ST, ST + 1))
        a('s_lshl_b32 s%d, s%d, 10' % (ST, ST))
        a('s_add_u32 s%d, s%d, 0x%x' % (ST, ST, LY.HF))
        a('s_add_u32 s%d, s%d, %d' % (ST + 1, ST, 48 * 1024))
        a('v_lshlrev_b32 v2, 4, v1')
        k = 0
        for st in range(2):
            for J in range(3):
                o = 184 + 4 * (k % 4); t0 = T + 16 * (k % 2); k += 1
                prs = [self.ACC + 8 * (2 * J + h) + 4 * st + 2 * p for h in range(2) for p in range(2)]
                for n, x in enumerate(prs):
                    a('v_pk_mul_f32 %s, %s, %s' % (vr(t0 + 2 * n, 2), vr(x, 2), vr(x, 2)))
                for n, x in enumerate(prs):
                    a('v_pk_fma_f32 %s, %s, %s, %s' % (vr(t0 + 2 * n, 2), vr(t0 + 2 * n, 2), vr(C2, 2), vr(C1, 2)))
                for n, x in enumerate(prs):
                    a('v_pk_mul_f32 %s, %s, %s' % (vr(t0 + 2 * n, 2), vr(t0 + 2 * n, 2), vr(x, 2)))
                for n in range(8):
                    a('v_exp_f32 v%d, v%d' % (t0 + n, t0 + n))
                for n, x in enumerate(prs):
                    a('v_pk_add_f32 %s, %s, %s' % (vr(t0 + 2 * n, 2), vr(t0 + 2 * n, 2), vr(ONE, 2)))
                for n in range(8):
                    a('v_rcp_f32 v%d, v%d' % (t0 + n, t0 + n))
                for n, x in enumerate(prs):
                    a('v_pk_mul_f32 %s, %s, %s' % (vr(t0 + 2 * n, 2), vr(t0 + 2 * n, 2), vr(x, 2)))
                for n in range(4):
                    a('v_cvt_pk_bf16_f32 v%d, v%d, v%d' % (o + n, t0 + 2 * n, t0 + 2 * n + 1))
                a('buffer_store_dwordx4 %s, v2, s[%d:%d], s%d offen offset:%d%s' % (vr(o, 4), R_WS, R_WS + 3, ST + st, 1024 * J, SCS))

def interleave(a, main, fill, per):
    fi = 0
    if not main:
        for f in fill:
            a(f)
        return
    for m in main:
        a(m)
        for _ in range(per):
            if fi < len(fill):
                a(fill[fi]); fi += 1
    while fi < len(fill):
        a(fill[fi]); fi += 1

def g1_body(a):
    g = G1()
    g.bias_load(a)
    g.setup(a)
    for s_ in range(5):
        g.dma(a, s_)
    g.setup2(a)
    g.unpack_bias(a)
    g.main(a)
    g.epilogue(a)
    a('s_waitcnt vmcnt(0)')


PP = 4160
QO0 = 16656
QO1 = QO0 + 4640
CS = 25856
CB = 0
TOP = [7, 6, 5, 2]
BOT = [4, 3, 1, 0]

class Conv:
    VA, VQ, VU, VS = 16, 17, 18, 19
    F0, F1, ACC, TMP = 32, 96, 160, 176
    PRAW, QRAW = 200, 220
    SCH = 90
    S_SLOT, S_CH, S_D, S_PASS = 93, 94, 95, 100
    hook = None

    def channels(self, a):
        a('s_mul_i32 s%d, s%d, 80' % (ST, S_J))
        a('s_lshr_b32 s%d, s%d, 1' % (ST + 1, S_Q))
        a('s_mul_i32 s%d, s%d, 5' % (ST + 1, ST + 1))
        a('s_add_u32 s%d, s%d, s%d' % (ST, ST, ST + 1))
        a('s_and_b32 s%d, s%d, 1' % (ST + 1, S_Q))
        a('s_mul_i32 s%d, s%d, 3' % (ST + 1, ST + 1))
        a('s_add_u32 s%d, s%d, s%d' % (self.SCH, ST, ST + 1))
        a('s_add_u32 s%d, s%d, 1' % (self.SCH + 1, self.SCH))
        a('s_add_u32 s%d, s%d, 2' % (self.SCH + 2, ST))

    def load_p(self, a):
        a('v_lshlrev_b32 v2, 4, v0')
        a('v_subrev_u32 v3, 8, v2')
        a('s_mov_b32 s%d, 4096' % (R_HK + 2))
        a('s_mov_b32 s%d, 0x20000' % (R_HK + 3))
        for sl in range(3):
            a('s_lshl_b32 s%d, s%d, 12' % (ST, self.SCH + sl))
            a('s_add_u32 s%d, s%d, s%d' % (R_HK, P_HK, ST))
            a('s_addc_u32 s%d, s%d, 0' % (R_HK + 1, P_HK + 1))
            a('s_and_b32 s%d, s%d, 0xffff' % (R_HK + 1, R_HK + 1))
            a('buffer_load_dwordx2 %s, v3, s[%d:%d], 0 offen' % (vr(self.PRAW + 6 * sl, 2), R_HK, R_HK + 3))
            a('buffer_load_dwordx4 %s, v2, s[%d:%d], 0 offen' % (vr(self.PRAW + 6 * sl + 2, 4), R_HK, R_HK + 3))
        self.m_p = a.vm_mark()

    def load_q(self, a):
        a('v_lshlrev_b32 v2, 4, v0')
        for sl in range(3):
            a('s_lshl_b32 s%d, s%d, 12' % (ST + sl, self.SCH + sl))
            if LY.KVT:
                a('s_add_u32 s%d, s%d, 0x%x' % (ST + sl, ST + sl, LY.KVT))
            a('buffer_load_dwordx4 %s, v2, s[%d:%d], s%d offen%s' % (vr(self.QRAW + 4 * sl, 4), R_WS, R_WS + 3, ST + sl, SCL()))
        self.m_q = a.vm_mark()

    def zero_fill(self, a):
        L = a.newlabel('L_zf')
        a('s_cmp_ge_u32 s%d, 3' % S_W)
        a('s_cbranch_scc1 %s' % L)
        for i in range(4):
            a('v_mov_b32 v%d, 0' % (8 + i))
        a('s_mul_i32 s%d, s%d, %d' % (ST, S_W, CS))
        a('v_lshlrev_b32 v2, 4, v1')
        a('v_add_u32 v2, s%d, v2' % ST)
        a('v_bfe_u32 v3, v1, 2, 2')
        a('v_mul_u32_u24 v3, %d, v3' % PP)
        a('v_and_b32 v4, 3, v1')
        a('v_lshl_add_u32 v3, v4, 4, v3')
        a('v_add_u32 v3, s%d, v3' % ST)
        a('v_cmp_gt_u32 vcc, 29, v1')
        a('s_and_saveexec_b64 s[%d:%d], vcc' % (ST + 2, ST + 3))
        a('ds_write_b128 v2, v[8:11] offset:%d' % (CB + QO0 + 4080))
        a('ds_write_b128 v2, v[8:11] offset:%d' % (CB + QO1 + 4096))
        a('ds_write_b128 v3, v[8:11] offset:%d' % CB)
        a('s_mov_b64 exec, s[%d:%d]' % (ST + 2, ST + 3))
        a.label(L)

    def build_p(self, a):
        a('v_lshlrev_b32 v2, 4, v0')
        a.wait_vm(self.m_p)
        for sl in range(3):
            D = self.PRAW + 6 * sl
            T = 36 + 12 * sl
            base = CB + CS * sl + 48
            if base + 3 * PP > 65535:
                a('v_add_u32 v3, %d, v2' % base); ad, base = 3, 0
            else:
                ad = 2
            for k in range(4):
                a('v_alignbit_b32 v%d, v%d, v%d, 16' % (T + k, D + k + 1, D + k))
            for k in range(4):
                a('v_mov_b32 v%d, v%d' % (T + 4 + k, D + 1 + k))
            for k in range(3):
                a('v_mov_b32 v%d, v%d' % (T + 8 + k, T + 1 + k))
            a('v_alignbit_b32 v%d, v%d, v%d, 16' % (T + 11, D + 5, D + 4))
            a('ds_write_b128 v%d, %s offset:%d' % (ad, vr(T, 4), base))
            a('ds_write_b128 v%d, %s offset:%d' % (ad, vr(T + 4, 4), base + PP))
            a('ds_write_b128 v%d, %s offset:%d' % (ad, vr(T + 8, 4), base + 2 * PP))
            a('ds_write_b128 v%d, %s offset:%d' % (ad, vr(D + 2, 4), base + 3 * PP))

    def build_q(self, a):
        a('v_lshlrev_b32 v2, 4, v0')
        for sl in range(3):
            a('v_add_u32 v%d, %d, v2' % (4 + sl, CB + CS * sl + QO0 - 8))
        a.wait_vm(self.m_q)
        for sl in range(3):
            Q = self.QRAW + 4 * sl
            a('ds_write_b128 v%d, %s offset:%d' % (4 + sl, vr(Q, 4), QO1 - QO0 + 8))
            a('ds_write2_b64 v%d, %s, %s offset0:0 offset1:1' % (4 + sl, vr(Q, 2), vr(Q + 2, 2)))

    def task_setup(self, a):
        a('v_and_b32 v2, 15, v1')
        a('v_lshrrev_b32 v3, 4, v1')
        a('v_and_b32 v4, 3, v1')
        a('v_lshrrev_b32 v5, 2, v2')
        a('v_add_u32 v5, v5, v3')
        a('v_mul_u32_u24 v4, %d, v4' % PP)
        a('v_lshl_add_u32 v20, v5, 4, v4')
        a('v_and_b32 v4, 1, v1')
        a('v_lshrrev_b32 v5, 1, v2')
        a('v_lshlrev_b32 v5, 6, v5')
        a('v_lshlrev_b32 v6, 4, v3')
        a('v_mul_u32_u24 v7, 4640, v4')
        a('v_add_u32 v7, v7, v6')
        a('v_sub_u32 v7, v7, v5')
        a('v_add_u32 v21, %d, v7' % (QO0 + 448))
        a('v_add_u32 v5, v5, v6')
        a('v_lshl_add_u32 v23, v4, 3, v5')
        a('v_sub_u32 v22, %d, v23' % (QO1 + 504))

    def task_addr(self, a):
        a('s_mul_i32 s%d, s%d, %d' % (ST, self.S_SLOT, CS))
        if CB:
            a('s_add_u32 s%d, s%d, %d' % (ST, ST, CB))
        a('v_add_u32 v%d, s%d, v20' % (self.VA, ST))
        a('v_add_u32 v%d, s%d, v21' % (self.VQ, ST))
        a('v_add_u32 v%d, s%d, v22' % (self.VU, ST))
        a('s_cmp_eq_u32 s%d, 1' % self.S_SLOT)
        a('s_cselect_b32 s%d, s%d, s%d' % (self.S_CH, self.SCH + 1, self.SCH))
        a('s_cmp_eq_u32 s%d, 2' % self.S_SLOT)
        a('s_cselect_b32 s%d, s%d, s%d' % (self.S_CH, self.SCH + 2, self.S_CH))
        a('s_lshr_b32 s%d, s%d, 1' % (ST, self.S_CH))
        a('s_lshl_b32 s%d, s%d, 2' % (ST, ST))
        a('s_load_dword s%d, s[%d:%d], s%d' % (self.S_D, P_D, P_D + 1, ST))
        a('s_lshl_b32 s%d, s%d, 12' % (ST + 1, self.S_CH))
        a('s_add_u32 s%d, s%d, 0x%x' % (ST + 1, ST + 1, LY.Y2T))
        a('v_add_u32 v%d, s%d, v23' % (self.VS, ST + 1))
        a('s_waitcnt lgkmcnt(0)')
        a('s_lshl_b32 s%d, s%d, 16' % (ST, self.S_D))
        a('s_and_b32 s%d, s%d, 0xffff0000' % (self.S_D, self.S_D))
        a('s_bitcmp0_b32 s%d, 0' % self.S_CH)
        a('s_cselect_b32 s%d, s%d, s%d' % (self.S_D, ST, self.S_D))

    def reads(self, tiles, r):
        n = max(tiles) + 1
        F = self.F0 if r % 2 == 0 else self.F1
        L = []
        for p in range(n):
            L.append('ds_read_b128 %s, v%d offset:%d' % (vr(F + 4 * p, 4), self.VA, 512 * p + 64 * r))
            L.append('ds_read_b128 %s, v%d offset:%d' % (vr(F + 32 + 4 * p, 4), self.VQ, 512 * (7 - p) + 64 * r))
        return L

    def mfmas(self, tiles, r):
        F = self.F0 if r % 2 == 0 else self.F1
        items = []
        for ti, t in enumerate(tiles):
            for p in range(t + 1):
                items.append((max(p, t - p), ti, t, p))
        items.sort()
        L = []
        seen = set()
        for _, ti, t, p in items:
            acc = vr(self.ACC + 4 * ti, 4)
            c = acc if (r > 0 or ti in seen) else '0'
            seen.add(ti)
            L.append('v_mfma_f32_16x16x32_bf16 %s, %s, %s, %s' % (acc, vr(F + 4 * p, 4), vr(F + 32 + 4 * (t - p), 4), c))
        return L

    def task(self, a, tiles):
        for x in self.reads(tiles, 0):
            a(x)
        for r in range(8):
            a('s_waitcnt lgkmcnt(0)')
            if self.hook and r == self.hook[0]:
                self.hook[1](a)
            if r < 7:
                fill = self.reads(tiles, r + 1)
            else:
                fill = ['ds_read_b64 %s, v%d offset:%d' % (vr(self.TMP + 2 * ti, 2), self.VU, 512 * (7 - t)) for ti, t in enumerate(tiles)]
            interleave(a, self.mfmas(tiles, r), fill, 1)
        a('s_waitcnt lgkmcnt(0)')
        for ti, t in enumerate(tiles):
            U = self.TMP + 2 * ti; X = self.TMP + 8 + 4 * ti; A = self.ACC + 4 * ti
            unpack(a, X + 3, X + 2, U)
            unpack(a, X + 1, X + 0, U + 1)
            for k in range(4):
                a('v_fma_f32 v%d, v%d, s%d, v%d' % (X + k, X + k, self.S_D, A + k))
            a('v_cvt_pk_bf16_f32 v%d, v%d, v%d' % (U, X, X + 1))
            a('v_cvt_pk_bf16_f32 v%d, v%d, v%d' % (U + 1, X + 2, X + 3))
            a('buffer_store_dwordx2 %s, v%d, s[%d:%d], 0 offen offset:%d%s' % (vr(U, 2), self.VS, R_WS, R_WS + 3, 512 * t, SCS))

    def run(self, a):
        L_bot = a.newlabel('L_bot'); L_done = a.newlabel('L_cdone')
        self.task_setup(a)
        a('s_cmp_eq_u32 s%d, 3' % S_W)
        a('s_cselect_b32 s%d, 0, s%d' % (self.S_SLOT, S_W))
        a('s_cselect_b32 s%d, 0, 1' % self.S_PASS)
        a('s_and_b32 s%d, s%d, 1' % (ST + 4, S_Q))
        a('s_add_u32 s%d, s%d, s%d' % (ST + 4, ST + 4, S_W))
        a('s_cmp_ge_u32 s%d, 3' % (ST + 4))
        a('s_cbranch_scc1 %s' % L_bot)
        c0 = a.vm_issued
        self.task_addr(a)
        self.task(a, TOP)
        a('s_branch %s' % L_done)
        c1 = a.vm_issued
        a.vm_issued = c0
        a.label(L_bot)
        a.flush_hazards()
        self.task_addr(a)
        self.task(a, BOT)
        assert a.vm_issued == c1
        a('s_mov_b32 s%d, 1' % self.S_SLOT)
        a('s_cmp_eq_u32 s%d, 0' % self.S_PASS)
        a('s_mov_b32 s%d, 1' % self.S_PASS)
        a('s_cbranch_scc1 %s' % L_bot)
        a.label(L_done)

def conv_body(a):
    c = Conv()
    c.channels(a)
    c.load_p(a)
    c.load_q(a)
    c.zero_fill(a)
    a('s_waitcnt lgkmcnt(0)')
    a('s_barrier')
    c.build_p(a)
    c.build_q(a)
    a('s_waitcnt lgkmcnt(0)')
    a('s_barrier')
    c.run(a)
    a('s_waitcnt vmcnt(0)')


RED = 81920
YL = 143360
class G2:
    ACC, VL = 16, 60
    HB = [64, 112, 160, 64]
    QR, B2R, GR, B2F, Y, YT = 208, 218, 228, 112, 132, 144

    def load_w2(self, a, lo=0, hi=60):
        a('v_lshlrev_b32 v%d, 4, v1' % self.VL)
        if lo == 0:
            a('s_mul_i32 s%d, s%d, 48' % (101, S_J))
            a('s_mul_i32 s%d, s%d, 12' % (ST, S_W))
            a('s_add_u32 s101, s101, s%d' % ST)
            a('s_mul_i32 s101, s101, 5120')
            a('s_add_u32 s101, s101, 0x%x' % LY.W2T)
        for n in range(lo, hi):
            a('buffer_load_dwordx4 %s, v%d, s[%d:%d], s101 offen offset:%d%s' % (ar(4 * n, 4), self.VL, R_WS, R_WS + 3, 1024 * (n % 4), SCL()))
            if n % 4 == 3:
                a('s_add_u32 s101, s101, 4096')
        self.m_w2 = a.vm_mark()

    def load_h(self, a, its):
        if 0 in its:
            self.m_h = {}
            a('v_lshlrev_b32 v%d, 4, v1' % self.VL)
        a('s_mul_i32 s%d, s%d, 12' % (ST, S_W))
        for it in its:
            a('s_add_u32 s%d, s%d, %d' % (ST + 1, S_W, 1 + it))
            a('s_and_b32 s%d, s%d, 3' % (ST + 1, ST + 1))
            a('s_lshl_b32 s%d, s%d, 2' % (ST + 2, S_Q))
            a('s_add_u32 s%d, s%d, s%d' % (ST + 2, ST + 2, ST + 1))
            a('s_mul_i32 s%d, s%d, 48' % (ST + 2, ST + 2))
            a('s_add_u32 s%d, s%d, s%d' % (ST + 2, ST + 2, ST))
            a('s_lshl_b32 s%d, s%d, 10' % (ST + 2, ST + 2))
            a('s_add_u32 s%d, s%d, 0x%x' % (ST + 2, ST + 2, LY.HF))
            for ks in range(12):
                a('buffer_load_dwordx4 %s, v%d, s[%d:%d], s%d offen offset:%d%s' % (vr(self.HB[it] + 4 * ks, 4), self.VL, R_WS, R_WS + 3, ST + 2, 1024 * (ks % 4), SCL()))
                self.m_h[(it, ks)] = a.vm_mark()
                if ks % 4 == 3 and ks < 11:
                    a('s_add_u32 s%d, s%d, 4096' % (ST + 2, ST + 2))

    def epi_addr(self, a):
        a('v_and_b32 v10, 15, v1')
        a('v_lshrrev_b32 v11, 4, v1')
        a('s_lshl_b32 s%d, s%d, 6' % (ST, S_Q))
        a('s_lshl_b32 s%d, s%d, 4' % (ST + 1, S_W))
        a('s_add_u32 s%d, s%d, s%d' % (ST, ST, ST + 1))
        a('s_mul_i32 s%d, s%d, 160' % (ST + 1, S_J))
        a('v_add_u32 v10, s%d, v10' % ST)
        a('v_lshlrev_b32 v4, 3, v11')
        a('v_add_u32 v4, s%d, v4' % (ST + 1))
        a('v_mul_u32_u24 v3, 1280, v10')
        a('v_add_u32 v3, v3, v4')
        a('v_lshlrev_b32 v5, 2, v10')
        a('v_add_u32 v5, 0x%x, v5' % LY.G)
        a('s_mul_i32 s%d, s%d, %d' % (ST + 1, S_J, 80 * 4096))
        a('s_lshl_b32 s%d, s%d, 1' % (ST, ST))
        a('s_add_u32 s%d, s%d, s%d' % (ST, ST, ST + 1))
        a('s_add_u32 s%d, s%d, 0x%x' % (ST, ST, LY.Y2T))
        a('v_lshrrev_b32 v6, 1, v1')
        a('v_lshlrev_b32 v6, 12, v6')
        a('v_and_b32 v10, 1, v1')
        a('v_lshl_add_u32 v6, v10, 4, v6')
        a('v_add_u32 v6, s%d, v6' % ST)
        a('s_mul_i32 s%d, s%d, 2560' % (ST, S_W))
        a('s_add_u32 s%d, s%d, %d' % (ST, ST, YL))
        a('v_add_u32 v7, s%d, v%d' % (ST, self.VL))
        a('v_lshlrev_b32 v8, 3, v1')
        a('v_add_u32 v8, s%d, v8' % ST)
        for it in range(3):
            a('s_add_u32 s%d, s%d, %d' % (ST, S_W, 1 + it))
            a('s_and_b32 s%d, s%d, 3' % (ST, ST))
            a('s_mul_i32 s%d, s%d, 15360' % (ST, ST))
            a('s_add_u32 s%d, s%d, %d' % (ST, ST, RED + 5120 * it))
            a('v_add_u32 v%d, s%d, v%d' % (12 + it, ST, self.VL))
        a('s_mul_i32 s%d, s%d, 15360' % (ST, S_W))
        if RED:
            a('s_add_u32 s%d, s%d, %d' % (ST, ST, RED))
        a('v_add_u32 v15, s%d, v%d' % (ST, self.VL))

    def epi_loads_inputs(self, a):
        for dt in range(5):
            a('global_load_dwordx2 %s, v4, s[%d:%d] offset:%d' % (vr(self.B2R + 2 * dt, 2), P_B2, P_B2 + 1, 32 * dt))
        for dt in range(5):
            a('buffer_load_dwordx2 %s, v3, s[%d:%d], 0 offen offset:%d' % (vr(self.QR + 2 * dt, 2), R_X, R_X + 3, 32 * dt))
        a('buffer_load_dword v%d, v5, s[%d:%d], 0 offen%s' % (self.GR, R_WS, R_WS + 3, SCL()))
        self.m_in = a.vm_mark()

    def y_loads(self, a):
        Y = self.Y
        a('s_mov_b32 s%d, %d' % (ST, 32 * 4096))
        a('s_mov_b32 s%d, %d' % (ST + 1, 64 * 4096))
        a('buffer_load_dwordx4 %s, v6, s[%d:%d], 0 offen%s' % (vr(Y, 4), R_WS, R_WS + 3, SCL()))
        a('buffer_load_dwordx4 %s, v6, s[%d:%d], s%d offen%s' % (vr(Y + 4, 4), R_WS, R_WS + 3, ST, SCL()))
        a('s_mov_b64 exec, 0xffffffff')
        a('buffer_load_dwordx4 %s, v6, s[%d:%d], s%d offen%s' % (vr(Y + 8, 4), R_WS, R_WS + 3, ST + 1, SCL()))
        a('s_mov_b64 exec, -1')
        self.m_y = a.vm_mark()

    def y_stage(self, a):
        Y = self.Y
        a.wait_vm(self.m_y)
        a('ds_write_b128 v7, %s' % vr(Y, 4))
        a('ds_write_b128 v7, %s offset:1024' % vr(Y + 4, 4))
        a('s_mov_b64 exec, 0xffffffff')
        a('ds_write_b128 v7, %s offset:2048' % vr(Y + 8, 4))
        a('s_mov_b64 exec, -1')
        for dt in range(5):
            a('ds_read_b64_tr_b16 %s, v8 offset:%d' % (vr(self.YT + 2 * dt, 2), 512 * dt))

    def iteration(self, a, it, fill):
        acc0 = self.ACC + 20 * (it % 2)
        fi = 0
        for ks in range(12):
            a.wait_vm(max(self.m_h[(it, ks)], self.m_w2 if (it == 0 and ks == 0) else 0))
            for dt in range(5):
                acc = vr(acc0 + 4 * dt, 4)
                c = acc if ks > 0 else (vr(self.B2F + 4 * dt, 4) if it == 3 else '0')
                a('v_mfma_f32_16x16x32_bf16 %s, %s, %s, %s' % (acc, ar(4 * (5 * ks + dt), 4), vr(self.HB[it] + 4 * ks, 4), c))
                if ks >= 2 and fi < len(fill):
                    a(fill[fi]); fi += 1
        while fi < len(fill):
            a(fill[fi]); fi += 1

    def red_writes(self, it):
        acc0 = self.ACC + 20 * (it % 2)
        return ['ds_write_b128 v%d, %s offset:%d' % (12 + it, vr(acc0 + 4 * dt, 4), 1024 * dt) for dt in range(5)]

    def main(self, a, after0=None, after1=None, after2=None, tsf=None):
        tsf = tsf or (lambda a, i: None)
        self.load_h(a, [0, 1, 2])
        self.epi_addr(a)
        self.epi_loads_inputs(a)
        self.iteration(a, 0, [])
        tsf(a, 19)
        if after0: after0(a)
        self.iteration(a, 1, self.red_writes(0))
        tsf(a, 20)
        if after1: after1(a)
        self.load_h(a, [3])
        self.iteration(a, 2, self.red_writes(1))
        tsf(a, 21)
        a.wait_vm(self.m_in)
        for dt in range(5):
            for d in range(2):
                unpack(a, self.B2F + 4 * dt + 2 * d, self.B2F + 4 * dt + 2 * d + 1, self.B2R + 2 * dt + d)
        if after2: after2(a)
        self.y_loads(a)
        G_, OM = 56, 58
        QF, YF, R = 160, 180, 64
        fl = self.red_writes(2)
        fl.append('v_sub_f32 v%d, 1.0, v%d' % (OM, self.GR))
        fl.append('v_mov_b32 v%d, v%d' % (G_, self.GR))
        fl.append('v_cvt_pk_bf16_f32 v%d, v%d, v%d' % (OM, OM, OM))
        fl.append('v_mov_b32 v%d, v%d' % (G_ + 1, self.GR))
        fl.append('v_lshlrev_b32 v%d, 16, v%d' % (OM, OM))
        for n in range(10):
            fl.append('v_lshlrev_b32 v%d, 16, v%d' % (QF + 2 * n, self.QR + n))
            fl.append('v_and_b32 v%d, 0xffff0000, v%d' % (QF + 2 * n + 1, self.QR + n))
        fl.append('v_mov_b32 v%d, v%d' % (OM + 1, OM))
        for n in range(20):
            fl.append('v_mul_f32 v%d, v%d, v%d' % (QF + n, QF + n, G_))
        self.iteration(a, 3, fl)
        tsf(a, 22)
        self.y_stage(a)
        my = a.lgkm_mark()
        a.wait_lgkm(my - 8)
        a('s_barrier')
        tsf(a, 23)
        for n in range(15):
            a('ds_read_b128 %s, v15 offset:%d' % (vr(R + 4 * n, 4), 1024 * n))
        m0 = a.lgkm_mark()
        a.wait_lgkm(my)
        for n in range(10):
            unpack(a, YF + 2 * n, YF + 2 * n + 1, self.YT + n)
        for n in range(10):
            a('v_pk_mul_f32 %s, %s, %s' % (vr(QF + 2 * n, 2), vr(QF + 2 * n, 2), vr(YF + 2 * n, 2)))
        acc0 = self.ACC + 20
        for sl in range(3):
            a.wait_lgkm(m0 - 10 + 5 * sl)
            for n in range(10):
                a('v_pk_add_f32 %s, %s, %s' % (vr(acc0 + 2 * n, 2), vr(acc0 + 2 * n, 2), vr(R + 20 * sl + 2 * n, 2)))
        for dt in range(5):
            for d in range(2):
                n = 2 * dt + d
                a('v_pk_fma_f32 %s, %s, %s, %s' % (vr(QF + 2 * n, 2), vr(acc0 + 2 * n, 2), vr(OM, 2), vr(QF + 2 * n, 2)))
            for d in range(2):
                n = 2 * dt + d
                a('v_cvt_pk_bf16_f32 v%d, v%d, v%d' % (YF + n, QF + 2 * n, QF + 2 * n + 1))
            a('buffer_store_dwordx2 %s, v3, s[%d:%d], 0 offen offset:%d' % (vr(YF + 2 * dt, 2), R_OUT, R_OUT + 3, 32 * dt))

def g2_body(a):
    g = G2()
    g.load_w2(a)
    g.main(a)


TOK = 10
V_TOK, V_POLL, V_PA, V_TS = 244, 246, 248, 251
PROF = False
def ts(a, idx, real=False):
    if not PROF:
        return
    a('%s s[12:13]' % ('s_memrealtime' if real else 's_memtime'))
    a('s_waitcnt lgkmcnt(0)')
    a('v_writelane_b32 v%d, s12, %d' % (V_TS, idx))

def ts_flush(a):
    if not PROF:
        return
    a('s_lshl_b32 s12, s2, 2')
    a('s_add_u32 s12, s12, s%d' % S_W)
    a('s_lshl_b32 s12, s12, 7')
    a('s_add_u32 s12, s12, 0x%x' % LY.TS)
    a('v_lshlrev_b32 v2, 2, v1')
    a('s_mov_b64 exec, 0xffffffff')
    a('buffer_store_dword v%d, v2, s[%d:%d], s12 offen' % (V_TS, R_WS, R_WS + 3))
    a('s_mov_b64 exec, -1')

SPIN_MAX = 20000
def token_publish(a):
    L = a.newlabel('L_tokp')
    a('s_cmp_lg_u32 s2, 0')
    a('s_cbranch_scc1 %s' % L)
    a('s_cmp_lg_u32 s%d, 0' % S_W)
    a('s_cbranch_scc1 %s' % L)
    a('s_memrealtime s[12:13]')
    a('s_waitcnt lgkmcnt(0)')
    a('s_or_b32 s12, s12, 1')
    a('v_mov_b32 v2, s12')
    a('v_mov_b32 v3, s13')
    a('v_mov_b32 v4, 0')
    c = a.vm_issued
    a('s_mov_b64 exec, 1')
    a('global_store_dwordx2 v4, v[2:3], s[%d:%d] sc0 sc1' % (P_DBG, P_DBG + 1))
    a('s_mov_b64 exec, -1')
    a.vm_issued = c
    a.label(L)

def token_load(a):
    a('v_mov_b32 v%d, 0' % V_PA)
    a('global_load_dwordx2 %s, v%d, s[%d:%d] sc0 sc1' % (vr(V_TOK, 2), V_PA, P_DBG, P_DBG + 1))
    return a.vm_mark()

def token_check(a, mark):
    L = a.newlabel('L_tok'); Lok = a.newlabel('L_tokok')
    a.wait_vm(mark)
    a('s_mov_b32 s14, %d' % SPIN_MAX)
    a.label(L)
    a('v_readfirstlane_b32 s%d, v%d' % (TOK, V_TOK))
    a('v_readfirstlane_b32 s%d, v%d' % (TOK + 1, V_TOK + 1))
    a('s_cmp_lg_u32 s%d, 0' % TOK)
    a('s_cbranch_scc1 %s' % Lok)
    a('s_sub_u32 s14, s14, 1')
    a('s_cmp_eq_u32 s14, 0')
    a('s_cbranch_scc1 %s' % Lok)
    a('s_sleep 2')
    c = a.vm_issued
    a('global_load_dwordx2 %s, v%d, s[%d:%d] sc0 sc1' % (vr(V_TOK, 2), V_PA, P_DBG, P_DBG + 1))
    a('s_waitcnt vmcnt(0)')
    a.vm_issued = c
    a('s_branch %s' % L)
    a.label(Lok)

def flag_store(a, s_idx_expr):
    L = a.newlabel('L_fs')
    a('s_cmp_lg_u32 s%d, 0' % S_W)
    a('s_cbranch_scc1 %s' % L)
    s_idx_expr(a)
    a('v_mov_b32 v%d, s%d' % (V_TOK, TOK))
    a('v_mov_b32 v%d, s%d' % (V_TOK + 1, TOK + 1))
    a('v_mov_b32 v%d, s12' % (V_TOK - 1))
    c = a.vm_issued
    a('s_mov_b64 exec, 1')
    a('buffer_store_dwordx2 %s, v%d, s[%d:%d], 0 offen sc0 sc1' % (vr(V_TOK, 2), V_TOK - 1, R_WS, R_WS + 3))
    a('s_mov_b64 exec, -1')
    a.vm_issued = c
    a.label(L)

def poll_issue(a, base_expr, n):
    base_expr(a)
    a('v_and_b32 v%d, %d, v1' % (V_PA, n - 1))
    a('v_lshlrev_b32 v%d, 3, v%d' % (V_PA, V_PA))
    a('v_add_u32 v%d, s12, v%d' % (V_PA, V_PA))
    a('buffer_load_dwordx2 %s, v%d, s[%d:%d], 0 offen sc0 sc1' % (vr(V_POLL, 2), V_PA, R_WS, R_WS + 3))
    return a.vm_mark()

def poll_check(a, mark):
    L = a.newlabel('L_poll'); Lok = a.newlabel('L_pollok')
    a.wait_vm(mark)
    a('s_mov_b32 s14, %d' % SPIN_MAX)
    a.label(L)
    a('v_cmp_eq_u64 vcc, s[%d:%d], %s' % (TOK, TOK + 1, vr(V_POLL, 2)))
    a('s_nop 0')
    a('s_cmp_eq_u64 vcc, -1')
    a('s_cbranch_scc1 %s' % Lok)
    a('s_sub_u32 s14, s14, 1')
    a('s_cmp_eq_u32 s14, 0')
    a('s_cbranch_scc1 %s' % Lok)
    a('s_sleep 1')
    c = a.vm_issued
    a('buffer_load_dwordx2 %s, v%d, s[%d:%d], 0 offen sc0 sc1' % (vr(V_POLL, 2), V_PA, R_WS, R_WS + 3))
    a('s_waitcnt vmcnt(0)')
    a.vm_issued = c
    a('s_branch %s' % L)
    a.label(Lok)

F1, F2, F3 = LY.FLAGS, LY.FLAGS + 4096, LY.FLAGS + 8192
def fbase_j(F):
    def f(a):
        a('s_lshl_b32 s12, s%d, 8' % S_J)
        a('s_add_u32 s12, s12, 0x%x' % F)
    return f
def fown_jq(F):
    def f(a):
        fbase_j(F)(a)
        a('s_lshl_b32 s13, s%d, 3' % S_Q)
        a('s_add_u32 s12, s12, s13')
    return f
def fown_g1(a):
    a('s_lshl_b32 s12, s%d, 7' % S_R)
    a('s_lshl_b32 s13, s%d, 3' % S_CB)
    a('s_add_u32 s12, s12, s13')
    a('s_add_u32 s12, s12, 0x%x' % F2)
def fbase_g2(a):
    a('s_lshr_b32 s12, s%d, 1' % S_Q)
    a('s_lshl_b32 s12, s12, 7')
    a('s_add_u32 s12, s12, 0x%x' % F2)

CODE_KB = 24
def code_prefetch(a, start_label):
    a('s_getpc_b64 s[12:13]')
    a('v_lshlrev_b32 v2, 4, v0')
    a('v_mov_b32 v3, s13')
    a('v_add_co_u32 v2, vcc, s12, v2')
    a('v_addc_co_u32 v3, vcc, 0, v3, vcc')
    for i in range(CODE_KB // 4):
        a('global_load_dwordx4 v[252:255], v[2:3], off')
        if i < CODE_KB // 4 - 1:
            a('v_add_co_u32 v2, vcc, 0x1000, v2')
            a('v_addc_co_u32 v3, vcc, 0, v3, vcc')

OPT = dict(early_dma=5, f1_stage=4, w2_split=28)
def fused_body(a):
    global RED, YL
    p = Prep(); g = G1(); c = Conv(); h = G2()
    if PROF:
        a('v_mov_b32 v%d, 0' % V_TS)
    ts(a, 30, True)
    ts(a, 0)
    token_publish(a)
    p.loads(a)
    g.bias_load(a)
    g.setup(a)
    for s_ in range(OPT['early_dma']):
        g.dma(a, s_)
    m_tok = token_load(a)
    ts(a, 1)
    p.compute(a)
    ts(a, 2)
    for s_ in range(OPT['early_dma'], 5):
        g.dma(a, s_)
    c.channels(a)
    c.load_p(a)
    g.setup2(a)
    g.unpack_bias(a)
    st = {}
    def pub_f1(a):
        token_check(a, m_tok)
        flag_store(a, fown_jq(F1))
    def issue_f1(a):
        st['f1'] = poll_issue(a, fbase_j(F1), 32)
    pre = {OPT['f1_stage']: p.m_st}
    post = {OPT['f1_stage']: pub_f1, 7: c.zero_fill, 8: c.build_p}
    mid = {6: issue_f1}
    if PROF:
        for i in (0, 2, 4, 6, 9):
            old = mid.get(i)
            mid[i] = (lambda a, i=i, old=old: (old(a) if old else None, ts(a, 3 + i)))
    g.main(a, pre, post, mid)
    ts(a, 13)
    poll_check(a, st['f1'])
    ts(a, 14)
    c.load_q(a)
    h.load_w2(a, 0, OPT['w2_split'])
    g.epilogue(a)
    m_hst = a.vm_mark()
    ts(a, 15)
    h.load_w2(a, OPT['w2_split'], 60)
    c.build_q(a)
    a('s_waitcnt lgkmcnt(0)')
    a.wait_vm(m_hst)
    a('s_barrier')
    flag_store(a, fown_g1)
    ts(a, 16)
    def issue_f2(a):
        st['f2'] = poll_issue(a, fbase_g2, 16)
    c.hook = (5, issue_f2)
    c.run(a)
    m_yst = a.vm_mark()
    ts(a, 17)
    poll_check(a, st['f2'])
    ts(a, 18)
    def pub_f3(a):
        a.wait_vm(m_yst)
        a('s_barrier')
        flag_store(a, fown_jq(F3))
    def issue_f3(a):
        st['f3'] = poll_issue(a, fbase_j(F3), 32)
    def chk_f3(a):
        poll_check(a, st['f3'])
    h.main(a, after0=pub_f3, after1=issue_f3, after2=chk_f3, tsf=ts)
    ts(a, 24)
    ts(a, 31, True)
    ts_flush(a)

def build_fused(path):
    name = NAME + '_kernel'
    s = HEADER
    s += '; @launch grid=(256,1,1) block=(256,1,1) lds=163840\n'
    s += '.amdgcn_target "amdgcn-amd-amdhsa--gfx950"\n'
    s += kernel_text(name, fused_body, total=512, prefetch=True)
    open(path, 'w').write(s)

def kernel_text(name, body, nv=256, acc=256, total=None, prefetch=False):
    a = Asm()
    end = 'END_' + name
    prologue(a, end, prefetch)
    body(a)
    a.label(end)
    a('s_endpgm')
    if prefetch:
        a.raw('.p2align 12\n.fill 1024, 4, 0xbf800000')
    t = '.text\n.globl %s\n.p2align 8\n.type %s,@function\n%s:\n' % (name, name, name) + a.text()
    t += '.section .rodata,"a"\n.p2align 6\n.amdhsa_kernel %s\n' % name
    t += '  .amdhsa_next_free_vgpr %d\n  .amdhsa_next_free_sgpr 102\n  .amdhsa_accum_offset %d\n' % (total or nv, acc)
    t += '  .amdhsa_group_segment_fixed_size 0\n  .amdhsa_kernarg_size 120\n  .amdhsa_user_sgpr_count 2\n'
    t += '  .amdhsa_user_sgpr_kernarg_segment_ptr 1\n  .amdhsa_system_sgpr_workgroup_id_x 1\n.end_amdhsa_kernel\n'
    return t

def build_multi(kernels, path):
    s = HEADER
    for name, body, lds, kw in kernels:
        s += '; @launch kernel=%s grid=(256,1,1) block=(256,1,1) lds=%d\n' % (name, lds)
    s += '.amdgcn_target "amdgcn-amd-amdhsa--gfx950"\n'
    for name, body, lds, kw in kernels:
        s += kernel_text(name, body, **kw)
    open(path, 'w').write(s)

if __name__ == '__main__':
    for kv in sys.argv[1:]:
        k_, v_ = kv.split('=')
        OPT[k_] = int(v_) if v_.lstrip('-').isdigit() else v_.replace('_', ' ')
    ks = [('prep_kernel', prep, 20480, {}), ('g1_kernel', g1_body, 163840, {}), ('conv_kernel', conv_body, 3 * CS, {}), ('g2_kernel', g2_body, 163840, dict(total=512))]
    build_multi(ks, 'k_multi.s')
    build_fused('k_fused.s')
    PROF = True
    build_fused('k_fused_prof.s')
```

```python
import sys, struct
from asmlib import *
import layout as LY

NAME = 'gated_mix__ssm_conv_h3__dense_activation_gelu__prompt'
HEADER = open('cdna_kernels/%s.s.ref' % NAME).read().split('; Override launch')[0]
OPT = dict(nt=1, scl=' sc1', lead=3, prep_stage=2, f1_pub=4, f1_issue=6, f1_chk=8, rot=1, arr=1, f2_issue=4, f2_chk=6, w2_g1=8, w2_gelu=18)

S_XCD, S_IDX, S_Q, S_J, S_R, S_CB, S_W = 3, 4, 5, 6, 7, 8, 9
TOK = 10
P_Q, P_K, P_V, P_SK, P_HK, P_D, P_BX, P_W1, P_B1, P_W2, P_B2, P_GW, P_OUT, P_DBG, P_WS = range(16, 46, 2)
R_X, R_K, R_V, R_W1, R_W2, R_WS, R_OUT, R_HK = range(48, 80, 4)
ST = 80
NB_SD = 2048 * 1280
SCS = ' sc1'
def NT():
    return ' nt' if OPT.get('nt', 0) else ''
def SCL():
    return OPT.get('scl', '')
V_FA, V_TOK, V_POLL, V_PA, V_TS = 243, 244, 246, 248, 251
PROF = False

def f32hex(x):
    return '0x%08x' % struct.unpack('<I', struct.pack('<f', x))[0]
def srd(a, r, p, nbytes):
    a('s_mov_b32 s%d, s%d' % (r, p))
    a('s_and_b32 s%d, s%d, 0xffff' % (r + 1, p + 1))
    a('s_mov_b32 s%d, 0x%x' % (r + 2, nbytes))
    a('s_mov_b32 s%d, 0x20000' % (r + 3))
def scsel(a, dst, vt, vf):
    a('s_mov_b32 s%d, %d' % (dst, vf))
    a('s_cmov_b32 s%d, %d' % (dst, vt))
def unpack(a, dst_lo, dst_hi, src):
    a('v_lshlrev_b32 v%d, 16, v%d' % (dst_lo, src))
    a('v_and_b32 v%d, 0xffff0000, v%d' % (dst_hi, src))
def do(a, x):
    if callable(x): x(a)
    else: a(x)

class BG:
    def __init__(self, items=None):
        self.items = list(items or []); self.i = 0
    def add(self, items): self.items += items
    def left(self): return len(self.items) - self.i
    def emit(self, a, n=1):
        for _ in range(n):
            if self.i < len(self.items):
                do(a, self.items[self.i]); self.i += 1
    def drain(self, a): self.emit(a, self.left())
    def save(self): return self.i
    def restore(self, i): self.i = i

CODE_PIECES = 7
def prologue(a, end_label):
    a('s_cmp_ge_u32 s2, 256')
    a('s_cbranch_scc1 %s' % end_label)
    a('s_load_dwordx16 s[16:31], s[0:1], 0')
    a('s_load_dwordx8 s[32:39], s[0:1], 64')
    a('s_load_dwordx4 s[40:43], s[0:1], 96')
    a('s_load_dwordx2 s[44:45], s[0:1], 112')
    a('s_and_b32 s%d, s2, 7' % S_XCD)
    a('s_lshr_b32 s%d, s2, 3' % S_IDX)
    a('s_getpc_b64 s[12:13]')
    a('s_and_b32 s14, s%d, 7' % S_IDX)
    a('s_min_u32 s14, s14, %d' % (CODE_PIECES - 1))
    a('s_lshl_b32 s14, s14, 12')
    a('s_add_u32 s12, s12, s14')
    a('s_addc_u32 s13, s13, 0')
    a('v_lshlrev_b32 v2, 4, v0')
    a('v_mov_b32 v3, s13')
    a('v_add_co_u32 v2, vcc, s12, v2')
    a('v_addc_co_u32 v3, vcc, 0, v3, vcc')
    a('global_load_dwordx4 v[252:255], v[2:3], off')
    a('v_lshrrev_b32 v2, 6, v0')
    a('v_and_b32 v1, 63, v0')
    a('s_and_b32 s%d, s%d, 3' % (S_Q, S_IDX))
    a('v_readfirstlane_b32 s%d, v2' % S_W)
    a('s_lshl_b32 s%d, s%d, 2' % (ST, S_XCD))
    a('s_lshr_b32 s%d, s%d, 2' % (S_J, S_IDX))
    if OPT['arr']:
        a('s_lshr_b32 s%d, s%d, 1' % (S_R, S_XCD))
        a('s_lshl_b32 s%d, s%d, 2' % (S_R, S_R))
        a('s_add_u32 s%d, s%d, s%d' % (S_R, S_R, S_Q))
        a('s_and_b32 s%d, s%d, 1' % (S_CB, S_XCD))
        a('s_lshl_b32 s%d, s%d, 3' % (S_CB, S_CB))
        a('s_add_u32 s%d, s%d, s%d' % (S_CB, S_CB, S_J))
    else:
        a('s_and_b32 s%d, s%d, 1' % (S_R, S_IDX))
        a('s_lshl_b32 s%d, s%d, 1' % (ST + 1, S_XCD))
        a('s_add_u32 s%d, s%d, s%d' % (S_R, S_R, ST + 1))
        a('s_lshr_b32 s%d, s%d, 1' % (S_CB, S_IDX))
    a('s_mul_i32 s15, s%d, 3' % S_Q)
    a('s_add_u32 s15, s15, s%d' % S_J)
    a('s_sub_u32 s14, s15, 10')
    a('s_cmp_ge_u32 s15, 10')
    a('s_cselect_b32 s15, s14, s15')
    if not OPT['rot']:
        a('s_mov_b32 s15, 0')
    a('s_add_u32 s%d, s%d, s%d' % (S_Q, S_Q, ST))

def srds(a):
    a('s_waitcnt lgkmcnt(0)')
    srd(a, R_X, P_Q, NB_SD)
    srd(a, R_W1, P_W1, 640 * 3072)
def srds2(a):
    srd(a, R_K, P_K, NB_SD)
    srd(a, R_V, P_V, NB_SD)
    srd(a, R_W2, P_W2, 1536 * 1280)
    srd(a, R_WS, P_WS, 0x10000000)
    srd(a, R_OUT, P_OUT, NB_SD)

class Prep:
    LKV, LW2 = 0, 10240
    KR, VR_, SKR, T = 120, 148, 164, 180

    def loads(self, a):
        L_gate = a.newlabel('L_gate'); L_join = a.newlabel('L_pl')
        KR, VR_, SKR = self.KR, self.VR_, self.SKR
        a('s_cmp_eq_u32 s%d, 3' % S_W)
        a('s_cbranch_scc1 %s' % L_gate)
        a('v_mul_u32_u24 v12, 6554, v0')
        a('v_lshrrev_b32 v12, 16, v12')
        a('v_mul_u32_u24 v13, 10, v12')
        a('v_sub_u32 v13, v0, v13')
        a('s_mul_i32 s%d, s%d, %d' % (ST, S_Q, 64 * 1280))
        a('s_mul_i32 s%d, s%d, 160' % (ST + 1, S_J))
        a('s_add_u32 s%d, s%d, s%d' % (ST, ST, ST + 1))
        a('v_mul_u32_u24 v4, 5120, v12')
        a('v_lshl_add_u32 v4, v13, 4, v4')
        a('v_add_u32 v4, s%d, v4' % ST)
        a('v_subrev_u32 v5, 3840, v4')
        a('s_mul_i32 s%d, s%d, 640' % (ST + 1, S_J))
        a('v_lshlrev_b32 v6, 6, v13')
        a('v_add_u32 v6, s%d, v6' % (ST + 1))
        a('v_cmp_gt_u32 vcc, 160, v0')
        a('s_and_saveexec_b64 s[%d:%d], vcc' % (ST + 2, ST + 3))
        for r in range(4):
            a('buffer_load_dwordx4 %s, v4, s[%d:%d], 0 offen offset:%d%s' % (vr(KR + 12 + 4 * r, 4), R_K, R_K + 3, 1280 * r, NT()))
        for r in range(4):
            a('buffer_load_dwordx4 %s, v4, s[%d:%d], 0 offen offset:%d%s' % (vr(VR_ + 4 * r, 4), R_V, R_V + 3, 1280 * r, NT()))
        for r in range(4):
            a('buffer_load_dwordx4 %s, v4, s[%d:%d], 0 offen offset:%d%s' % (ar(4 * r, 4), R_W2, R_W2 + 3, 1280 * r, NT()))
        for i in range(4):
            a('global_load_dwordx4 %s, v6, s[%d:%d] offset:%d' % (vr(SKR + 4 * i, 4), P_SK, P_SK + 1, 16 * i))
        for r in range(3):
            a('buffer_load_dwordx4 %s, v5, s[%d:%d], 0 offen offset:%d%s' % (vr(KR + 4 * r, 4), R_K, R_K + 3, 1280 * r, NT()))
        a('s_mov_b64 exec, s[%d:%d]' % (ST + 2, ST + 3))
        a('s_branch %s' % L_join)
        endA = a.vm_issued
        a.label(L_gate)
        a('v_lshrrev_b32 v12, 3, v1')
        a('v_and_b32 v13, 7, v1')
        a('s_lshl_b32 s%d, s%d, 7' % (ST, S_R))
        a('s_lshl_b32 s%d, s%d, 3' % (ST + 1, S_CB))
        a('s_add_u32 s%d, s%d, s%d' % (ST, ST, ST + 1))
        a('v_add_u32 v12, s%d, v12' % ST)
        a('v_mul_u32_u24 v4, 1280, v12')
        a('v_lshlrev_b32 v5, 4, v13')
        a('v_add_u32 v4, v4, v5')
        for n in range(10):
            a('buffer_load_dwordx4 %s, v4, s[%d:%d], 0 offen offset:%d' % (vr(120 + 4 * n, 4), R_X, R_X + 3, 128 * n))
            a('global_load_dwordx4 %s, v5, s[%d:%d] offset:%d' % (ar(16 + 4 * n, 4), P_GW, P_GW + 1, 128 * n))
        a.label(L_join)
        a.vm_issued = endA
        self.m_all = endA

    def compute(self, a):
        L_gate = a.newlabel('L_gate'); L_join = a.newlabel('L_prepjoin')
        KR, VR_, SKR, T = self.KR, self.VR_, self.SKR, self.T
        LKV, LW2 = self.LKV, self.LW2
        a.wait_vm(self.m_all)
        a('s_cmp_eq_u32 s%d, 3' % S_W)
        a('s_cbranch_scc1 %s' % L_gate)
        a('v_mul_u32_u24 v8, 640, v12')
        a('v_lshlrev_b32 v9, 4, v13')
        a('v_sub_u32 v7, v9, v8')
        a('v_add_u32 v7, %d, v7' % (LKV + 60 * 160))
        a('v_add_u32 v8, v8, v9')
        a('v_add_u32 v8, %d, v8' % LW2)
        a('v_cmp_gt_u32 vcc, 160, v0')
        a('s_and_saveexec_b64 s[%d:%d], vcc' % (ST + 2, ST + 3))
        for r in range(4):
            a('ds_write_b128 v8, %s offset:%d' % (ar(4 * r, 4), r * 160))
        KF, SF, VF, AC = T, T + 14, T + 22, T + 30
        for d in range(4):
            for r in range(7):
                unpack(a, KF + 2 * r, KF + 2 * r + 1, KR + 4 * r + d)
            for h in range(2):
                unpack(a, SF + 0 + h, SF + 2 + h, SKR + 2 * (2 * d + h))
                unpack(a, SF + 4 + h, SF + 6 + h, SKR + 2 * (2 * d + h) + 1)
            for r in range(4):
                unpack(a, VF + 2 * r, VF + 2 * r + 1, VR_ + 4 * r + d)
            for j in range(4):
                for r in range(4):
                    acc = vr(AC + 2 * r, 2); kf = vr(KF + 2 * (r + 3 - j), 2); sf = vr(SF + 2 * j, 2)
                    if j == 0: a('v_pk_mul_f32 %s, %s, %s' % (acc, kf, sf))
                    else: a('v_pk_fma_f32 %s, %s, %s, %s' % (acc, kf, sf, acc))
            for r in range(4):
                a('v_pk_mul_f32 %s, %s, %s' % (vr(AC + 2 * r, 2), vr(AC + 2 * r, 2), vr(VF + 2 * r, 2)))
            for r in range(4):
                a('v_cvt_pk_bf16_f32 v%d, v%d, v%d' % (VR_ + 4 * r + d, AC + 2 * r, AC + 2 * r + 1))
        for r in range(4):
            a('ds_write_b128 v7, %s offset:%d' % (vr(VR_ + 4 * r, 4), (3 - r) * 160))
        a('s_mov_b64 exec, s[%d:%d]' % (ST + 2, ST + 3))
        a('s_branch %s' % L_join)
        cA = a.vm_issued
        a.label(L_gate)
        a('v_mov_b32 v10, 0')
        a('v_mov_b32 v11, 0')
        for n in range(40):
            a('v_accvgpr_read_b32 v%d, a%d' % (T + n, 16 + n))
        for n in range(40):
            acc = 10 + (n & 1)
            a('v_dot2_f32_bf16 v%d, v%d, v%d, v%d' % (acc, 120 + n, T + n, acc))
        a('s_nop 3')
        a('v_add_f32 v10, v10, v11')
        a('v_add_f32_dpp v10, v10, v10 quad_perm:[1,0,3,2] row_mask:0xf bank_mask:0xf')
        a('v_add_f32_dpp v10, v10, v10 quad_perm:[2,3,0,1] row_mask:0xf bank_mask:0xf')
        a('v_add_f32_dpp v10, v10, v10 row_half_mirror row_mask:0xf bank_mask:0xf')
        a('v_cvt_pk_bf16_f32 v10, v10, v10')
        a('v_lshlrev_b32 v10, 16, v10')
        a('v_mul_f32 v10, 0xbfb8aa3b, v10')
        a('v_exp_f32 v10, v10')
        a('v_add_f32 v10, 1.0, v10')
        a('v_rcp_f32 v10, v10')
        a('v_cvt_pk_bf16_f32 v10, v10, v10')
        a('v_lshlrev_b32 v10, 16, v10')
        a('v_lshlrev_b32 v4, 2, v12')
        a('v_add_u32 v4, 0x%x, v4' % LY.G)
        a('v_cmp_eq_u32 vcc, 0, v13')
        a('s_and_saveexec_b64 s[%d:%d], vcc' % (ST + 2, ST + 3))
        a('buffer_store_dword v10, v4, s[%d:%d], 0 offen%s' % (R_WS, R_WS + 3, SCS))
        a('s_mov_b64 exec, s[%d:%d]' % (ST + 2, ST + 3))
        a.label(L_join)
        a.vm_issued = cA

    def transpose(self, a):
        L_skip = a.newlabel('L_prepskip')
        LKV, LW2 = self.LKV, self.LW2
        O = self.T
        a('v_and_b32 v2, 15, v1')
        a('v_lshrrev_b32 v3, 4, v1')
        a('v_lshrrev_b32 v4, 2, v2')
        a('v_and_b32 v5, 3, v1')
        a('s_and_b32 s%d, s%d, 1' % (ST, S_W))
        a('s_cmp_ge_u32 s%d, 2' % S_W)
        a('s_cselect_b32 s%d, 2, 3' % (ST + 1))
        scsel(a, ST + 2, 2560, 640)
        scsel(a, ST + 3, LW2, LKV)
        scsel(a, ST + 4, 1024, 65536)
        a('s_mul_i32 s%d, s%d, %d' % (ST + 5, ST, 32 * 160))
        a('s_add_u32 s%d, s%d, s%d' % (ST + 3, ST + 3, ST + 5))
        a('v_lshlrev_b32 v6, s%d, v3' % (ST + 1))
        a('v_add_u32 v6, v6, v4')
        a('v_mul_u32_u24 v6, 160, v6')
        a('v_lshl_add_u32 v6, v5, 3, v6')
        a('v_add_u32 v6, s%d, v6' % (ST + 3))
        a('v_add_u32 v7, s%d, v6' % (ST + 2))
        for u in range(5):
            a('ds_read_b64_tr_b16 %s, v6 offset:%d' % (vr(O + 4 * u, 2), 32 * u))
            a('ds_read_b64_tr_b16 %s, v7 offset:%d' % (vr(O + 2 + 4 * u, 2), 32 * u))
        m = a.lgkm_mark()
        a('s_mul_i32 s%d, s%d, %d' % (ST + 5, S_J, 80 * 4096))
        a('s_lshl_b32 s%d, s%d, 7' % (ST + 6, S_Q))
        a('s_sub_u32 s%d, s%d, s%d' % (ST + 5, ST + 5, ST + 6))
        a('s_lshl_b32 s%d, s%d, 6' % (ST + 6, ST))
        a('s_add_u32 s%d, s%d, s%d' % (ST + 5, ST + 5, ST + 6))
        a('s_add_u32 s%d, s%d, %d' % (ST + 5, ST + 5, LY.KVT + 2 * 1984))
        a('v_lshlrev_b32 v8, 12, v2')
        a('v_lshl_add_u32 v8, v3, 4, v8')
        a('s_mul_i32 s%d, s%d, 48' % (ST + 6, S_J))
        a('s_lshl_b32 s%d, s%d, 1' % (ST + 7, S_Q))
        a('s_add_u32 s%d, s%d, s%d' % (ST + 6, ST + 6, ST + 7))
        a('s_add_u32 s%d, s%d, s%d' % (ST + 6, ST + 6, ST))
        a('s_mul_i32 s%d, s%d, 5120' % (ST + 6, ST + 6))
        a('s_add_u32 s%d, s%d, 0x%x' % (ST + 6, ST + 6, LY.W2T))
        a('v_lshlrev_b32 v9, 4, v1')
        a('s_cmp_ge_u32 s%d, 2' % S_W)
        a('s_cselect_b32 s%d, s%d, s%d' % (ST + 5, ST + 6, ST + 5))
        a('s_cselect_b64 vcc, -1, 0')
        a('v_cndmask_b32 v8, v8, v9, vcc')
        a('s_cselect_b32 s%d, s%d, 0' % (ST + 7, S_Q))
        a('s_cmp_ge_u32 s%d, 24' % (ST + 7))
        a.wait_lgkm(m)
        a('s_cbranch_scc1 %s' % L_skip)
        cB = a.vm_issued
        for u in range(5):
            a('buffer_store_dwordx4 %s, v8, s[%d:%d], s%d offen%s' % (vr(O + 4 * u, 4), R_WS, R_WS + 3, ST + 5, SCS))
            if u < 4:
                a('s_add_u32 s%d, s%d, s%d' % (ST + 5, ST + 5, ST + 4))
        a.label(L_skip)
        a('s_nop 1')
        a.vm_issued = cB
        self.m_st = cB

RB = 20480
SLOT = 28672
NSLOT = 5
class G1:
    VX, VW, VB = 16, 20, 24
    ACC, BIAS, BRAW = 36, 84, 108
    AF, BF = 192, 240
    SX, SWO = 96, 97

    def setup(self, a):
        a('v_lshrrev_b32 v2, 3, v1')
        a('v_and_b32 v3, 7, v1')
        a('s_lshl_b32 s%d, s%d, 7' % (ST, S_R))
        a('s_lshl_b32 s%d, s%d, 5' % (ST + 1, S_W))
        a('s_add_u32 s%d, s%d, s%d' % (ST, ST, ST + 1))
        a('s_mul_i32 s%d, s%d, 1280' % (ST, ST))
        for i in range(2):
            a('v_add_u32 v4, %d, v2' % (8 * i))
            a('v_bfe_u32 v5, v4, 1, 3')
            a('v_xor_b32 v5, v5, v3')
            a('v_mul_u32_u24 v4, 1280, v4')
            a('v_lshl_add_u32 v4, v5, 4, v4')
            a('v_add_u32 v4, s%d, v4' % ST)
            if i == 0: a('v_mov_b32 v%d, v4' % (self.VX))
            else: a('v_subrev_u32 v%d, %d, v4' % (self.VX + i, 1024 * i))
            a('v_add_u32 v%d, %d, v4' % (self.VX + i + 2, 16 * 1280 - 1024 * (i + 2)))
        a('s_mul_i32 s%d, s%d, %d' % (ST, S_W, 16 * 3072))
        a('s_mul_i32 s%d, s%d, 192' % (ST + 1, S_CB))
        a('s_add_u32 s%d, s%d, s%d' % (ST, ST, ST + 1))
        for i in range(3):
            a('v_add_u32 v4, %d, v1' % (64 * i))
            a('v_mul_u32_u24 v5, 5462, v4')
            a('v_lshrrev_b32 v5, 16, v5')
            a('v_mul_u32_u24 v6, 12, v5')
            a('v_sub_u32 v6, v4, v6')
            a('v_bfe_u32 v7, v5, 3, 1')
            a('v_lshlrev_b32 v7, 1, v7')
            a('v_sub_u32 v6, v6, v7')
            a('v_add_u32 v7, 12, v6')
            a('v_min_u32 v6, v6, v7')
            a('v_mul_u32_u24 v5, 3072, v5')
            a('v_lshl_add_u32 v5, v6, 4, v5')
            a('v_add_u32 v5, s%d, v5' % ST)
            a('v_subrev_u32 v%d, %d, v5' % (self.VW + i, 1024 * i))
        a('s_lshl_b32 s%d, s15, 7' % self.SX)
        a('s_mul_i32 s%d, s15, %d' % (self.SWO, 64 * 3072))
        a('s_lshl_b32 s98, s%d, 12' % S_W)
        a('s_mul_i32 s99, s%d, 3072' % S_W)
        a('s_add_u32 s99, s99, 16384')
        self.marks = {}

    def dma_items(self, stage):
        slot = RB + SLOT * (stage % NSLOT)
        L = []
        def first(a):
            a('s_add_u32 m0, s98, %d' % slot)
            a('buffer_load_dwordx4 v%d, s[%d:%d], s%d offen lds' % (self.VX, R_X, R_X + 3, self.SX))
        L.append(first)
        for i in range(1, 4):
            L.append('buffer_load_dwordx4 v%d, s[%d:%d], s%d offen offset:%d lds' % (self.VX + i, R_X, R_X + 3, self.SX, 1024 * i))
        def mid(a):
            a('s_add_u32 m0, s99, %d' % slot)
            a('s_add_u32 s%d, s%d, 128' % (self.SX, self.SX))
            a('buffer_load_dwordx4 v%d, s[%d:%d], s%d offen lds' % (self.VW, R_W1, R_W1 + 3, self.SWO))
        L.append(mid)
        L.append('buffer_load_dwordx4 v%d, s[%d:%d], s%d offen offset:1024 lds' % (self.VW + 1, R_W1, R_W1 + 3, self.SWO))
        def last(a):
            a('buffer_load_dwordx4 v%d, s[%d:%d], s%d offen offset:2048 lds' % (self.VW + 2, R_W1, R_W1 + 3, self.SWO))
            self.marks[stage] = a.vm_mark()
            a('s_add_u32 s%d, s%d, %d' % (self.SWO, self.SWO, 64 * 3072))
            a('s_cmp_eq_u32 s%d, 1280' % self.SX)
            a('s_cmov_b32 s%d, 0' % self.SX)
            a('s_cmov_b32 s%d, 0' % self.SWO)
        L.append(last)
        return L

    def dma(self, a, stage):
        for x in self.dma_items(stage):
            do(a, x)

    def bias_load(self, a):
        a('v_lshrrev_b32 v3, 4, v1')
        a('s_mul_i32 s%d, s%d, 192' % (ST, S_CB))
        a('v_lshlrev_b32 v4, 3, v3')
        a('v_add_u32 v4, s%d, v4' % ST)
        for ft in range(6):
            a('global_load_dwordx2 %s, v4, s[%d:%d] offset:%d' % (vr(self.BRAW + 2 * ft, 2), P_B1, P_B1 + 1, 32 * ft))
        self.m_bias = a.vm_mark()

    def setup2(self, a):
        a('v_lshrrev_b32 v3, 4, v1')
        a('v_and_b32 v2, 15, v1')
        a('v_lshrrev_b32 v4, 1, v2')
        a('v_xor_b32 v4, v4, v3')
        a('v_lshlrev_b32 v4, 4, v4')
        a('v_lshl_add_u32 v4, v2, 7, v4')
        a('v_add_u32 v4, s98, v4')
        a('v_xor_b32 v5, 64, v4')
        a('v_lshrrev_b32 v6, 2, v2')
        a('v_lshl_add_u32 v6, v3, 3, v6')
        a('v_mul_u32_u24 v6, 192, v6')
        a('v_and_b32 v7, 3, v1')
        a('v_lshl_add_u32 v6, v7, 3, v6')
        a('v_and_b32 v7, 1, v3')
        a('v_lshl_add_u32 v6, v7, 5, v6')
        a('v_mul_u32_u24 v7, 192, v7')
        a('v_sub_u32 v7, v6, v7')
        for grp in range(3):
            off = RB + 2 * SLOT * grp
            a('v_add_u32 v%d, %d, v4' % (self.VB + 4 * grp, off))
            a('v_add_u32 v%d, %d, v5' % (self.VB + 4 * grp + 1, off))
            a('v_add_u32 v%d, %d, v6' % (self.VB + 4 * grp + 2, off + 16384))
            a('v_add_u32 v%d, %d, v7' % (self.VB + 4 * grp + 3, off + 16384))

    def unpack_bias(self, a):
        a.wait_vm(self.m_bias)
        for ft in range(6):
            for d in range(2):
                unpack(a, self.BIAS + 4 * ft + 2 * d, self.BIAS + 4 * ft + 2 * d + 1, self.BRAW + 2 * ft + d)

    def reads(self, stage, kk):
        slot = stage % NSLOT
        grp, so = slot // 2, (slot % 2) * SLOT
        L = []
        for st in range(2):
            L.append('ds_read_b128 %s, v%d offset:%d' % (ar(self.BF + 8 * kk + 4 * st, 4), self.VB + 4 * grp + kk, so + 2048 * st))
        for ft in range(6):
            base = self.VB + 4 * grp + (3 if ft == 5 else 2)
            for h in range(2):
                L.append('ds_read_b64_tr_b16 %s, v%d offset:%d' % (ar(self.AF + 24 * kk + 4 * ft + 2 * h, 2), base, so + 6144 * kk + 768 * h + 32 * ft))
        return L

    def mfma(self, kk, ft, st, first):
        acc = vr(self.ACC + 8 * ft + 4 * st, 4)
        c = vr(self.BIAS + 4 * ft, 4) if first else acc
        return 'v_mfma_f32_16x16x32_bf16 %s, %s, %s, %s' % (acc, ar(self.AF + 24 * kk + 4 * ft, 4), ar(self.BF + 8 * kk + 4 * st, 4), c)

    def block(self, a, kk, first, rmarks, nxt, bg):
        newmarks = []
        ni = 0
        for ft in range(6):
            if rmarks is not None:
                a.wait_lgkm(rmarks[2 + 2 * ft + 1])
            for st in range(2):
                a(self.mfma(kk, ft, st, first))
                if ni < len(nxt):
                    for _ in range(2):
                        a(nxt[ni]); newmarks.append(a.lgkm_mark()); ni += 1
                elif bg is not None:
                    bg.emit(a, 1)
        return newmarks

    def main(self, a, pre, post, mid, bgs):
        lead = OPT['lead']
        pm = None
        for i in range(10):
            if pm is not None:
                a('s_waitcnt lgkmcnt(0)')
            a.wait_vm(max(self.marks[i], pre[i]() if i in pre else 0))
            a('s_barrier')
            bg = BG()
            if i + lead <= 9 and (i + lead) not in self.marks:
                bg.add(self.dma_items(i + lead))
            if i in bgs:
                bg.add(bgs[i])
            rd = self.reads(i, 0)
            if pm is None:
                m0 = []
                for x in rd:
                    a(x); m0.append(a.lgkm_mark())
                bg.emit(a, 4)
            else:
                m0 = self.block(a, 1, False, None, rd, bg)
            if i in post:
                post[i](a)
            pm = self.block(a, 0, i == 0, m0, self.reads(i, 1), bg)
            bg.drain(a)
            if i in mid:
                mid[i](a)
        self.block(a, 1, False, pm, [], bgs.get(10))

    def epilogue(self, a, bg, per):
        C1, C2, ONE, T, O = 84, 86, 88, 90, 124
        c1 = -2.0 * 1.4426950408889634 * 0.7978845608028654
        for r, val in ((C1, c1), (C2, c1 * 0.044715), (ONE, 1.0)):
            a('v_mov_b32 v%d, %s' % (r, f32hex(val)))
            a('v_mov_b32 v%d, %s' % (r + 1, f32hex(val)))
        a('s_lshl_b32 s%d, s%d, 3' % (ST, S_R))
        a('s_lshl_b32 s%d, s%d, 1' % (ST + 1, S_W))
        a('s_add_u32 s%d, s%d, s%d' % (ST, ST, ST + 1))
        a('s_mul_i32 s%d, s%d, 48' % (ST, ST))
        a('s_mul_i32 s%d, s%d, 3' % (ST + 1, S_CB))
        a('s_add_u32 s%d, s%d, s%d' % (ST, ST, ST + 1))
        a('s_lshl_b32 s%d, s%d, 10' % (ST, ST))
        a('s_add_u32 s%d, s%d, 0x%x' % (ST, ST, LY.HF))
        a('s_add_u32 s%d, s%d, %d' % (ST + 1, ST, 48 * 1024))
        a('v_lshlrev_b32 v2, 4, v1')
        k = 0
        for st in range(2):
            for J in range(3):
                o = O + 4 * (k % 4); t0 = T + 16 * (k % 2); k += 1
                prs = [self.ACC + 8 * (2 * J + h) + 4 * st + 2 * p for h in range(2) for p in range(2)]
                for n, x in enumerate(prs):
                    a('v_pk_mul_f32 %s, %s, %s' % (vr(t0 + 2 * n, 2), vr(x, 2), vr(x, 2)))
                for n, x in enumerate(prs):
                    a('v_pk_fma_f32 %s, %s, %s, %s' % (vr(t0 + 2 * n, 2), vr(t0 + 2 * n, 2), vr(C2, 2), vr(C1, 2)))
                for n, x in enumerate(prs):
                    a('v_pk_mul_f32 %s, %s, %s' % (vr(t0 + 2 * n, 2), vr(t0 + 2 * n, 2), vr(x, 2)))
                bg.emit(a, (per + 2) // 3)
                for n in range(8):
                    a('v_exp_f32 v%d, v%d' % (t0 + n, t0 + n))
                for n, x in enumerate(prs):
                    a('v_pk_add_f32 %s, %s, %s' % (vr(t0 + 2 * n, 2), vr(t0 + 2 * n, 2), vr(ONE, 2)))
                bg.emit(a, (per + 1) // 3)
                for n in range(8):
                    a('v_rcp_f32 v%d, v%d' % (t0 + n, t0 + n))
                for n, x in enumerate(prs):
                    a('v_pk_mul_f32 %s, %s, %s' % (vr(t0 + 2 * n, 2), vr(t0 + 2 * n, 2), vr(x, 2)))
                bg.emit(a, per // 3)
                for n in range(4):
                    a('v_cvt_pk_bf16_f32 v%d, v%d, v%d' % (o + n, t0 + 2 * n, t0 + 2 * n + 1))
                a('buffer_store_dwordx4 %s, v2, s[%d:%d], s%d offen offset:%d%s' % (vr(o, 4), R_WS, R_WS + 3, ST + st, 1024 * J, SCS))

PP = 4160
QO0 = 16656
QO1 = QO0 + 4640
CS = 25856
CB = 0
TOP = [7, 6, 5, 2]
BOT = [4, 3, 1, 0]

class Conv:
    VADR = 16
    FR, ACC = 32, 112
    PRAW, QRAW, PT = 220, 140, 180
    SCH = 90
    S_D = 93

    def channels(self, a):
        a('s_mul_i32 s%d, s%d, 80' % (ST, S_J))
        a('s_lshr_b32 s%d, s%d, 1' % (ST + 1, S_Q))
        a('s_mul_i32 s%d, s%d, 5' % (ST + 1, ST + 1))
        a('s_add_u32 s%d, s%d, s%d' % (ST, ST, ST + 1))
        a('s_and_b32 s%d, s%d, 1' % (ST + 1, S_Q))
        a('s_mul_i32 s%d, s%d, 3' % (ST + 1, ST + 1))
        a('s_add_u32 s%d, s%d, s%d' % (self.SCH, ST, ST + 1))
        a('s_add_u32 s%d, s%d, 1' % (self.SCH + 1, self.SCH))
        a('s_add_u32 s%d, s%d, 2' % (self.SCH + 2, ST))

    def load_p(self, a):
        a('v_lshlrev_b32 v2, 4, v0')
        a('v_subrev_u32 v3, 8, v2')
        a('s_mov_b32 s%d, 4096' % (R_HK + 2))
        a('s_mov_b32 s%d, 0x20000' % (R_HK + 3))
        for sl in range(3):
            a('s_lshl_b32 s%d, s%d, 12' % (ST, self.SCH + sl))
            a('s_add_u32 s%d, s%d, s%d' % (R_HK, P_HK, ST))
            a('s_addc_u32 s%d, s%d, 0' % (R_HK + 1, P_HK + 1))
            a('s_and_b32 s%d, s%d, 0xffff' % (R_HK + 1, R_HK + 1))
            a('buffer_load_dwordx4 %s, v2, s[%d:%d], 0 offen%s' % (vr(self.PRAW + 6 * sl + 2, 4), R_HK, R_HK + 3, NT()))
            a('buffer_load_dwordx2 %s, v3, s[%d:%d], 0 offen%s' % (vr(self.PRAW + 6 * sl, 2), R_HK, R_HK + 3, NT()))
        self.m_p = a.vm_mark()

    def load_q(self, a):
        a('v_lshlrev_b32 v2, 4, v0')
        for sl in range(3):
            a('s_lshl_b32 s%d, s%d, 12' % (ST + sl, self.SCH + sl))
            if LY.KVT:
                a('s_add_u32 s%d, s%d, 0x%x' % (ST + sl, ST + sl, LY.KVT))
            a('buffer_load_dwordx4 %s, v2, s[%d:%d], s%d offen%s' % (vr(self.QRAW + 4 * sl, 4), R_WS, R_WS + 3, ST + sl, SCL()))
        self.m_q = a.vm_mark()

    def zero_fill(self, a):
        L = a.newlabel('L_zf')
        a('s_cmp_ge_u32 s%d, 3' % S_W)
        a('s_cbranch_scc1 %s' % L)
        c = a.lgkm_issued
        for i in range(4):
            a('v_mov_b32 v%d, 0' % (8 + i))
        a('s_mul_i32 s%d, s%d, %d' % (ST, S_W, CS))
        a('v_lshlrev_b32 v2, 4, v1')
        a('v_add_u32 v2, s%d, v2' % ST)
        a('v_bfe_u32 v3, v1, 2, 2')
        a('v_mul_u32_u24 v3, %d, v3' % PP)
        a('v_and_b32 v4, 3, v1')
        a('v_lshl_add_u32 v3, v4, 4, v3')
        a('v_add_u32 v3, s%d, v3' % ST)
        a('v_cmp_gt_u32 vcc, 29, v1')
        a('s_and_saveexec_b64 s[%d:%d], vcc' % (ST + 2, ST + 3))
        a('ds_write_b128 v2, v[8:11] offset:%d' % (CB + QO0 + 4080))
        a('ds_write_b128 v2, v[8:11] offset:%d' % (CB + QO1 + 4096))
        a('ds_write_b128 v3, v[8:11] offset:%d' % CB)
        a('s_mov_b64 exec, s[%d:%d]' % (ST + 2, ST + 3))
        a.lgkm_issued = c
        a.label(L)

    def build_p(self, a):
        a('v_lshlrev_b32 v2, 4, v0')
        a.wait_vm(self.m_p)
        for sl in range(3):
            D = self.PRAW + 6 * sl
            T = self.PT + 12 * sl
            base = CB + CS * sl + 48
            assert base + 3 * PP <= 65535
            for k in range(4):
                a('v_alignbit_b32 v%d, v%d, v%d, 16' % (T + k, D + k + 1, D + k))
            a('ds_write_b128 v2, %s offset:%d' % (vr(D + 2, 4), base + 3 * PP))
            for k in range(4):
                a('v_mov_b32 v%d, v%d' % (T + 4 + k, D + 1 + k))
            a('ds_write_b128 v2, %s offset:%d' % (vr(T, 4), base))
            for k in range(3):
                a('v_mov_b32 v%d, v%d' % (T + 8 + k, T + 1 + k))
            a('v_alignbit_b32 v%d, v%d, v%d, 16' % (T + 11, D + 5, D + 4))
            a('ds_write_b128 v2, %s offset:%d' % (vr(T + 4, 4), base + PP))
            a('ds_write_b128 v2, %s offset:%d' % (vr(T + 8, 4), base + 2 * PP))

    def build_q(self, a):
        a('v_lshlrev_b32 v2, 4, v0')
        for sl in range(3):
            a('v_add_u32 v%d, %d, v2' % (4 + sl, CB + CS * sl + QO0 - 8))
        a.wait_vm(self.m_q)
        for sl in range(3):
            Q = self.QRAW + 4 * sl
            a('ds_write_b128 v%d, %s offset:%d' % (4 + sl, vr(Q, 4), QO1 - QO0 + 8))
            a('ds_write2_b64 v%d, %s, %s offset0:0 offset1:1' % (4 + sl, vr(Q, 2), vr(Q + 2, 2)))

    def task_setup(self, a):
        a('v_and_b32 v2, 15, v1')
        a('v_lshrrev_b32 v3, 4, v1')
        a('v_and_b32 v4, 3, v1')
        a('v_lshrrev_b32 v5, 2, v2')
        a('v_add_u32 v5, v5, v3')
        a('v_mul_u32_u24 v4, %d, v4' % PP)
        a('v_lshl_add_u32 v28, v5, 4, v4')
        a('v_and_b32 v4, 1, v1')
        a('v_lshrrev_b32 v5, 1, v2')
        a('v_lshlrev_b32 v5, 6, v5')
        a('v_lshlrev_b32 v6, 4, v3')
        a('v_mul_u32_u24 v7, 4640, v4')
        a('v_add_u32 v7, v7, v6')
        a('v_sub_u32 v7, v7, v5')
        a('v_add_u32 v29, %d, v7' % (QO0 + 448))
        a('v_add_u32 v5, v5, v6')
        a('v_lshl_add_u32 v31, v4, 3, v5')
        a('v_sub_u32 v30, %d, v31' % (QO1 + 504))
        a('s_cmp_eq_u32 s%d, 3' % S_W)
        a('s_cselect_b32 s%d, 0, s%d' % (ST + 2, S_W))
        a('s_cmp_eq_u32 s%d, 1' % (ST + 2))
        a('s_cselect_b32 s%d, s%d, s%d' % (ST + 3, self.SCH + 1, self.SCH))
        a('s_cmp_eq_u32 s%d, 2' % (ST + 2))
        a('s_cselect_b32 s%d, s%d, s%d' % (ST + 3, self.SCH + 2, ST + 3))
        a('s_mov_b32 s%d, s%d' % (ST + 4, self.SCH + 1))
        for k in range(2):
            ch = ST + 3 + k
            a('s_lshr_b32 s%d, s%d, 1' % (ST, ch))
            a('s_lshl_b32 s%d, s%d, 2' % (ST, ST))
            a('s_load_dword s%d, s[%d:%d], s%d' % (self.S_D + k, P_D, P_D + 1, ST))
            if k == 0:
                a('s_mul_i32 s%d, s%d, %d' % (ST, ST + 2, CS))
                if CB: a('s_add_u32 s%d, s%d, %d' % (ST, ST, CB))
            else:
                a('s_mov_b32 s%d, %d' % (ST, CB + CS))
            for n in range(3):
                a('v_add_u32 v%d, s%d, v%d' % (self.VADR + 4 * k + n, ST, 28 + n))
            a('s_lshl_b32 s%d, s%d, 12' % (ST + 1, ch))
            a('s_add_u32 s%d, s%d, 0x%x' % (ST + 1, ST + 1, LY.Y2T))
            a('v_add_u32 v%d, s%d, v31' % (self.VADR + 4 * k + 3, ST + 1))
        a('s_waitcnt lgkmcnt(0)')
        for k in range(2):
            a('s_lshl_b32 s%d, s%d, 16' % (ST, self.S_D + k))
            a('s_and_b32 s%d, s%d, 0xffff0000' % (self.S_D + k, self.S_D + k))
            a('s_bitcmp0_b32 s%d, 0' % (ST + 3 + k))
            a('s_cselect_b32 s%d, s%d, s%d' % (self.S_D + k, ST, self.S_D + k))

    def task(self, a, subs, hooks, bg, bg_every):
        freg = {}
        nr = self.FR
        for k, tiles in subs:
            n = max(tiles) + 1
            for p in range(n):
                freg[(k, 'A', p)] = nr; nr += 4
            for p in range(n):
                freg[(k, 'B', p)] = nr; nr += 4
        assert nr <= self.ACC
        areg = {}
        na = self.ACC
        for k, tiles in subs:
            for t in tiles:
                areg[(k, t)] = na; na += 4
        order = []
        maxp = max(max(t) for _, t in subs)
        for p in range(maxp + 1):
            for k, tiles in subs:
                for t in tiles:
                    if t >= p:
                        order.append((k, t, p))
        def rd(key, r):
            k, ab, p = key
            if ab == 'A':
                return 'ds_read_b128 %s, v%d offset:%d' % (vr(freg[key], 4), self.VADR + 4 * k, 512 * p + 64 * r)
            return 'ds_read_b128 %s, v%d offset:%d' % (vr(freg[key], 4), self.VADR + 4 * k + 1, 512 * (7 - p) + 64 * r)
        uses = [((k, 'A', p), (k, 'B', t - p)) for k, t, p in order]
        last = {}; first = {}
        for i, us in enumerate(uses):
            for u in us:
                last[u] = i; first.setdefault(u, i)
        mark = {}
        for key in sorted(first, key=lambda u: first[u]):
            a(rd(key, 0)); mark[key] = a.lgkm_mark()
        cnt = 0
        umark = {}
        UT = 144 - 0
        for r in range(8):
            if r in hooks:
                hooks[r](a)
            waited = -1
            seen = set()
            for i, (k, t, p) in enumerate(order):
                need = max(mark[u] for u in uses[i])
                if need > waited:
                    a.wait_lgkm(need); waited = need
                acc = vr(areg[(k, t)], 4)
                c = acc if (r > 0 or (k, t) in seen) else '0'
                seen.add((k, t))
                a('v_mfma_f32_16x16x32_bf16 %s, %s, %s, %s' % (acc, vr(freg[uses[i][0]], 4), vr(freg[uses[i][1]], 4), c))
                newm = {}
                for u in uses[i]:
                    if last[u] == i and r < 7:
                        a(rd(u, r + 1)); newm[u] = a.lgkm_mark()
                    elif last[u] == i and r == 7 and u[1] == 'A' and u[2] < len(dict(subs)[u[0]]):
                        tt = dict(subs)[u[0]][u[2]]
                        a('ds_read_b64 %s, v%d offset:%d' % (vr(freg[u], 2), self.VADR + 4 * u[0] + 2, 512 * (7 - tt)))
                        umark[(u[0], tt)] = (freg[u], a.lgkm_mark())
                for u, m in newm.items():
                    mark[(u, 'next')] = m
                cnt += 1
                if cnt % bg_every == 0:
                    bg.emit(a, 1)
            for u in list(first):
                if (u, 'next') in mark:
                    mark[u] = mark.pop((u, 'next'))
        X = 2
        for k, tiles in subs:
            for t in sorted(tiles):
                U, m = umark[(k, t)]
                A = areg[(k, t)]
                a.wait_lgkm(m)
                X = 4 if X == 8 else 8
                unpack(a, X + 3, X + 2, U)
                unpack(a, X + 1, X + 0, U + 1)
                for n in range(4):
                    a('v_fma_f32 v%d, v%d, s%d, v%d' % (X + n, X + n, self.S_D + k, A + n))
                a('v_cvt_pk_bf16_f32 v%d, v%d, v%d' % (U, X, X + 1))
                a('v_cvt_pk_bf16_f32 v%d, v%d, v%d' % (U + 1, X + 2, X + 3))
                a('buffer_store_dwordx2 %s, v%d, s[%d:%d], 0 offen offset:%d%s' % (vr(U, 2), self.VADR + 4 * k + 3, R_WS, R_WS + 3, 512 * t, SCS))

    def run(self, a, hooks, bg, bg_every):
        L_b1 = a.newlabel('L_bot1'); L_b2 = a.newlabel('L_bot2'); L_done = a.newlabel('L_cdone')
        a('s_cmp_eq_u32 s%d, 3' % S_W)
        a('s_cbranch_scc1 %s' % L_b2)
        a('s_and_b32 s%d, s%d, 1' % (ST + 4, S_Q))
        a('s_add_u32 s%d, s%d, s%d' % (ST + 4, ST + 4, S_W))
        a('s_cmp_ge_u32 s%d, 3' % (ST + 4))
        a('s_cbranch_scc1 %s' % L_b1)
        c0 = a.vm_issued; b0 = bg.save(); n0 = len(bg.items)
        ends = []; bgi = []
        for lab, subs, every in ((None, [(0, TOP)], bg_every), (L_b1, [(0, BOT)], max(1, bg_every // 2)), (L_b2, [(0, BOT), (1, BOT)], bg_every)):
            a.vm_issued = c0; bg.restore(b0); del bg.items[n0:]
            if lab:
                a.label(lab)
                a('s_nop 1')
            self._bgdrain = True
            self.task_wrapper(a, subs, hooks, bg, every)
            ends.append(a.vm_issued)
            bgi.append((bg.i, len(bg.items)))
            if lab != L_b2:
                a('s_branch %s' % L_done)
        a.label(L_done)
        assert len(set(bgi)) == 1, bgi
        assert ends[0] == ends[1] == ends[2] - 4, ends
        a.vm_issued = min(ends)

    def task_wrapper(self, a, subs, hooks, bg, every):
        self.task(a, subs, hooks, bg, every)

RED = 81920
YL = 143360
class G2:
    ACC, VL = 16, 60
    HB = [144, 192, 64, 144]
    QR, B2R, GR = 112, 122, 132
    B2F, Y, YT = 192, 212, 224
    VLW = 242

    def w2_items(self):
        L = []
        def init(a):
            a('v_lshlrev_b32 v%d, 4, v1' % self.VLW)
            a('s_mul_i32 s101, s%d, 48' % S_J)
            a('s_mul_i32 s100, s%d, 12' % S_W)
            a('s_add_u32 s101, s101, s100')
            a('s_mul_i32 s101, s101, 5120')
            a('s_add_u32 s101, s101, 0x%x' % LY.W2T)
        for n in range(60):
            def f(a, n=n):
                if n == 0: init(a)
                a('buffer_load_dwordx4 %s, v%d, s[%d:%d], s101 offen offset:%d%s' % (ar(4 * n, 4), self.VLW, R_WS, R_WS + 3, 1024 * (n % 4), SCL()))
                if n % 4 == 3:
                    a('s_add_u32 s101, s101, 4096')
                self.m_w2 = a.vm_mark()
            L.append(f)
        return L

    def h_items(self, it):
        L = []
        for ks in range(12):
            def f(a, ks=ks):
                if ks == 0:
                    a('s_add_u32 s100, s%d, %d' % (S_W, 1 + it))
                    a('s_and_b32 s100, s100, 3')
                    a('s_lshl_b32 s95, s%d, 2' % S_Q)
                    a('s_add_u32 s95, s95, s100')
                    a('s_mul_i32 s95, s95, 48')
                    a('s_mul_i32 s100, s%d, 12' % S_W)
                    a('s_add_u32 s95, s95, s100')
                    a('s_lshl_b32 s95, s95, 10')
                    a('s_add_u32 s95, s95, 0x%x' % LY.HF)
                a('buffer_load_dwordx4 %s, v%d, s[%d:%d], s95 offen offset:%d%s' % (vr(self.HB[it] + 4 * ks, 4), self.VLW, R_WS, R_WS + 3, 1024 * (ks % 4), SCL()))
                self.m_h[(it, ks)] = a.vm_mark()
                if ks % 4 == 3 and ks < 11:
                    a('s_add_u32 s95, s95, 4096')
            L.append(f)
        return L

    def epi_addr(self, a):
        a('v_lshlrev_b32 v%d, 4, v1' % self.VL)
        a('v_and_b32 v10, 15, v1')
        a('v_lshrrev_b32 v11, 4, v1')
        a('s_lshl_b32 s%d, s%d, 6' % (ST, S_Q))
        a('s_lshl_b32 s%d, s%d, 4' % (ST + 1, S_W))
        a('s_add_u32 s%d, s%d, s%d' % (ST, ST, ST + 1))
        a('s_mul_i32 s%d, s%d, 160' % (ST + 1, S_J))
        a('v_add_u32 v10, s%d, v10' % ST)
        a('v_lshlrev_b32 v4, 3, v11')
        a('v_add_u32 v4, s%d, v4' % (ST + 1))
        a('v_mul_u32_u24 v3, 1280, v10')
        a('v_add_u32 v3, v3, v4')
        a('v_lshlrev_b32 v5, 2, v10')
        a('v_add_u32 v5, 0x%x, v5' % LY.G)
        a('s_mul_i32 s%d, s%d, %d' % (ST + 1, S_J, 80 * 4096))
        a('s_lshl_b32 s%d, s%d, 1' % (ST, ST))
        a('s_add_u32 s%d, s%d, s%d' % (ST, ST, ST + 1))
        a('s_add_u32 s%d, s%d, 0x%x' % (ST, ST, LY.Y2T))
        a('v_lshrrev_b32 v6, 1, v1')
        a('v_lshlrev_b32 v6, 12, v6')
        a('v_and_b32 v10, 1, v1')
        a('v_lshl_add_u32 v6, v10, 4, v6')
        a('v_add_u32 v6, s%d, v6' % ST)
        a('s_mul_i32 s%d, s%d, 2560' % (ST, S_W))
        a('s_add_u32 s%d, s%d, %d' % (ST, ST, YL))
        a('v_add_u32 v7, s%d, v%d' % (ST, self.VL))
        a('v_lshlrev_b32 v8, 3, v1')
        a('v_add_u32 v8, s%d, v8' % ST)
        for it in range(3):
            a('s_add_u32 s%d, s%d, %d' % (ST, S_W, 1 + it))
            a('s_and_b32 s%d, s%d, 3' % (ST, ST))
            a('s_mul_i32 s%d, s%d, 15360' % (ST, ST))
            a('s_add_u32 s%d, s%d, %d' % (ST, ST, RED + 5120 * it))
            a('v_add_u32 v%d, s%d, v%d' % (12 + it, ST, self.VL))
        a('s_mul_i32 s%d, s%d, 15360' % (ST, S_W))
        a('s_add_u32 s%d, s%d, %d' % (ST, ST, RED))
        a('v_add_u32 v15, s%d, v%d' % (ST, self.VL))

    def epi_input_items(self):
        L = []
        for dt in range(5):
            L.append('global_load_dwordx2 %s, v4, s[%d:%d] offset:%d' % (vr(self.B2R + 2 * dt, 2), P_B2, P_B2 + 1, 32 * dt))
        for dt in range(5):
            L.append('buffer_load_dwordx2 %s, v3, s[%d:%d], 0 offen offset:%d' % (vr(self.QR + 2 * dt, 2), R_X, R_X + 3, 32 * dt))
        def f(a):
            a('buffer_load_dword v%d, v5, s[%d:%d], 0 offen%s' % (self.GR, R_WS, R_WS + 3, SCL()))
            self.m_in = a.vm_mark()
        L.append(f)
        return L

    def y_loads(self, a):
        Y = self.Y
        a('s_mov_b32 s%d, %d' % (ST, 32 * 4096))
        a('s_mov_b32 s%d, %d' % (ST + 1, 64 * 4096))
        a('buffer_load_dwordx4 %s, v6, s[%d:%d], 0 offen%s' % (vr(Y, 4), R_WS, R_WS + 3, SCL()))
        a('buffer_load_dwordx4 %s, v6, s[%d:%d], s%d offen%s' % (vr(Y + 4, 4), R_WS, R_WS + 3, ST, SCL()))
        a('s_mov_b64 exec, 0xffffffff')
        a('buffer_load_dwordx4 %s, v6, s[%d:%d], s%d offen%s' % (vr(Y + 8, 4), R_WS, R_WS + 3, ST + 1, SCL()))
        a('s_mov_b64 exec, -1')
        self.m_y = a.vm_mark()

    def y_stage(self, a):
        Y = self.Y
        a.wait_vm(self.m_y)
        a('ds_write_b128 v7, %s' % vr(Y, 4))
        a('ds_write_b128 v7, %s offset:1024' % vr(Y + 4, 4))
        a('s_mov_b64 exec, 0xffffffff')
        a('ds_write_b128 v7, %s offset:2048' % vr(Y + 8, 4))
        a('s_mov_b64 exec, -1')
        for dt in range(5):
            a('ds_read_b64_tr_b16 %s, v8 offset:%d' % (vr(self.YT + 2 * dt, 2), 512 * dt))

    def iteration(self, a, it, fill, bg=None, bg_every=4):
        acc0 = self.ACC + 20 * (it % 2)
        fi = 0; cnt = 0
        for ks in range(12):
            while (it, ks) not in self.m_h:
                bg.emit(a, 1)
            a.wait_vm(max(self.m_h[(it, ks)], self.m_w2 if (it == 0 and ks == 0) else 0))
            for dt in range(5):
                acc = vr(acc0 + 4 * dt, 4)
                c = acc if ks > 0 else (vr(self.B2F + 4 * dt, 4) if it == 3 else '0')
                a('v_mfma_f32_16x16x32_bf16 %s, %s, %s, %s' % (acc, ar(4 * (5 * ks + dt), 4), vr(self.HB[it] + 4 * ks, 4), c))
                cnt += 1
                if bg is not None and cnt % bg_every == 0 and bg.left():
                    bg.emit(a, 1)
                elif ks >= 2 and fi < len(fill):
                    a(fill[fi]); fi += 1
        while fi < len(fill):
            a(fill[fi]); fi += 1

    def red_writes(self, it):
        acc0 = self.ACC + 20 * (it % 2)
        return ['ds_write_b128 v%d, %s offset:%d' % (12 + it, vr(acc0 + 4 * dt, 4), 1024 * dt) for dt in range(5)]

    def main(self, a, bg, after0, after1, after2):
        self.epi_addr(a)
        bg.add(self.h_items(2))
        bg.add(self.epi_input_items())
        self.iteration(a, 0, [], bg, 3)
        ts(a, 19)
        after0(a)
        bg.add(self.h_items(3))
        self.iteration(a, 1, self.red_writes(0), bg, 3)
        bg.drain(a)
        ts(a, 20)
        after1(a)
        self.iteration(a, 2, self.red_writes(1), bg)
        ts(a, 21)
        a.wait_vm(self.m_in)
        for dt in range(5):
            for d in range(2):
                unpack(a, self.B2F + 4 * dt + 2 * d, self.B2F + 4 * dt + 2 * d + 1, self.B2R + 2 * dt + d)
        after2(a)
        self.y_loads(a)
        G_, OM = 56, 58
        QF, YF, R = 64, 84, 144
        fl = self.red_writes(2)
        fl.append('v_sub_f32 v%d, 1.0, v%d' % (OM, self.GR))
        fl.append('v_mov_b32 v%d, v%d' % (G_, self.GR))
        fl.append('v_cvt_pk_bf16_f32 v%d, v%d, v%d' % (OM, OM, OM))
        fl.append('v_mov_b32 v%d, v%d' % (G_ + 1, self.GR))
        fl.append('v_lshlrev_b32 v%d, 16, v%d' % (OM, OM))
        for n in range(10):
            fl.append('v_lshlrev_b32 v%d, 16, v%d' % (QF + 2 * n, self.QR + n))
            fl.append('v_and_b32 v%d, 0xffff0000, v%d' % (QF + 2 * n + 1, self.QR + n))
        fl.append('v_mov_b32 v%d, v%d' % (OM + 1, OM))
        for n in range(20):
            fl.append('v_mul_f32 v%d, v%d, v%d' % (QF + n, QF + n, G_))
        self.iteration(a, 3, fl, bg)
        ts(a, 22)
        a('s_waitcnt lgkmcnt(0)')
        a('s_barrier')
        ts(a, 23)
        for n in range(15):
            a('ds_read_b128 %s, v15 offset:%d' % (vr(R + 4 * n, 4), 1024 * n))
        m0 = a.lgkm_mark()
        self.y_stage(a)
        my = a.lgkm_mark()
        acc0 = self.ACC + 20
        for sl in range(3):
            a.wait_lgkm(m0 - 10 + 5 * sl)
            for n in range(10):
                a('v_pk_add_f32 %s, %s, %s' % (vr(acc0 + 2 * n, 2), vr(acc0 + 2 * n, 2), vr(R + 20 * sl + 2 * n, 2)))
        for n in range(10):
            a('v_pk_mul_f32 %s, %s, %s' % (vr(acc0 + 2 * n, 2), vr(acc0 + 2 * n, 2), vr(OM, 2)))
        a.wait_lgkm(my)
        for dt in range(5):
            for d in range(2):
                n = 2 * dt + d
                unpack(a, YF + 2 * n, YF + 2 * n + 1, self.YT + n)
            for d in range(2):
                n = 2 * dt + d
                a('v_pk_fma_f32 %s, %s, %s, %s' % (vr(QF + 2 * n, 2), vr(QF + 2 * n, 2), vr(YF + 2 * n, 2), vr(acc0 + 2 * n, 2)))
            for d in range(2):
                n = 2 * dt + d
                a('v_cvt_pk_bf16_f32 v%d, v%d, v%d' % (self.QR + n, QF + 2 * n, QF + 2 * n + 1))
            a('buffer_store_dwordx2 %s, v3, s[%d:%d], 0 offen offset:%d' % (vr(self.QR + 2 * dt, 2), R_OUT, R_OUT + 3, 32 * dt))

def ts(a, idx, real=False):
    if not PROF:
        return
    a('%s s[12:13]' % ('s_memrealtime' if real else 's_memtime'))
    a('s_waitcnt lgkmcnt(0)')
    a('v_writelane_b32 v%d, s12, %d' % (V_TS, idx))
def ts_flush(a):
    if not PROF:
        return
    a('s_lshl_b32 s12, s2, 2')
    a('s_add_u32 s12, s12, s%d' % S_W)
    a('s_lshl_b32 s12, s12, 7')
    a('s_add_u32 s12, s12, 0x%x' % LY.TS)
    a('v_lshlrev_b32 v2, 2, v1')
    a('s_mov_b64 exec, 0xffffffff')
    a('buffer_store_dword v%d, v2, s[%d:%d], s12 offen' % (V_TS, R_WS, R_WS + 3))
    a('s_mov_b64 exec, -1')

SPIN_MAX = 20000
def token_publish(a):
    L = a.newlabel('L_tokp')
    a('s_add_u32 s12, s2, s%d' % S_W)
    a('s_cmp_lg_u32 s12, 0')
    a('s_cbranch_scc1 %s' % L)
    a('s_memrealtime s[12:13]')
    a('s_waitcnt lgkmcnt(0)')
    a('s_or_b32 s12, s12, 1')
    a('v_mov_b32 v2, s12')
    a('v_mov_b32 v3, s13')
    a('v_mov_b32 v4, 0')
    c = a.vm_issued
    a('s_mov_b64 exec, 1')
    a('global_store_dwordx2 v4, v[2:3], s[%d:%d] sc0 sc1' % (P_DBG, P_DBG + 1))
    a('s_mov_b64 exec, -1')
    a.vm_issued = c
    a.label(L)
def token_load(a):
    a('v_mov_b32 v%d, 0' % V_PA)
    a('global_load_dwordx2 %s, v%d, s[%d:%d] sc0 sc1' % (vr(V_TOK, 2), V_PA, P_DBG, P_DBG + 1))
    return a.vm_mark()
def token_check(a, mark):
    L = a.newlabel('L_tok'); Lok = a.newlabel('L_tokok')
    a.wait_vm(mark)
    a('s_mov_b32 s14, %d' % SPIN_MAX)
    a.label(L)
    a('v_readfirstlane_b32 s%d, v%d' % (TOK, V_TOK))
    a('v_readfirstlane_b32 s%d, v%d' % (TOK + 1, V_TOK + 1))
    a('s_cmp_lg_u32 s%d, 0' % TOK)
    a('s_cbranch_scc1 %s' % Lok)
    a('s_sub_u32 s14, s14, 1')
    a('s_cmp_eq_u32 s14, 0')
    a('s_cbranch_scc1 %s' % Lok)
    a('s_sleep 2')
    c = a.vm_issued
    a('global_load_dwordx2 %s, v%d, s[%d:%d] sc0 sc1' % (vr(V_TOK, 2), V_PA, P_DBG, P_DBG + 1))
    a('s_waitcnt vmcnt(0)')
    a.vm_issued = c
    a('s_branch %s' % L)
    a.label(Lok)
def flag_store(a, s_idx_expr):
    L = a.newlabel('L_fs')
    a('s_cmp_lg_u32 s%d, 0' % S_W)
    a('s_cbranch_scc1 %s' % L)
    s_idx_expr(a)
    a('v_mov_b32 v%d, s%d' % (V_TOK, TOK))
    a('v_mov_b32 v%d, s%d' % (V_TOK + 1, TOK + 1))
    a('v_mov_b32 v%d, s12' % V_FA)
    c = a.vm_issued
    a('s_mov_b64 exec, 1')
    a('buffer_store_dwordx2 %s, v%d, s[%d:%d], 0 offen sc0 sc1' % (vr(V_TOK, 2), V_FA, R_WS, R_WS + 3))
    a('s_mov_b64 exec, -1')
    a.vm_issued = c
    a.label(L)
def poll_issue(a, base_expr, n):
    base_expr(a)
    a('v_and_b32 v%d, %d, v1' % (V_PA, n - 1))
    a('v_lshlrev_b32 v%d, 3, v%d' % (V_PA, V_PA))
    a('v_add_u32 v%d, s12, v%d' % (V_PA, V_PA))
    a('buffer_load_dwordx2 %s, v%d, s[%d:%d], 0 offen sc0 sc1' % (vr(V_POLL, 2), V_PA, R_WS, R_WS + 3))
    return a.vm_mark()
def poll_check(a, mark):
    L = a.newlabel('L_poll'); Lok = a.newlabel('L_pollok')
    a.wait_vm(mark)
    a('s_mov_b32 s14, %d' % SPIN_MAX)
    a.label(L)
    a('v_cmp_eq_u64 vcc, s[%d:%d], %s' % (TOK, TOK + 1, vr(V_POLL, 2)))
    a('s_nop 0')
    a('s_cmp_eq_u64 vcc, -1')
    a('s_cbranch_scc1 %s' % Lok)
    a('s_sub_u32 s14, s14, 1')
    a('s_cmp_eq_u32 s14, 0')
    a('s_cbranch_scc1 %s' % Lok)
    a('s_sleep 1')
    c = a.vm_issued
    a('buffer_load_dwordx2 %s, v%d, s[%d:%d], 0 offen sc0 sc1' % (vr(V_POLL, 2), V_PA, R_WS, R_WS + 3))
    a('s_waitcnt vmcnt(0)')
    a.vm_issued = c
    a('s_branch %s' % L)
    a.label(Lok)

F1, F2, F3 = LY.FLAGS, LY.FLAGS + 4096, LY.FLAGS + 8192
def fbase_j(F):
    def f(a):
        a('s_lshl_b32 s12, s%d, 8' % S_J)
        a('s_add_u32 s12, s12, 0x%x' % F)
    return f
def fown_jq(F):
    def f(a):
        fbase_j(F)(a)
        a('s_lshl_b32 s13, s%d, 3' % S_Q)
        a('s_add_u32 s12, s12, s13')
    return f
def fown_g1(a):
    a('s_lshl_b32 s12, s%d, 7' % S_R)
    a('s_lshl_b32 s13, s%d, 3' % S_CB)
    a('s_add_u32 s12, s12, s13')
    a('s_add_u32 s12, s12, 0x%x' % F2)
def fbase_g2(a):
    a('s_lshr_b32 s12, s%d, 1' % S_Q)
    a('s_lshl_b32 s12, s12, 7')
    a('s_add_u32 s12, s12, 0x%x' % F2)

def fused_body(a):
    p = Prep(); g = G1(); c = Conv(); h = G2()
    h.m_h = {}
    g.setup(a)
    srds(a)
    if PROF:
        a('v_mov_b32 v%d, 0' % V_TS)
    ts(a, 30, True)
    ts(a, 0)
    nd = OPT.get('dma_first', 0)
    for s_ in range(nd):
        g.dma(a, s_)
    srds2(a)
    token_publish(a)
    p.loads(a)
    g.bias_load(a)
    for s_ in range(nd, OPT['lead']):
        g.dma(a, s_)
    m_tok = token_load(a)
    c.channels(a)
    g.setup2(a)
    g.unpack_bias(a)
    ts(a, 1)
    st = {}
    w2bg = BG(h.w2_items())
    ps = OPT['prep_stage']
    pre, post, mid, bgs = {}, {}, {}, {}
    def addhook(d, i, f):
        old = d.get(i)
        d[i] = (lambda a, old=old, f=f: ((old(a) if old else None), f(a)))
    addhook(mid, ps, p.compute)
    addhook(post, ps + 1, p.transpose)
    addhook(mid, ps + 1, c.load_p)
    pre[OPT['f1_pub']] = lambda: p.m_st
    def pub_f1(a):
        token_check(a, m_tok)
        flag_store(a, fown_jq(F1))
    addhook(post, OPT['f1_pub'], pub_f1)
    addhook(mid, OPT['f1_issue'], lambda a: st.__setitem__('f1', poll_issue(a, fbase_j(F1), 32)))
    addhook(post, 7, c.zero_fill)
    addhook(post, 8, c.build_p)
    def chk_f1(a):
        poll_check(a, st['f1'])
        ts(a, 14)
        c.load_q(a)
    addhook(mid, OPT['f1_chk'], chk_f1)
    n1 = OPT['w2_g1']
    if OPT['f1_chk'] < 9:
        items = [(lambda a: w2bg.emit(a, 1))] * n1
        bgs[9] = items
    bgs[10] = w2bg if OPT.get('w2_tail', 1) else None
    if PROF:
        for i in range(10):
            addhook(mid, i, lambda a, i=i: ts(a, 3 + i))
    tail = BG([(lambda a: w2bg.emit(a, 1)) if k % 4 == 3 else (lambda a: None) for k in range(12)])
    bgs[10] = tail
    g.main(a, pre, post, mid, bgs)
    ts(a, 13)
    g.epilogue(a, w2bg, OPT['w2_gelu'] // 6)
    m_hst = a.vm_mark()
    ts(a, 15)
    c.build_q(a)
    c.task_setup(a)
    w2bg.emit(a, 2)
    a('s_waitcnt lgkmcnt(0)')
    a.wait_vm(m_hst)
    a('s_barrier')
    flag_store(a, fown_g1)
    ts(a, 16)
    hooks = {}
    hooks[OPT['f2_issue']] = lambda a: st.__setitem__('f2', poll_issue(a, fbase_g2, 16))
    def chk_f2(a):
        w2bg.drain(a)
        poll_check(a, st['f2'])
        w2bg.add(h.h_items(0) + h.h_items(1))
    hooks[OPT['f2_chk']] = chk_f2
    def tw(a, subs, hooks_, bg, every):
        h.m_h.clear()
        c.task(a, subs, hooks_, bg, every)
    c.task_wrapper = tw
    c.run(a, hooks, w2bg, OPT.get('conv_every', 4))
    m_yst = a.vm_mark()
    ts(a, 17)
    def pub_f3(a):
        a.wait_vm(m_yst)
        a('s_barrier')
        flag_store(a, fown_jq(F3))
    h.main(a, w2bg, pub_f3, lambda a: st.__setitem__('f3', poll_issue(a, fbase_j(F3), 32)), lambda a: poll_check(a, st['f3']))
    ts(a, 24)
    ts(a, 31, True)
    ts_flush(a)

def build_fused(path):
    name = NAME + '_kernel'
    a = Asm()
    end = 'END_' + name
    prologue(a, end)
    fused_body(a)
    a.label(end)
    a('s_endpgm')
    a.raw('.p2align 12\n.fill 1024, 4, 0xbf800000')
    s = HEADER
    s += '; @launch grid=(256,1,1) block=(256,1,1) lds=163840\n'
    s += '.amdgcn_target "amdgcn-amd-amdhsa--gfx950"\n'
    s += '.text\n.globl %s\n.p2align 8\n.type %s,@function\n%s:\n' % (name, name, name) + a.text()
    s += '.section .rodata,"a"\n.p2align 6\n.amdhsa_kernel %s\n' % name
    s += '  .amdhsa_next_free_vgpr 512\n  .amdhsa_next_free_sgpr 102\n  .amdhsa_accum_offset 256\n'
    s += '  .amdhsa_group_segment_fixed_size 0\n  .amdhsa_kernarg_size 120\n  .amdhsa_user_sgpr_count 2\n'
    s += '  .amdhsa_user_sgpr_kernarg_segment_ptr 1\n  .amdhsa_system_sgpr_workgroup_id_x 1\n.end_amdhsa_kernel\n'
    open(path, 'w').write(s)

if __name__ == '__main__':
    for kv in sys.argv[1:]:
        k_, v_ = kv.split('=')
        OPT[k_] = int(v_) if v_.lstrip('-').isdigit() else v_.replace('_', ' ')
    build_fused('k_fused.s')
    PROF = True
    build_fused('k_fused_prof.s')
```

```python
import re

TRANS = ('v_exp_f32', 'v_log_f32', 'v_rcp_f32', 'v_rsq_f32', 'v_sqrt_f32', 'v_sin_f32', 'v_cos_f32')

def parse_regs(tok):
    tok = tok.strip()
    neg = tok.lstrip('-')
    if neg.startswith('abs(') or neg.startswith('|'):
        neg = neg.replace('abs(', '').replace(')', '').replace('|', '')
    tok = neg
    m = re.fullmatch(r'([vas])(\d+)', tok)
    if m:
        return [(m.group(1), int(m.group(2)))]
    m = re.fullmatch(r'([vas])\[(\d+):(\d+)\]', tok)
    if m:
        return [(m.group(1), i) for i in range(int(m.group(2)), int(m.group(3)) + 1)]
    if tok == 'vcc':
        return [('s', 106), ('s', 107)]
    if tok == 'vcc_lo':
        return [('s', 106)]
    if tok == 'exec':
        return [('s', 126), ('s', 127)]
    if tok == 'm0':
        return [('s', 124)]
    return []

def split_ops(s):
    out, depth, cur = [], 0, ''
    for ch in s:
        if ch in '[(':
            depth += 1
        if ch in '])':
            depth -= 1
        if ch == ',' and depth == 0:
            out.append(cur.strip()); cur = ''
        else:
            cur += ch
    if cur.strip():
        out.append(cur.strip())
    return out

class Ins:
    def __init__(self, text):
        self.text = text
        t = text.split(';')[0].strip()
        parts = t.split(None, 1)
        self.op = parts[0]
        rest = parts[1] if len(parts) > 1 else ''
        ops = split_ops(rest)
        mods = ''
        if ops:
            sp = ops[-1].split(None, 1)
            if len(sp) > 1 and not ops[-1].startswith('hwreg'):
                ops[-1] = sp[0]; mods = sp[1]
        self.ops = ops
        self.mods = mods
        op = self.op
        self.kind = 'other'
        self.w = []; self.r = []
        self.srcC = []; self.srcAB = []
        R = lambda i: parse_regs(ops[i]) if i < len(ops) else []
        if op.startswith('v_mfma'):
            self.kind = 'mfma'
            self.w = R(0); self.srcAB = R(1) + R(2); self.srcC = R(3); self.r = self.srcAB + self.srcC
            self.passes = 4 if '16x16x32' in op else 8
        elif op.startswith('v_cmp'):
            self.kind = 'valu'
            self.w = R(0); self.r = R(1) + R(2)
            if op.startswith('v_cmpx'):
                self.w += parse_regs('exec')
        elif op.startswith('v_readfirstlane') or op.startswith('v_readlane'):
            self.kind = 'valu'; self.w = R(0); self.r = R(1) + R(2)
        elif op.startswith('v_permlane'):
            self.kind = 'valu'; self.w = R(0) + R(1); self.r = R(0) + R(1)
        elif op.startswith('v_add_co') or op.startswith('v_sub_co') or op.startswith('v_addc_co') or op.startswith('v_subb_co'):
            self.kind = 'valu'; self.w = R(0) + R(1); self.r = R(2) + R(3) + R(4)
        elif op.startswith('v_'):
            self.kind = 'valu'
            self.w = R(0)
            for i in range(1, len(ops)):
                self.r += R(i)
            if op.startswith('v_fmac') or op.startswith('v_dot2c') or op.startswith('v_writelane') or '_dpp' in op or 'd16' in op:
                self.r += R(0)
            if op.startswith('v_cndmask') and len(ops) == 3:
                self.r += parse_regs('vcc')
        elif op.startswith('ds_'):
            self.kind = 'ds'
            if op.startswith('ds_read') or '_rtn' in op or op.startswith('ds_bpermute') or op.startswith('ds_swizzle') or op.startswith('ds_permute'):
                self.w = R(0)
                for i in range(1, len(ops)):
                    self.r += R(i)
            else:
                for i in range(len(ops)):
                    self.r += R(i)
        elif op.startswith('buffer_') or op.startswith('global_'):
            self.kind = 'vmem'
            islds = (' lds' in (' ' + mods)) or ('_lds_' in op)
            self.islds = islds
            if op in ('buffer_inv', 'buffer_wbl2'):
                pass
            elif 'load' in op and not islds:
                self.w = R(0)
                for i in range(1, len(ops)):
                    self.r += R(i)
            elif 'atomic' in op and ('sc0' in mods) and op.startswith('global_'):
                self.w = R(0)
                for i in range(1, len(ops)):
                    self.r += R(i)
            else:
                for i in range(len(ops)):
                    self.r += R(i)
                if islds:
                    self.r += parse_regs('m0')
            self.store_data = []
            if 'store' in op and ('x4' in op or 'x3' in op):
                self.store_data = R(0) if op.startswith('buffer_') else R(1)
        elif op.startswith('s_'):
            self.kind = 'salu'
            if op.startswith('s_load') or op.startswith('s_memtime') or op.startswith('s_memrealtime'):
                self.kind = 'smem'; self.w = R(0)
                for i in range(1, len(ops)):
                    self.r += R(i)
            elif op.startswith('s_cmp') or op.startswith('s_bitcmp') or op.startswith('s_cbranch') or op.startswith('s_branch') or op in ('s_nop', 's_waitcnt', 's_barrier', 's_endpgm', 's_sleep', 's_setprio'):
                for i in range(len(ops)):
                    self.r += R(i)
            else:
                self.w = R(0)
                for i in range(1, len(ops)):
                    self.r += R(i)
                if 'saveexec' in op:
                    self.w += parse_regs('exec')
        self.is_trans = op.replace('_e32', '').replace('_e64', '') in TRANS
        self.is_dpp = ('_dpp' in op) or ('quad_perm' in mods) or ('row_' in mods)
        self.states = 1
        if op == 's_nop':
            self.states = int(ops[0], 0) + 1

def required_gap(p, c):
    need = 0
    pw = set(p.w); cr = set(c.r); cw = set(c.w)
    vw = {x for x in pw if x[0] in 'va'}
    sw = {x for x in pw if x[0] == 's'}
    if p.kind == 'valu':
        if c.kind == 'mfma' and vw & cr:
            need = max(need, 2)
        if c.kind == 'mfma' and ('s', 126) in pw:
            need = max(need, 4)
        if c.kind == 'valu':
            if c.is_dpp and vw & cr:
                need = max(need, 2)
            if c.is_dpp and ('s', 126) in pw:
                need = max(need, 5)
            if c.op.startswith('v_permlane') and vw & cr:
                need = max(need, 2)
            if (c.op.startswith('v_readfirstlane') or c.op.startswith('v_readlane')) and vw & cr:
                need = max(need, 1)
            if (c.op.startswith('v_readlane') or c.op.startswith('v_writelane')) and sw & cr:
                need = max(need, 4)
            if sw & cr:
                need = max(need, 2)
            if p.is_trans and not c.is_trans and vw & cr:
                need = max(need, 1)
            if ('sdwa' in p.op or 'op_sel' in p.mods) and (vw & (cr | cw)):
                need = max(need, 1)
            if ('s', 126) in pw and (c.op.startswith('v_readfirstlane') or c.op.startswith('v_readlane') or c.op.startswith('v_permlane')):
                need = max(need, 4)
        if c.kind == 'vmem' and sw & cr:
            need = max(need, 5)
        if c.kind in ('salu', 'smem') and sw & cr:
            need = max(need, 1)
        if p.is_trans and c.kind in ('vmem', 'ds', 'mfma') and vw & cr:
            need = max(need, 2)
    if p.kind == 'mfma':
        tab_other = {4: 8, 8: 12}[p.passes]
        tab_cover = {4: 6, 8: 10}[p.passes]
        if c.kind == 'mfma':
            if vw & set(c.srcAB):
                need = max(need, tab_other)
            if vw & set(c.srcC):
                if list(c.srcC) == list(p.w) and c.passes == p.passes:
                    pass
                else:
                    need = max(need, tab_cover)
            elif vw & cw:
                need = max(need, tab_cover)
        elif c.kind in ('valu', 'vmem', 'ds'):
            if vw & (cr | cw):
                need = max(need, tab_other)
        if c.kind in ('valu', 'ds', 'vmem') and set(p.srcC) & cw:
            need = max(need, {4: 3, 8: 7}[p.passes])
    if p.kind == 'salu':
        if ('s', 124) in pw and c.kind == 'vmem' and getattr(c, 'islds', False):
            need = max(need, 1)
    if p.kind == 'vmem' and getattr(p, 'store_data', None):
        if set(p.store_data) & cw:
            need = max(need, 2)
    return need

class Asm:
    glbl = 0
    def __init__(self):
        self.items = []
        self.vm_issued = 0
        self.lgkm_issued = 0
        self.lbl = 0
        self.hist = []

    def raw(self, s):
        self.items.append(s)

    def label(self, name):
        self.items.append(name + ':')

    def newlabel(self, base='L'):
        Asm.glbl += 1
        return '%s_%d' % (base, Asm.glbl)

    def __call__(self, text):
        for line in text.split('\n'):
            line = line.strip()
            if not line or line.startswith(';'):
                continue
            self.emit(line)

    def emit(self, text):
        ins = Ins(text)
        dist = 0
        need = 0
        for p in reversed(self.hist):
            g = required_gap(p, ins)
            if g > dist:
                need = max(need, g - dist)
            dist += p.states
            if dist >= 20:
                break
        while need > 0:
            n = min(need, 16)
            nop = Ins('s_nop %d' % (n - 1))
            self.items.append(nop); self.hist.append(nop)
            need -= n
        self.items.append(ins)
        self.hist.append(ins)
        if len(self.hist) > 40:
            self.hist = self.hist[-40:]
        tag = None
        if ins.kind == 'vmem':
            self.count_vm()
        elif ins.kind == 'ds':
            self.lgkm_issued += 1
            tag = ('lgkm', self.lgkm_issued)
        return tag

    def count_vm(self):
        if hasattr(self, 'vmw'):
            for w in self.active:
                self.vmw[w] += 1
        else:
            self.vm_issued += 1

    def vm_mark(self):
        return self.vm_issued
    def lgkm_mark(self):
        return self.lgkm_issued
    def wait_vm(self, mark):
        n = self.vm_issued - mark
        assert n >= 0
        n = min(n, 63)
        self.emit('s_waitcnt vmcnt(%d)' % n)
    def wait_lgkm(self, mark):
        n = self.lgkm_issued - mark
        assert n >= 0
        n = min(n, 15)
        self.emit('s_waitcnt lgkmcnt(%d)' % n)
    def flush_hazards(self):
        self.emit('s_nop 7'); self.emit('s_nop 3')

    def text(self):
        out = []
        for it in self.items:
            if isinstance(it, Ins):
                out.append('    ' + it.text)
            else:
                out.append(it)
        return '\n'.join(out) + '\n'

def vr(base, n=1):
    return 'v%d' % base if n == 1 else 'v[%d:%d]' % (base, base + n - 1)
def ar(base, n=1):
    return 'a%d' % base if n == 1 else 'a[%d:%d]' % (base, base + n - 1)
def sr(base, n=1):
    return 's%d' % base if n == 1 else 's[%d:%d]' % (base, base + n - 1)


class AsmW(Asm):
    def __init__(self, nw, s_w):
        super().__init__()
        self.nw = nw; self.s_w = s_w
        self.vmw = [0] * nw
        self.active = list(range(nw))
    def emit(self, text):
        n0 = self.vm_count if hasattr(self, 'vm_count') else 0
        r = super().emit(text)
        return r
    @property
    def vm_issued(self):
        return tuple(self.vmw)
    @vm_issued.setter
    def vm_issued(self, v):
        if isinstance(v, int):
            if not hasattr(self, 'vmw'):
                return
            raise RuntimeError('int assign')
        self.vmw = list(v)
    def vm_mark(self):
        return tuple(self.vmw)
    def wait_vm(self, *marks, exact=False):
        Ns = {}
        for w in self.active:
            n = min(self.vmw[w] - m[w] for m in marks)
            assert n >= 0, (w, self.vmw, marks)
            Ns[w] = min(n, 63)
        vals = sorted(set(Ns.values()))
        if len(vals) == 1 or not exact:
            Asm.emit(self, 's_waitcnt vmcnt(%d)' % vals[0]) if False else self.emit('s_waitcnt vmcnt(%d)' % vals[0])
            return
        Lend = self.newlabel('L_wx')
        for i, v in enumerate(reversed(vals)):
            self.emit('s_waitcnt vmcnt(%d)' % v)
            if i < len(vals) - 1:
                mask = sum(1 << w for w in self.active if Ns[w] == v)
                self.emit('s_bitcmp1_b32 %d, s%d' % (mask, self.s_w)) if mask <= 64 else (self.emit('s_mov_b32 s14, %d' % mask), self.emit('s_bitcmp1_b32 s14, s%d' % self.s_w))
                self.emit('s_cbranch_scc1 %s' % Lend)
        self.label(Lend)
    class _Only:
        def __init__(s, a, waves): s.a = a; s.w = waves
        def __enter__(s): s.old = s.a.active; s.a.active = [w for w in s.old if w in s.w]
        def __exit__(s, *x): s.a.active = s.old
    def only(self, waves):
        return AsmW._Only(self, list(waves))
```

```python
import sys, struct
from asmlib import *
import layout as LY

NAME = 'gated_mix__ssm_conv_h3__dense_activation_gelu__prompt'
HEADER = open('cdna_kernels/%s.s.ref' % NAME).read().split('; Override launch')[0]
OPT = dict(scl=' sc1', nt=1, lead=2, f1_pub=2, f1_issue=7, f1_chk=9, rot=1, arr=1, f2_pub=1,
           w2_g1=3, w2_gelu=0, conv_every=8)
NVG = 136

S_XCD, S_IDX, S_Q, S_J, S_R, S_CB, S_W = 3, 4, 5, 6, 7, 8, 9
TOK = 10
S_W3, S_WH = 46, 47
P_Q, P_K, P_V, P_SK, P_HK, P_D, P_BX, P_W1, P_B1, P_W2, P_B2, P_GW, P_OUT, P_DBG, P_WS = range(16, 46, 2)
R_X, R_K, R_V, R_W1, R_W2, R_WS, R_OUT, R_HK = range(48, 80, 4)
ST = 80
NB_SD = 2048 * 1280
SCS = ' sc1'
def SCL(): return OPT.get('scl', '')
def NTX(): return ' nt' if OPT.get('ntx', 0) else ''
def NT(): return ' nt' if OPT.get('nt', 0) else ''
V_L16, V_FA, V_TOK, V_POLL, V_PA, V_TS = 128, 129, 130, 132, 134, 135
PROF = False

def f32hex(x): return '0x%08x' % struct.unpack('<I', struct.pack('<f', x))[0]
def srd(a, r, p, nbytes):
    a('s_mov_b32 s%d, s%d' % (r, p))
    a('s_and_b32 s%d, s%d, 0xffff' % (r + 1, p + 1))
    a('s_mov_b32 s%d, 0x%x' % (r + 2, nbytes))
    a('s_mov_b32 s%d, 0x20000' % (r + 3))
def scsel(a, dst, vt, vf):
    a('s_mov_b32 s%d, %d' % (dst, vf))
    a('s_cmov_b32 s%d, %d' % (dst, vt))
def unpack(a, dst_lo, dst_hi, src):
    a('v_lshlrev_b32 v%d, 16, v%d' % (dst_lo, src))
    a('v_and_b32 v%d, 0xffff0000, v%d' % (dst_hi, src))
def do(a, x):
    if callable(x): x(a)
    else: a(x)

class BG:
    def __init__(self, items=None):
        self.items = list(items or []); self.i = 0
    def add(self, items): self.items += items
    def left(self): return len(self.items) - self.i
    def emit(self, a, n=1):
        for _ in range(n):
            if self.i < len(self.items):
                do(a, self.items[self.i]); self.i += 1
    def drain(self, a): self.emit(a, self.left())

CNT = 0
RB = 77824
SLOT = 28672
NSLOT = 3
CB = 256
LKV = 256 + 2 * 25856
LW2 = LKV + 10240
PART = RB
YL = 256

CODE_PIECES = 4
def prologue(a, end_label):
    a('s_cmp_ge_u32 s2, 256')
    a('s_cbranch_scc1 %s' % end_label)
    a('s_load_dwordx16 s[16:31], s[0:1], 0')
    a('s_load_dwordx8 s[32:39], s[0:1], 64')
    a('s_load_dwordx4 s[40:43], s[0:1], 96')
    a('s_load_dwordx2 s[44:45], s[0:1], 112')
    a('s_and_b32 s%d, s2, 7' % S_XCD)
    a('s_lshr_b32 s%d, s2, 3' % S_IDX)
    a('s_getpc_b64 s[12:13]')
    a('s_and_b32 s14, s%d, 3' % S_IDX)
    a('s_min_u32 s14, s14, %d' % (CODE_PIECES - 1))
    a('s_lshl_b32 s14, s14, 13')
    a('s_add_u32 s12, s12, s14')
    a('s_addc_u32 s13, s13, 0')
    a('v_lshlrev_b32 v2, 4, v0')
    a('v_mov_b32 v3, s13')
    a('v_add_co_u32 v2, vcc, s12, v2')
    a('v_addc_co_u32 v3, vcc, 0, v3, vcc')
    a('global_load_dwordx4 a[116:119], v[2:3], off')
    a('v_lshrrev_b32 v2, 6, v0')
    a('v_and_b32 v1, 63, v0')
    a('s_and_b32 s%d, s%d, 3' % (S_Q, S_IDX))
    a('v_readfirstlane_b32 s%d, v2' % S_W)
    a('v_lshlrev_b32 v%d, 4, v1' % V_L16)
    a('v_mov_b32 v%d, 0' % V_PA)
    a('s_lshl_b32 s%d, s%d, 2' % (ST, S_XCD))
    a('s_lshr_b32 s%d, s%d, 2' % (S_J, S_IDX))
    if OPT['arr']:
        a('s_lshr_b32 s%d, s%d, 1' % (S_R, S_XCD))
        a('s_lshl_b32 s%d, s%d, 2' % (S_R, S_R))
        a('s_add_u32 s%d, s%d, s%d' % (S_R, S_R, S_Q))
        a('s_and_b32 s%d, s%d, 1' % (S_CB, S_XCD))
        a('s_lshl_b32 s%d, s%d, 3' % (S_CB, S_CB))
        a('s_add_u32 s%d, s%d, s%d' % (S_CB, S_CB, S_J))
    else:
        a('s_and_b32 s%d, s%d, 1' % (S_R, S_IDX))
        a('s_lshl_b32 s%d, s%d, 1' % (ST + 1, S_XCD))
        a('s_add_u32 s%d, s%d, s%d' % (S_R, S_R, ST + 1))
        a('s_lshr_b32 s%d, s%d, 1' % (S_CB, S_IDX))
    a('s_mul_i32 s15, s%d, 3' % S_Q)
    a('s_add_u32 s15, s15, s%d' % S_J)
    a('s_sub_u32 s14, s15, 10')
    a('s_cmp_ge_u32 s15, 10')
    a('s_cselect_b32 s15, s14, s15')
    if not OPT['rot']:
        a('s_mov_b32 s15, 0')
    a('s_add_u32 s%d, s%d, s%d' % (S_Q, S_Q, ST))
    a('s_and_b32 s%d, s%d, 3' % (S_W3, S_W))
    a('s_lshr_b32 s%d, s%d, 2' % (S_WH, S_W))
    a('v_mov_b32 v2, 0')
    a('v_lshlrev_b32 v3, 2, v1')
    a('ds_write_b32 v3, v2 offset:%d' % CNT)

def srds(a):
    a('s_waitcnt lgkmcnt(0)')
    srd(a, R_K, P_K, NB_SD)
    srd(a, R_V, P_V, NB_SD)
    srd(a, R_W2, P_W2, 1536 * 1280)
    srd(a, R_X, P_Q, NB_SD)
def srds2(a):
    srd(a, R_W1, P_W1, 640 * 3072)
    srd(a, R_WS, P_WS, 0x10000000)
    srd(a, R_OUT, P_OUT, NB_SD)

class Prep:
    KR, VR_, SKR = 36, 64, 80

    def addr(self, a):
        a('v_mul_u32_u24 v12, 6554, v0')
        a('v_lshrrev_b32 v12, 16, v12')
        a('v_mul_u32_u24 v13, 10, v12')
        a('v_sub_u32 v13, v0, v13')
        a('s_mul_i32 s%d, s%d, %d' % (ST, S_Q, 64 * 1280))
        a('s_mul_i32 s%d, s%d, 160' % (ST + 1, S_J))
        a('s_add_u32 s%d, s%d, s%d' % (ST, ST, ST + 1))
        a('v_mul_u32_u24 v8, 5120, v12')
        a('v_lshl_add_u32 v8, v13, 4, v8')
        a('v_add_u32 v8, s%d, v8' % ST)
        a('v_subrev_u32 v9, 3840, v8')
        a('s_mul_i32 s%d, s%d, 640' % (ST + 1, S_J))
        a('v_lshlrev_b32 v10, 6, v13')
        a('v_add_u32 v10, s%d, v10' % (ST + 1))

    def loads(self, a):
        L_join = a.newlabel('L_pl')
        KR, VR_, SKR = self.KR, self.VR_, self.SKR
        a('s_cmp_ge_u32 s%d, 3' % S_W)
        a('s_cbranch_scc1 %s' % L_join)
        ctx = a.only(range(3)); ctx.__enter__()
        a('v_cmp_gt_u32 vcc, 160, v0')
        a('s_and_saveexec_b64 s[%d:%d], vcc' % (ST + 2, ST + 3))
        for r in range(4):
            a('buffer_load_dwordx4 %s, v8, s[%d:%d], 0 offen offset:%d%s' % (vr(KR + 12 + 4 * r, 4), R_K, R_K + 3, 1280 * r, NT()))
        for r in range(3):
            a('buffer_load_dwordx4 %s, v9, s[%d:%d], 0 offen offset:%d%s' % (vr(KR + 4 * r, 4), R_K, R_K + 3, 1280 * r, NT()))
        for i in range(4):
            a('global_load_dwordx4 %s, v10, s[%d:%d] offset:%d' % (vr(SKR + 4 * i, 4), P_SK, P_SK + 1, 16 * i))
        for r in range(4):
            a('buffer_load_dwordx4 %s, v8, s[%d:%d], 0 offen offset:%d%s' % (vr(VR_ + 4 * r, 4), R_V, R_V + 3, 1280 * r, NT()))
        for r in range(4):
            a('buffer_load_dwordx4 %s, v8, s[%d:%d], 0 offen offset:%d%s' % (ar(16 + 4 * r, 4), R_W2, R_W2 + 3, 1280 * r, NT()))
        a('s_mov_b64 exec, -1')
        ctx.__exit__()
        a.label(L_join)

    def gate_loads(self, a):
        L_join = a.newlabel('L_gl')
        a('s_sub_u32 s%d, s%d, 5' % (ST, S_W))
        a('s_cmp_ge_u32 s%d, 2' % ST)
        a('s_cbranch_scc1 %s' % L_join)
        ctx = a.only([5, 6]); ctx.__enter__()
        a('v_lshrrev_b32 v14, 4, v1')
        a('v_and_b32 v15, 15, v1')
        a('s_lshl_b32 s%d, s%d, 2' % (ST, ST))
        a('s_lshl_b32 s%d, s%d, 7' % (ST + 1, S_R))
        a('s_add_u32 s%d, s%d, s%d' % (ST, ST, ST + 1))
        a('s_lshl_b32 s%d, s%d, 3' % (ST + 1, S_CB))
        a('s_add_u32 s%d, s%d, s%d' % (ST, ST, ST + 1))
        a('v_add_u32 v14, s%d, v14' % ST)
        a('v_mul_u32_u24 v8, 1280, v14')
        a('v_lshlrev_b32 v9, 4, v15')
        a('v_add_u32 v8, v8, v9')
        for n in range(5):
            a('buffer_load_dwordx4 %s, v8, s[%d:%d], 0 offen offset:%d' % (vr(76 + 4 * n, 4), R_X, R_X + 3, 256 * n))
            a('global_load_dwordx4 %s, v9, s[%d:%d] offset:%d' % (vr(96 + 4 * n, 4), P_GW, P_GW + 1, 256 * n))
        ctx.__exit__()
        a.label(L_join)
        self.m_gate = a.vm_mark()

    def gate_compute(self, a):
        L_join = a.newlabel('L_gc')
        a('s_sub_u32 s%d, s%d, 5' % (ST, S_W))
        a('s_cmp_ge_u32 s%d, 2' % ST)
        a('s_cbranch_scc1 %s' % L_join)
        ctx = a.only([5, 6]); ctx.__enter__()
        a.wait_vm(self.m_gate)
        a('v_mov_b32 v10, 0')
        a('v_mov_b32 v11, 0')
        for n in range(20):
            acc = 10 + (n & 1)
            a('v_dot2_f32_bf16 v%d, v%d, v%d, v%d' % (acc, 76 + n, 96 + n, acc))
        a('s_nop 3')
        a('v_add_f32 v10, v10, v11')
        a('v_add_f32_dpp v10, v10, v10 quad_perm:[1,0,3,2] row_mask:0xf bank_mask:0xf')
        a('v_add_f32_dpp v10, v10, v10 quad_perm:[2,3,0,1] row_mask:0xf bank_mask:0xf')
        a('v_add_f32_dpp v10, v10, v10 row_half_mirror row_mask:0xf bank_mask:0xf')
        a('v_add_f32_dpp v10, v10, v10 row_mirror row_mask:0xf bank_mask:0xf')
        a('v_cvt_pk_bf16_f32 v10, v10, v10')
        a('v_lshlrev_b32 v10, 16, v10')
        a('v_mul_f32 v10, 0xbfb8aa3b, v10')
        a('v_exp_f32 v10, v10')
        a('v_add_f32 v10, 1.0, v10')
        a('v_rcp_f32 v10, v10')
        a('v_cvt_pk_bf16_f32 v10, v10, v10')
        a('v_lshlrev_b32 v10, 16, v10')
        a('v_lshlrev_b32 v4, 2, v14')
        a('v_add_u32 v4, 0x%x, v4' % LY.G)
        a('v_cmp_eq_u32 vcc, 0, v15')
        a('s_and_saveexec_b64 s[%d:%d], vcc' % (ST + 2, ST + 3))
        a('buffer_store_dword v10, v4, s[%d:%d], 0 offen%s' % (R_WS, R_WS + 3, SCS))
        a('s_mov_b64 exec, s[%d:%d]' % (ST + 2, ST + 3))
        ctx.__exit__()
        a.label(L_join)

    def compute(self, a, ncommon):
        L_join = a.newlabel('L_prepjoin')
        KR, VR_, SKR = self.KR, self.VR_, self.SKR
        a('s_cmp_ge_u32 s%d, 3' % S_W)
        a('s_cbranch_scc1 %s' % L_join)
        a('v_mul_u32_u24 v8, 640, v12')
        a('v_lshlrev_b32 v9, 4, v13')
        a('v_sub_u32 v7, v9, v8')
        a('v_add_u32 v7, %d, v7' % (LKV + 60 * 160))
        a('v_add_u32 v8, v8, v9')
        a('v_add_u32 v8, %d, v8' % LW2)
        KF, SF, AC, VF = 96, 110, 118, 20
        for d in range(4):
            if d == 0: a('s_waitcnt vmcnt(%d)' % (ncommon + 8))
            for r in range(7):
                unpack(a, KF + 2 * r, KF + 2 * r + 1, KR + 4 * r + d)
            for h in range(2):
                unpack(a, SF + 0 + h, SF + 2 + h, SKR + 2 * (2 * d + h))
                unpack(a, SF + 4 + h, SF + 6 + h, SKR + 2 * (2 * d + h) + 1)
            for j in range(4):
                for r in range(4):
                    acc = vr(AC + 2 * r, 2); kf = vr(KF + 2 * (r + 3 - j), 2); sf = vr(SF + 2 * j, 2)
                    if j == 0: a('v_pk_mul_f32 %s, %s, %s' % (acc, kf, sf))
                    else: a('v_pk_fma_f32 %s, %s, %s, %s' % (acc, kf, sf, acc))
            if d == 0: a('s_waitcnt vmcnt(%d)' % (ncommon + 4))
            for r in range(4):
                unpack(a, VF + 2 * r, VF + 2 * r + 1, VR_ + 4 * r + d)
            for r in range(4):
                a('v_pk_mul_f32 %s, %s, %s' % (vr(AC + 2 * r, 2), vr(AC + 2 * r, 2), vr(VF + 2 * r, 2)))
            for r in range(4):
                a('v_cvt_pk_bf16_f32 v%d, v%d, v%d' % (VR_ + 4 * r + d, AC + 2 * r, AC + 2 * r + 1))
        a('v_cmp_gt_u32 vcc, 160, v0')
        a('s_and_saveexec_b64 s[%d:%d], vcc' % (ST + 2, ST + 3))
        for r in range(4):
            a('ds_write_b128 v7, %s offset:%d' % (vr(VR_ + 4 * r, 4), (3 - r) * 160))
        a('s_waitcnt vmcnt(%d)' % ncommon)
        for r in range(4):
            a('ds_write_b128 v8, %s offset:%d' % (ar(16 + 4 * r, 4), r * 160))
        a('v_mov_b32 v2, %d' % (CNT + 32))
        a('v_mov_b32 v3, 1')
        a('s_mov_b64 exec, 1')
        a('ds_add_u32 v2, v3')
        a('s_mov_b64 exec, -1')
        a.label(L_join)
        L = a.newlabel('L_ps'); Lok = a.newlabel('L_psok')
        a('v_mov_b32 v2, %d' % (CNT + 32))
        a('s_mov_b32 s14, %d' % (SPIN_MAX * 8))
        a.label(L)
        a('ds_read_b32 v3, v2')
        a('s_waitcnt lgkmcnt(0)')
        a('v_readfirstlane_b32 s12, v3')
        a('s_cmp_ge_u32 s12, 3')
        a('s_cbranch_scc1 %s' % Lok)
        a('s_sub_u32 s14, s14, 1')
        a('s_cmp_eq_u32 s14, 0')
        a('s_cbranch_scc1 %s' % Lok)
        a('s_sleep 1')
        a('s_branch %s' % L)
        a.label(Lok)

    def transpose(self, a):
        L_skip = a.newlabel('L_prepskip')
        O = 36
        lB = a.lgkm_issued
        a('v_and_b32 v2, 15, v1')
        a('v_lshrrev_b32 v3, 4, v1')
        a('v_lshrrev_b32 v4, 2, v2')
        a('v_and_b32 v5, 3, v1')
        a('s_and_b32 s%d, s%d, 1' % (ST, S_W))
        a('s_cmp_ge_u32 s%d, 2' % S_W)
        a('s_cselect_b32 s%d, 2, 3' % (ST + 1))
        scsel(a, ST + 2, 2560, 640)
        scsel(a, ST + 3, LW2, LKV)
        scsel(a, ST + 4, 1024, 65536)
        a('s_mul_i32 s%d, s%d, %d' % (ST + 5, ST, 32 * 160))
        a('s_add_u32 s%d, s%d, s%d' % (ST + 3, ST + 3, ST + 5))
        a('v_lshlrev_b32 v6, s%d, v3' % (ST + 1))
        a('v_add_u32 v6, v6, v4')
        a('v_mul_u32_u24 v6, 160, v6')
        a('v_lshl_add_u32 v6, v5, 3, v6')
        a('v_add_u32 v6, s%d, v6' % (ST + 3))
        a('v_add_u32 v7, s%d, v6' % (ST + 2))
        for u in range(5):
            a('ds_read_b64_tr_b16 %s, v6 offset:%d' % (vr(O + 4 * u, 2), 32 * u))
            a('ds_read_b64_tr_b16 %s, v7 offset:%d' % (vr(O + 2 + 4 * u, 2), 32 * u))
        a('s_mul_i32 s%d, s%d, %d' % (ST + 5, S_J, 80 * 4096))
        a('s_lshl_b32 s%d, s%d, 7' % (ST + 6, S_Q))
        a('s_sub_u32 s%d, s%d, s%d' % (ST + 5, ST + 5, ST + 6))
        a('s_lshl_b32 s%d, s%d, 6' % (ST + 6, ST))
        a('s_add_u32 s%d, s%d, s%d' % (ST + 5, ST + 5, ST + 6))
        a('s_add_u32 s%d, s%d, %d' % (ST + 5, ST + 5, LY.KVT + 2 * 1984))
        a('v_lshlrev_b32 v8, 12, v2')
        a('v_lshl_add_u32 v8, v3, 4, v8')
        a('s_mul_i32 s%d, s%d, 48' % (ST + 6, S_J))
        a('s_lshl_b32 s%d, s%d, 1' % (13, S_Q))
        a('s_add_u32 s%d, s%d, s%d' % (ST + 6, ST + 6, 13))
        a('s_add_u32 s%d, s%d, s%d' % (ST + 6, ST + 6, ST))
        a('s_mul_i32 s%d, s%d, 5120' % (ST + 6, ST + 6))
        a('s_add_u32 s%d, s%d, 0x%x' % (ST + 6, ST + 6, LY.W2T))
        a('s_cmp_ge_u32 s%d, 2' % S_W)
        a('s_cselect_b32 s%d, s%d, s%d' % (ST + 5, ST + 6, ST + 5))
        a('s_cselect_b64 vcc, -1, 0')
        a('v_cndmask_b32 v8, v8, v%d, vcc' % V_L16)
        a('s_cselect_b32 s13, s%d, 0' % S_Q)
        a('s_cmp_ge_u32 s13, 24')
        a('s_waitcnt lgkmcnt(0)')
        a('s_cbranch_scc1 %s' % L_skip)
        with a.only([0, 1]):
            for u in range(5):
                a('buffer_store_dwordx4 %s, v8, s[%d:%d], s%d offen%s' % (vr(O + 4 * u, 4), R_WS, R_WS + 3, ST + 5, SCS))
                if u < 4:
                    a('s_add_u32 s%d, s%d, s%d' % (ST + 5, ST + 5, ST + 4))
        a.label(L_skip)
        a('s_nop 1')
        a.lgkm_issued = lB
        self.m_st = a.vm_mark()

class G1:
    VX, VW, VB = 16, 18, 20
    ACC, BIAS, BRAW = 36, 60, 116
    AF, BF = 80, 104
    SX, SWO = 96, 97

    def setup(self, a):
        a('v_lshrrev_b32 v2, 3, v1')
        a('v_and_b32 v3, 7, v1')
        a('s_lshl_b32 s%d, s%d, 7' % (ST, S_R))
        a('s_lshl_b32 s%d, s%d, 4' % (ST + 1, S_W3))
        a('s_add_u32 s%d, s%d, s%d' % (ST, ST, ST + 1))
        a('s_mul_i32 s%d, s%d, 1280' % (ST, ST))
        for i in range(2):
            a('v_add_u32 v4, %d, v2' % (8 * i))
            a('v_bfe_u32 v5, v4, 1, 3')
            a('v_xor_b32 v5, v5, v3')
            a('v_mul_u32_u24 v4, 1280, v4')
            a('v_lshl_add_u32 v4, v5, 4, v4')
            if i == 0: a('v_add_u32 v%d, s%d, v4' % (self.VX, ST))
            else:
                a('v_add_u32 v4, s%d, v4' % ST)
                a('v_subrev_u32 v%d, %d, v4' % (self.VX + i, 1024 * i))
        a('s_mul_i32 s%d, s%d, %d' % (ST, S_W3, 8 * 3072))
        a('s_mul_i32 s%d, s%d, 192' % (ST + 1, S_CB))
        a('s_add_u32 s%d, s%d, s%d' % (ST, ST, ST + 1))
        a('s_and_b32 s%d, s%d, 1' % (ST + 1, S_W))
        a('s_lshl_b32 s%d, s%d, 1' % (ST + 1, ST + 1))
        for i in range(2):
            a('v_add_u32 v4, %d, v1' % (64 * i))
            a('v_mul_u32_u24 v5, 5462, v4')
            a('v_lshrrev_b32 v5, 16, v5')
            a('v_mul_u32_u24 v6, 12, v5')
            a('v_sub_u32 v6, v4, v6')
            a('v_subrev_u32 v6, s%d, v6' % (ST + 1))
            a('v_add_u32 v7, 12, v6')
            a('v_min_u32 v6, v6, v7')
            a('v_mul_u32_u24 v5, 3072, v5')
            a('v_lshl_add_u32 v5, v6, 4, v5')
            a('v_add_u32 v5, s%d, v5' % ST)
            a('v_subrev_u32 v%d, %d, v5' % (self.VW + i, 1024 * i))
        a('s_mul_i32 s89, s%d, %d' % (S_WH, 64 * 1280))
        a('s_mul_i32 s87, s%d, %d' % (S_WH, 32 * 3072))
        a('s_add_u32 s88, s89, 1280')
        a('s_lshl_b32 s%d, s15, 7' % self.SX)
        a('s_add_u32 s%d, s%d, s89' % (self.SX, self.SX))
        a('s_mul_i32 s%d, s15, %d' % (self.SWO, 64 * 3072))
        a('s_add_u32 s%d, s%d, s87' % (self.SWO, self.SWO))
        self.early_marks = []
        a('s_lshl_b32 s98, s%d, 11' % S_W)
        a('s_mul_i32 s99, s%d, 1536' % S_W)
        a('s_add_u32 s99, s99, 16384')
        self.marks = {}

    def dma_items(self, stage):
        slot = RB + SLOT * (stage % NSLOT)
        L = []
        def first(a):
            a('s_add_u32 m0, s98, %d' % slot)
            a('buffer_load_dwordx4 v%d, s[%d:%d], s%d offen%s lds' % (self.VX, R_X, R_X + 3, self.SX, NTX()))
        L.append(first)
        L.append('buffer_load_dwordx4 v%d, s[%d:%d], s%d offen offset:1024%s lds' % (self.VX + 1, R_X, R_X + 3, self.SX, NTX()))
        def mid(a):
            a('s_add_u32 m0, s99, %d' % slot)
            a('s_nop 0')
            a('buffer_load_dwordx4 v%d, s[%d:%d], s%d offen lds' % (self.VW, R_W1, R_W1 + 3, self.SWO))
        L.append(mid)
        def last(a):
            a('s_mov_b64 exec, 0xffffffff')
            a('buffer_load_dwordx4 v%d, s[%d:%d], s%d offen offset:1024 lds' % (self.VW + 1, R_W1, R_W1 + 3, self.SWO))
            a('s_mov_b64 exec, -1')
            self.marks[stage] = a.vm_mark()
            self.adv(a)
        L.append(last)
        return L

    def dma(self, a, stage):
        for x in self.dma_items(stage):
            do(a, x)

    def dma_early(self, a, stages):
        ends = {}
        for stage in stages:
            slot = RB + SLOT * (stage % NSLOT)
            for u in range(2):
                a('s_add_u32 m0, s98, %d' % (slot - 8192 * u))
                if u: a('s_sub_u32 s12, s%d, %d' % (self.SX, 64 * 1280))
                so = 12 if u else self.SX
                a('buffer_load_dwordx4 v%d, s[%d:%d], s%d offen%s lds' % (self.VX, R_X, R_X + 3, so, NTX()))
                a('buffer_load_dwordx4 v%d, s[%d:%d], s%d offen offset:1024%s lds' % (self.VX + 1, R_X, R_X + 3, so, NTX()))
                a('s_add_u32 m0, s99, %d' % (slot - 6144 * u))
                if u: a('s_sub_u32 s12, s%d, %d' % (self.SWO, 32 * 3072))
                so = 12 if u else self.SWO
                a('buffer_load_dwordx4 v%d, s[%d:%d], s%d offen lds' % (self.VW, R_W1, R_W1 + 3, so))
                a('s_mov_b64 exec, 0xffffffff')
                a('buffer_load_dwordx4 v%d, s[%d:%d], s%d offen offset:1024 lds' % (self.VW + 1, R_W1, R_W1 + 3, so))
                a('s_mov_b64 exec, -1')
            self.marks[stage] = a.vm_mark()
            self.adv(a)

    def adv(self, a):
        a('s_add_u32 s%d, s%d, 128' % (self.SX, self.SX))
        a('s_add_u32 s%d, s%d, %d' % (self.SWO, self.SWO, 64 * 3072))
        a('s_cmp_eq_u32 s%d, s%d' % (self.SX, 88))
        a('s_cselect_b32 s%d, s%d, s%d' % (self.SX, 89, self.SX))
        a('s_cselect_b32 s%d, s%d, s%d' % (self.SWO, 87, self.SWO))

    def ftsel(self, a, dst, lt):
        a('s_cmp_eq_u32 s%d, 0' % S_WH)
        a('s_cselect_b32 s%d, %d, %d' % (dst, lt, (4, 5, 3)[lt]))

    def bias_load(self, a):
        a('v_lshrrev_b32 v3, 4, v1')
        a('s_mul_i32 s%d, s%d, 192' % (ST, S_CB))
        a('v_lshlrev_b32 v4, 3, v3')
        a('v_add_u32 v4, s%d, v4' % ST)
        for lt in range(3):
            self.ftsel(a, ST + 1, lt)
            a('s_lshl_b32 s%d, s%d, 5' % (ST + 1, ST + 1))
            a('v_add_u32 v5, s%d, v4' % (ST + 1))
            a('global_load_dwordx2 %s, v5, s[%d:%d]' % (ar(8 + 2 * lt, 2), P_B1, P_B1 + 1))
        self.m_bias = a.vm_mark()

    def setup2(self, a):
        a('v_lshrrev_b32 v3, 4, v1')
        a('v_and_b32 v2, 15, v1')
        a('v_lshrrev_b32 v4, 1, v2')
        a('v_xor_b32 v4, v4, v3')
        a('v_lshlrev_b32 v4, 4, v4')
        a('v_lshl_add_u32 v4, v2, 7, v4')
        a('s_lshl_b32 s%d, s%d, 12' % (ST, S_W3))
        a('v_add_u32 v4, s%d, v4' % ST)
        a('v_xor_b32 v5, 64, v4')
        a('v_lshrrev_b32 v6, 2, v2')
        a('v_lshl_add_u32 v6, v3, 3, v6')
        a('v_mul_u32_u24 v6, 192, v6')
        a('v_and_b32 v7, 3, v1')
        a('v_lshl_add_u32 v6, v7, 3, v6')
        a('v_and_b32 v7, 1, v3')
        for lt in range(3):
            self.ftsel(a, ST, lt)
            a('v_add_u32 v8, s%d, v7' % ST)
            a('v_subrev_u32 v9, 6, v8')
            a('v_min_u32 v8, v8, v9')
            a('v_lshl_add_u32 v%d, v8, 5, v6' % (9 + lt + 1))
        for grp in range(2):
            off = RB + 2 * SLOT * grp
            a('v_add_u32 v%d, %d, v4' % (self.VB + 5 * grp, off))
            a('v_add_u32 v%d, %d, v5' % (self.VB + 5 * grp + 1, off))
            for lt in range(3):
                a('v_add_u32 v%d, %d, v%d' % (self.VB + 5 * grp + 2 + lt, off + 16384, 10 + lt))

    def unpack_bias(self, a):
        a.wait_vm(self.m_bias)
        for n in range(6):
            a('v_accvgpr_read_b32 v%d, a%d' % (2 + n, 8 + n))
        for n in range(6):
            unpack(a, self.BIAS + 2 * n, self.BIAS + 2 * n + 1, 2 + n)

    def reads(self, stage, kk):
        slot = stage % NSLOT
        grp, so = slot // 2, (slot % 2) * SLOT
        L = []
        for st in range(2):
            L.append('ds_read_b128 %s, v%d offset:%d' % (ar(self.BF + 8 * kk + 4 * st, 4), self.VB + 5 * grp + kk, so + 2048 * st))
        for lt in range(3):
            for h in range(2):
                L.append('ds_read_b64_tr_b16 %s, v%d offset:%d' % (ar(self.AF + 12 * kk + 4 * lt + 2 * h, 2), self.VB + 5 * grp + 2 + lt, so + 6144 * kk + 768 * h))
        return L

    def mfma(self, kk, lt, st, first):
        acc = vr(self.ACC + 8 * lt + 4 * st, 4)
        c = vr(self.BIAS + 4 * lt, 4) if first else acc
        return 'v_mfma_f32_16x16x32_bf16 %s, %s, %s, %s' % (acc, ar(self.AF + 12 * kk + 4 * lt, 4), ar(self.BF + 8 * kk + 4 * st, 4), c)

    def block(self, a, kk, first, rmarks, nxt, bg):
        newmarks = []
        ni = 0
        for lt in range(3):
            if rmarks is not None:
                a.wait_lgkm(rmarks[2 + 2 * lt + 1])
            for st in range(2):
                a(self.mfma(kk, lt, st, first))
                if ni < len(nxt):
                    for _ in range(2):
                        a(nxt[ni]); newmarks.append(a.lgkm_mark()); ni += 1
                elif bg is not None:
                    bg.emit(a, 1)
        return newmarks

    def main(self, a, pre, post, mid, bgs, prebar):
        lead = OPT['lead']
        pm = None
        for i in range(10):
            a('s_waitcnt lgkmcnt(0)')
            a.wait_vm(*([self.marks[i]] + ([pre[i]()] if i in pre else [])), exact=True)
            if i in prebar:
                prebar[i](a)
            a('s_barrier')
            bg = BG()
            for k in range(i + 1, min(i + lead, 9) + 1):
                if k not in self.marks and k not in getattr(self, 'queued', set()):
                    bg.add(self.dma_items(k))
            if i in bgs:
                bg.add(bgs[i])
            rd = self.reads(i, 0)
            if pm is None:
                m0 = []
                for x in rd:
                    a(x); m0.append(a.lgkm_mark())
                bg.emit(a, 2)
            else:
                m0 = self.block(a, 1, False, None, rd, bg)
            if i in post:
                post[i](a)
            pm = self.block(a, 0, i == 0, m0, self.reads(i, 1), bg)
            bg.drain(a)
            if i in mid:
                mid[i](a)
        self.block(a, 1, False, pm, [], bgs.get(10))

    def epilogue(self, a, bg, per):
        C1, C2, ONE, T, O = 60, 62, 64, 66, 90
        c1 = -2.0 * 1.4426950408889634 * 0.7978845608028654
        for r, val in ((C1, c1), (C2, c1 * 0.044715), (ONE, 1.0)):
            a('v_mov_b32 v%d, %s' % (r, f32hex(val)))
            a('v_mov_b32 v%d, %s' % (r + 1, f32hex(val)))
        a('s_lshl_b32 s%d, s%d, 3' % (ST, S_R))
        a('s_lshl_b32 s%d, s%d, 1' % (ST + 1, S_W3))
        a('s_add_u32 s%d, s%d, s%d' % (ST, ST, ST + 1))
        a('s_mul_i32 s%d, s%d, 48' % (ST, ST))
        a('s_mul_i32 s%d, s%d, 3' % (ST + 1, S_CB))
        a('s_add_u32 s%d, s%d, s%d' % (ST, ST, ST + 1))
        a('s_lshl_b32 s%d, s%d, 10' % (ST, ST))
        a('s_add_u32 s%d, s%d, 0x%x' % (ST, ST, LY.HF))
        a('s_add_u32 s%d, s%d, %d' % (ST + 1, ST, 48 * 1024))
        a('s_lshl_b32 s%d, s%d, 11' % (ST + 2, S_WH))
        a('v_add_u32 v2, s%d, v%d' % (ST + 2, V_L16))
        a('s_lshl_b32 s%d, s%d, 3' % (ST + 2, S_WH))
        a('v_add_u32 v3, s%d, v%d' % (ST + 2, V_L16))
        for st in range(2):
            t0 = T + 12 * st; o = O + 6 * st
            prs = [self.ACC + 8 * lt + 4 * st + 2 * p for lt in range(3) for p in range(2)]
            for n, x in enumerate(prs):
                a('v_pk_mul_f32 %s, %s, %s' % (vr(t0 + 2 * n, 2), vr(x, 2), vr(x, 2)))
            for n, x in enumerate(prs):
                a('v_pk_fma_f32 %s, %s, %s, %s' % (vr(t0 + 2 * n, 2), vr(t0 + 2 * n, 2), vr(C2, 2), vr(C1, 2)))
            for n, x in enumerate(prs):
                a('v_pk_mul_f32 %s, %s, %s' % (vr(t0 + 2 * n, 2), vr(t0 + 2 * n, 2), vr(x, 2)))
            bg.emit(a, (per + 2) // 3)
            for n in range(12):
                a('v_exp_f32 v%d, v%d' % (t0 + n, t0 + n))
            for n, x in enumerate(prs):
                a('v_pk_add_f32 %s, %s, %s' % (vr(t0 + 2 * n, 2), vr(t0 + 2 * n, 2), vr(ONE, 2)))
            bg.emit(a, (per + 1) // 3)
            for n in range(12):
                a('v_rcp_f32 v%d, v%d' % (t0 + n, t0 + n))
            for n, x in enumerate(prs):
                a('v_pk_mul_f32 %s, %s, %s' % (vr(t0 + 2 * n, 2), vr(t0 + 2 * n, 2), vr(x, 2)))
            bg.emit(a, per // 3)
            for n in range(6):
                a('v_cvt_pk_bf16_f32 v%d, v%d, v%d' % (o + n, t0 + 2 * n, t0 + 2 * n + 1))
            a('buffer_store_dwordx4 %s, v2, s[%d:%d], s%d offen%s' % (vr(o, 4), R_WS, R_WS + 3, ST + st, SCS))
            a('buffer_store_dwordx2 %s, v3, s[%d:%d], s%d offen offset:1024%s' % (vr(o + 4, 2), R_WS, R_WS + 3, ST + st, SCS))

PP = 4160
QO0 = 16656
QO1 = QO0 + 4640
CS = 25856
XCH = RB
TOP = [7, 6, 5, 2]
BOT = [4, 3, 1, 0]

class Conv:
    VADR = 16
    FR, ACC = 28, 92
    PRAW, QRAW, PT = 102, 114, 72
    SCH = 90
    S_D = 93
    S_C0 = 86

    def channels(self, a):
        a('s_mul_i32 s%d, s%d, 80' % (ST, S_J))
        a('s_lshr_b32 s%d, s%d, 1' % (ST + 1, S_Q))
        a('s_mul_i32 s%d, s%d, 5' % (ST + 1, ST + 1))
        a('s_add_u32 s%d, s%d, s%d' % (ST, ST, ST + 1))
        a('s_and_b32 s%d, s%d, 1' % (ST + 1, S_Q))
        a('s_mul_i32 s%d, s%d, 3' % (ST + 1, ST + 1))
        a('s_add_u32 s%d, s%d, s%d' % (self.SCH, ST, ST + 1))
        a('s_add_u32 s%d, s%d, 1' % (self.SCH + 1, self.SCH))
        a('s_add_u32 s%d, s%d, 2' % (self.SCH + 2, ST))

    def jobsel(self, a, job, dst_ch, dst_slotoff):
        if job == 0:
            a('s_cmp_eq_u32 s%d, 0' % S_WH)
            a('s_cselect_b32 s%d, s%d, s%d' % (dst_ch, self.SCH, self.SCH + 1))
            a('s_mul_i32 s%d, s%d, %d' % (dst_slotoff, S_WH, CS))
        else:
            a('s_mov_b32 s%d, s%d' % (dst_ch, self.SCH + 2))
            a('s_mov_b32 s%d, %d' % (dst_slotoff, 2 * CS))

    def load_p(self, a, slots, regs):
        a('v_and_b32 v2, 255, v0')
        a('v_lshlrev_b32 v2, 4, v2')
        a('v_subrev_u32 v3, 8, v2')
        a('s_mov_b32 s%d, 4096' % (R_HK + 2))
        a('s_mov_b32 s%d, 0x20000' % (R_HK + 3))
        for sl, rg in zip(slots, regs):
            a('s_lshl_b32 s%d, s%d, 12' % (ST, self.SCH + sl))
            a('s_add_u32 s%d, s%d, s%d' % (R_HK, P_HK, ST))
            a('s_addc_u32 s%d, s%d, 0' % (R_HK + 1, P_HK + 1))
            a('s_and_b32 s%d, s%d, 0xffff' % (R_HK + 1, R_HK + 1))
            a('buffer_load_dwordx4 %s, v2, s[%d:%d], 0 offen%s' % (ar(rg + 2, 4), R_HK, R_HK + 3, NT()))
            a('buffer_load_dwordx2 %s, v3, s[%d:%d], 0 offen%s' % (ar(rg, 2), R_HK, R_HK + 3, NT()))

    def load_q(self, a):
        L = a.newlabel('L_lq')
        a('v_and_b32 v2, 255, v0')
        a('v_lshlrev_b32 v2, 4, v2')
        for job in range(2):
            if job == 1:
                a('s_cmp_eq_u32 s%d, 0' % S_WH)
                a('s_cbranch_scc1 %s' % L)
                ctx = a.only(range(4, 8)); ctx.__enter__()
            self.jobsel(a, job, ST, ST + 1)
            a('s_lshl_b32 s%d, s%d, 12' % (ST, ST))
            if LY.KVT:
                a('s_add_u32 s%d, s%d, 0x%x' % (ST, ST, LY.KVT))
            a('buffer_load_dwordx4 %s, v2, s[%d:%d], s%d offen%s' % (vr(self.QRAW + 4 * job, 4), R_WS, R_WS + 3, ST, SCL()))
        ctx.__exit__()
        a.label(L)
        self.m_q = a.vm_mark()

    def build_p(self, a, slots, regs, T):
        a('v_and_b32 v2, 255, v0')
        a('v_lshlrev_b32 v2, 4, v2')
        for i in range(4):
            a('v_mov_b32 v%d, 0' % (8 + i))
        a('v_bfe_u32 v3, v1, 2, 2')
        a('v_mul_u32_u24 v3, %d, v3' % PP)
        a('v_and_b32 v4, 3, v1')
        a('v_min_u32 v4, 2, v4')
        a('v_lshl_add_u32 v3, v4, 4, v3')
        for n, (sl, rg) in enumerate(zip(slots, regs)):
            D = T + 18 * n; X = D + 6
            base = CB + CS * sl
            if base + 48 + 3 * PP > 65535 or base + QO1 + 4096 > 65535:
                a('v_add_u32 v5, %d, v2' % base); a('v_add_u32 v6, %d, v3' % base); a('v_add_u32 v7, %d, v%d' % (base, V_L16))
                A2, A3, AL, base = 5, 6, 7, 0
            else:
                A2, A3, AL = 2, 3, V_L16
            Lz = a.newlabel('L_z')
            a('s_cmp_lg_u32 s%d, %d' % (S_W3, 3 - n))
            a('s_cbranch_scc1 %s' % Lz)
            a('s_mov_b64 exec, 0xfffffff')
            a('ds_write_b128 v%d, v[8:11] offset:%d' % (AL, base + QO0 + 4096))
            a('ds_write_b128 v%d, v[8:11] offset:%d' % (AL, base + QO1 + 4096))
            a('ds_write_b128 v%d, v[8:11] offset:%d' % (A3, base))
            a('s_mov_b64 exec, 1')
            a('ds_write_b64 v%d, v[8:9] offset:%d' % (AL, base + QO0 + 4088))
            a('s_mov_b64 exec, -1')
            a.label(Lz)
            for k in range(6):
                a('v_accvgpr_read_b32 v%d, a%d' % (D + k, rg + k))
            base += 48
            a('ds_write_b128 v%d, %s offset:%d' % (A2, ar(rg + 2, 4), base + 3 * PP))
            for k in range(4):
                a('v_alignbit_b32 v%d, v%d, v%d, 16' % (X + k, D + k + 1, D + k))
            for k in range(4):
                a('v_mov_b32 v%d, v%d' % (X + 4 + k, D + 1 + k))
            a('ds_write_b128 v%d, %s offset:%d' % (A2, vr(X, 4), base))
            for k in range(3):
                a('v_mov_b32 v%d, v%d' % (X + 8 + k, X + 1 + k))
            a('v_alignbit_b32 v%d, v%d, v%d, 16' % (X + 11, D + 5, D + 4))
            a('ds_write_b128 v%d, %s offset:%d' % (A2, vr(X + 4, 4), base + PP))
            a('ds_write_b128 v%d, %s offset:%d' % (A2, vr(X + 8, 4), base + 2 * PP))

    def build_q(self, a):
        L = a.newlabel('L_bq')
        a('v_and_b32 v2, 255, v0')
        a('v_lshlrev_b32 v2, 4, v2')
        a('v_add_u32 v2, %d, v2' % (CB + QO0 - 8))
        a.wait_vm(self.m_q)
        for job in range(2):
            if job == 1:
                c = a.lgkm_issued
                a('s_cmp_eq_u32 s%d, 0' % S_WH)
                a('s_cbranch_scc1 %s' % L)
            self.jobsel(a, job, ST, ST + 1)
            a('v_add_u32 v%d, s%d, v2' % (4 + job, ST + 1))
            Q = self.QRAW + 4 * job
            a('ds_write_b128 v%d, %s offset:%d' % (4 + job, vr(Q, 4), QO1 - QO0 + 8))
            a('ds_write2_b64 v%d, %s, %s offset0:0 offset1:1' % (4 + job, vr(Q, 2), vr(Q + 2, 2)))
        a.label(L)
        a.lgkm_issued = c

    def d_load(self, a):
        a('s_cmp_eq_u32 s%d, 1' % S_W3)
        a('s_cselect_b32 s%d, s%d, s%d' % (self.S_C0, self.SCH + 1, self.SCH))
        a('s_cmp_eq_u32 s%d, 2' % S_W3)
        a('s_cselect_b32 s%d, s%d, s%d' % (self.S_C0, self.SCH + 2, self.S_C0))
        for k, ch in enumerate((self.S_C0, self.SCH + 1)):
            a('s_lshr_b32 s%d, s%d, 1' % (ST, ch))
            a('s_lshl_b32 s%d, s%d, 2' % (ST, ST))
            a('s_load_dword s%d, s[%d:%d], s%d' % (self.S_D + k, P_D, P_D + 1, ST))

    def d_fix(self, a):
        for k, ch in enumerate((self.S_C0, self.SCH + 1)):
            a('s_lshl_b32 s%d, s%d, 16' % (ST, self.S_D + k))
            a('s_and_b32 s%d, s%d, 0xffff0000' % (self.S_D + k, self.S_D + k))
            a('s_bitcmp0_b32 s%d, 0' % ch)
            a('s_cselect_b32 s%d, s%d, s%d' % (self.S_D + k, ST, self.S_D + k))

    def task_setup(self, a):
        a('v_and_b32 v2, 15, v1')
        a('v_lshrrev_b32 v3, 4, v1')
        a('v_and_b32 v4, 3, v1')
        a('v_lshrrev_b32 v5, 2, v2')
        a('v_add_u32 v5, v5, v3')
        a('v_mul_u32_u24 v4, %d, v4' % PP)
        a('v_lshl_add_u32 v24, v5, 4, v4')
        a('v_and_b32 v4, 1, v1')
        a('v_lshrrev_b32 v5, 1, v2')
        a('v_lshlrev_b32 v5, 6, v5')
        a('v_lshlrev_b32 v6, 4, v3')
        a('v_mul_u32_u24 v7, 4640, v4')
        a('v_add_u32 v7, v7, v6')
        a('v_sub_u32 v7, v7, v5')
        a('v_add_u32 v25, %d, v7' % (QO0 + 448))
        a('v_add_u32 v5, v5, v6')
        a('v_lshl_add_u32 v27, v4, 3, v5')
        a('v_sub_u32 v26, %d, v27' % (QO1 + 504))
        a('s_cmp_eq_u32 s%d, 3' % S_W3)
        a('s_cselect_b32 s%d, 0, s%d' % (ST + 2, S_W3))
        for k, ch in enumerate((self.S_C0, self.SCH + 1)):
            if k == 0:
                a('s_mul_i32 s%d, s%d, %d' % (ST, ST + 2, CS))
                a('s_add_u32 s%d, s%d, %d' % (ST, ST, CB))
            else:
                a('s_mov_b32 s%d, %d' % (ST, CB + CS))
            for n in range(3):
                a('v_add_u32 v%d, s%d, v%d' % (self.VADR + 4 * k + n, ST, 24 + n))
            a('s_lshl_b32 s%d, s%d, 12' % (ST + 1, ch))
            a('s_add_u32 s%d, s%d, 0x%x' % (ST + 1, ST + 1, LY.Y2T))
            a('v_add_u32 v%d, s%d, v27' % (self.VADR + 4 * k + 3, ST + 1))

    def task(self, a, tiles, nsub, hooks, bg, bg_every):
        n = max(tiles) + 1
        freg = {}
        nr = self.FR
        for p in range(n):
            freg[('A', p)] = nr; nr += 4
        for p in range(n):
            freg[('B', p)] = nr; nr += 4
        areg = {}
        for k in range(nsub):
            for t in tiles:
                areg[(k, t)] = nr; nr += 4
        assert nr <= 108
        order = [(t, p) for p in range(n) for t in tiles if t >= p]
        its = [(r, k) for r in range(8) for k in range(nsub)]
        def rd(key, it):
            r, k = it; ab, p = key
            if ab == 'A':
                return 'ds_read_b128 %s, v%d offset:%d' % (vr(freg[key], 4), self.VADR + 4 * k, 512 * p + 64 * r)
            return 'ds_read_b128 %s, v%d offset:%d' % (vr(freg[key], 4), self.VADR + 4 * k + 1, 512 * (7 - p) + 64 * r)
        uses = [(('A', p), ('B', t - p)) for t, p in order]
        last = {}; first = {}
        for i, us in enumerate(uses):
            for u in us:
                last[u] = i; first.setdefault(u, i)
        mark = {}
        for key in sorted(first, key=lambda u: first[u]):
            a(rd(key, its[0])); mark[key] = a.lgkm_mark()
        cnt = 0
        allt = [(k, t) for k in range(nsub) for t in tiles]
        ureg = {}
        dead = []
        for ii, (r, k) in enumerate(its):
            if k == 0 and r in hooks:
                hooks[r](a)
            waited = -1
            seen = set()
            nxt = {}
            for i, (t, p) in enumerate(order):
                need = max(mark[u] for u in uses[i])
                if need > waited:
                    a.wait_lgkm(need); waited = need
                acc = vr(areg[(k, t)], 4)
                c = acc if (r > 0 or t in seen) else '0'
                seen.add(t)
                a('v_mfma_f32_16x16x32_bf16 %s, %s, %s, %s' % (acc, vr(freg[uses[i][0]], 4), vr(freg[uses[i][1]], 4), c))
                for u in uses[i]:
                    if last[u] == i:
                        if ii + 1 < len(its):
                            a(rd(u, its[ii + 1])); nxt[u] = a.lgkm_mark()
                        elif len(ureg) < len(allt):
                            for hh in range(2):
                                if len(ureg) < len(allt):
                                    kt = allt[len(ureg)]
                                    a('ds_read_b64 %s, v%d offset:%d' % (vr(freg[u] + 2 * hh, 2), self.VADR + 4 * kt[0] + 2, 512 * (7 - kt[1])))
                                    ureg[kt] = (freg[u] + 2 * hh, a.lgkm_mark())
                cnt += 1
                if cnt % bg_every == 0:
                    bg.emit(a, 1)
            mark.update(nxt)
        if 'end' in hooks:
            hooks['end'](a)
        X = 8
        for (k, t) in sorted(allt, key=lambda kt: (kt[0], kt[1])):
            U, m = ureg[(k, t)]; A = areg[(k, t)]
            a.wait_lgkm(m)
            X = 4 if X == 8 else 8
            unpack(a, X + 3, X + 2, U)
            unpack(a, X + 1, X + 0, U + 1)
            for n_ in range(4):
                a('v_fma_f32 v%d, v%d, s%d, v%d' % (X + n_, X + n_, self.S_D + k, A + n_))
            a('v_cvt_pk_bf16_f32 v%d, v%d, v%d' % (U, X, X + 1))
            a('v_cvt_pk_bf16_f32 v%d, v%d, v%d' % (U + 1, X + 2, X + 3))
            a('buffer_store_dwordx2 %s, v%d, s[%d:%d], 0 offen offset:%d%s' % (vr(U, 2), self.VADR + 4 * k + 3, R_WS, R_WS + 3, 512 * t, SCS))

    def run(self, a, hooks, bg, bg_every, reset):
        L_b1 = a.newlabel('L_bot1'); L_b2 = a.newlabel('L_bot2'); L_done = a.newlabel('L_cdone')
        a('s_cmp_eq_u32 s%d, 3' % S_W3)
        a('s_cbranch_scc1 %s' % L_b2)
        a('s_and_b32 s%d, s%d, 1' % (ST + 4, S_Q))
        a('s_add_u32 s%d, s%d, s%d' % (ST + 4, ST + 4, S_W3))
        a('s_cmp_ge_u32 s%d, 3' % (ST + 4))
        a('s_cbranch_scc1 %s' % L_b1)
        c0 = a.vm_issued; b0 = bg.i; n0 = len(bg.items)
        ends = []; bgi = []
        for lab, tiles, nsub, every in ((None, TOP, 1, bg_every), (L_b1, BOT, 1, bg_every // 2), (L_b2, BOT, 2, bg_every)):
            a.vm_issued = c0; bg.i = b0; del bg.items[n0:]
            reset()
            if lab:
                a.label(lab)
                a('s_nop 1')
            self.task(a, tiles, nsub, hooks, bg, every)
            ends.append(a.vm_issued); bgi.append((bg.i, len(bg.items)))
            if lab != L_b2:
                a('s_branch %s' % L_done)
        a.label(L_done)
        assert len(set(bgi)) == 1, bgi
        assert ends[0] == ends[1], ends
        a.vm_issued = ends[0]

class G2:
    ACC = 16
    HB = [104, 56, 80, 104]
    QR, B2R, GR, OM, VO, VY, VYW, VYR, VRR = 56, 62, 68, 76, 70, 71, 72, 73, 74
    YRAW, QF, YT = 80, 88, 28

    def w2_items(self):
        L = []
        def init(a):
            a('s_mul_i32 s101, s%d, 48' % S_J)
            a('s_mul_i32 s100, s%d, 6' % S_W)
            a('s_add_u32 s101, s101, s100')
            a('s_mul_i32 s101, s101, 5120')
            a('s_add_u32 s101, s101, 0x%x' % LY.W2T)
        for n in range(30):
            def f(a, n=n):
                if n == 0: init(a)
                if not OPT.get('now2'): a('buffer_load_dwordx4 %s, v%d, s[%d:%d], s101 offen offset:%d%s' % (ar(4 * n, 4), V_L16, R_WS, R_WS + 3, 1024 * (n % 4), SCL()))
                if n % 4 == 3:
                    a('s_add_u32 s101, s101, 4096')
                self.m_w2 = a.vm_mark()
            L.append(f)
        return L

    def hreg(self, it, ks):
        if it in (0, 3):
            return 124 - 4 * ks
        return self.HB[it] + 4 * ks

    def h_items(self, it):
        L = []
        for ks in range(6):
            def f(a, ks=ks):
                if ks == 0:
                    a('s_add_u32 s100, s%d, %d' % (S_W, 1 + it))
                    a('s_and_b32 s100, s100, 3')
                    a('s_lshl_b32 s95, s%d, 2' % S_Q)
                    a('s_add_u32 s95, s95, s100')
                    a('s_mul_i32 s95, s95, 48')
                    a('s_mul_i32 s100, s%d, 6' % S_W)
                    a('s_add_u32 s95, s95, s100')
                    a('s_lshl_b32 s95, s95, 10')
                    a('s_add_u32 s95, s95, 0x%x' % LY.HF)
                if not OPT.get('noh'): a('buffer_load_dwordx4 %s, v%d, s[%d:%d], s95 offen offset:%d%s' % (vr(self.hreg(it, ks), 4), V_L16, R_WS, R_WS + 3, 1024 * (ks % 4), SCL()))
                self.m_h[(it, ks)] = a.vm_mark()
                if ks == 3:
                    a('s_add_u32 s95, s95, 4096')
            L.append(f)
        return L

    def part_addr(self, a, it):
        a('s_add_u32 s%d, s%d, %d' % (ST, S_W, 1 + it))
        a('s_and_b32 s%d, s%d, 3' % (ST, ST))
        a('s_lshl_b32 s%d, s%d, 2' % (ST + 1, S_W3))
        a('s_add_u32 s%d, s%d, s%d' % (ST, ST, ST + 1))
        a('s_mul_i32 s%d, s%d, 5120' % (ST, ST))
        a('s_add_u32 s%d, s%d, %d' % (ST, ST, PART))
        a('v_add_u32 v15, s%d, v%d' % (ST, V_L16))

    def hi_writes(self, it):
        acc0 = self.ACC + 20 * (it % 2)
        L = [lambda a: self.part_addr(a, it)]
        for dt in range(5):
            L.append('ds_write_b128 v15, %s offset:%d' % (vr(acc0 + 4 * dt, 4), 1024 * dt))
        def prog(a):
            a('s_lshl_b32 s%d, s%d, 4' % (ST, S_W3))
            a('s_add_u32 s%d, s%d, %d' % (ST, ST, CNT + 80))
            a('v_mov_b32 v13, s%d' % ST)
            a('v_mov_b32 v14, %d' % (it + 1))
            a('ds_write_b32 v13, v14')
        L.append(prog)
        return L

    def lo_merge(self, a, it, T, dts_write):
        acc0 = self.ACC + 20 * (it % 2)
        a('s_lshl_b32 s%d, s%d, 4' % (ST, S_W3))
        a('s_add_u32 s%d, s%d, %d' % (ST, ST, CNT + 80))
        lds_spin(a, None, it + 1, sreg=ST)
        self.part_addr(a, it)
        for dt in range(5):
            a('ds_read_b128 %s, v15 offset:%d' % (vr(T + 4 * dt, 4), 1024 * dt))
        m = a.lgkm_mark()
        for dt in range(5):
            a.wait_lgkm(m - 4 + dt)
            for n in range(2):
                a('v_pk_add_f32 %s, %s, %s' % (vr(acc0 + 4 * dt + 2 * n, 2), vr(acc0 + 4 * dt + 2 * n, 2), vr(T + 4 * dt + 2 * n, 2)))
            if dt in dts_write:
                a('ds_write_b128 v15, %s offset:%d' % (vr(acc0 + 4 * dt, 4), 1024 * dt))

    def iteration(self, a, it, fill, bg, bg_every=4):
        acc0 = self.ACC + 20 * (it % 2)
        fi = 0; cnt = 0
        for ks in range(6):
            while (it, ks) not in self.m_h:
                bg.emit(a, 1)
            a.wait_vm(*([self.m_h[(it, ks)]] + ([self.m_w2] if (it == 0 and ks == 0) else [])))
            for dt in range(5):
                acc = vr(acc0 + 4 * dt, 4)
                c = acc if ks > 0 else '0'
                a('v_mfma_f32_16x16x32_bf16 %s, %s, %s, %s' % (acc, ar(4 * (5 * ks + dt), 4), vr(self.hreg(it, ks), 4), c))
                cnt += 1
                if cnt % bg_every == 0 and bg.left():
                    bg.emit(a, 1)
                elif ks >= 2 and fi < len(fill):
                    do(a, fill[fi]); fi += 1
        while fi < len(fill):
            do(a, fill[fi]); fi += 1


    def epi_in(self, a):
        srd(a, R_HK, P_B2, 1280)
        a('v_and_b32 v10, 15, v1')
        a('v_lshrrev_b32 v11, 4, v1')
        a('s_lshl_b32 s%d, s%d, 6' % (ST, S_Q))
        a('s_lshl_b32 s%d, s%d, 4' % (ST + 1, S_W3))
        a('s_add_u32 s%d, s%d, s%d' % (ST, ST, ST + 1))
        a('s_mul_i32 s%d, s%d, 160' % (ST + 1, S_J))
        a('s_mul_i32 s%d, s%d, 96' % (ST + 2, S_WH))
        a('s_add_u32 s%d, s%d, s%d' % (ST + 1, ST + 1, ST + 2))
        a('v_add_u32 v10, s%d, v10' % ST)
        a('v_lshlrev_b32 v11, 3, v11')
        a('v_add_u32 v11, s%d, v11' % (ST + 1))
        a('v_mul_u32_u24 v12, 1280, v10')
        a('v_add_u32 v%d, v12, v11' % self.VO)
        a('v_lshlrev_b32 v10, 2, v10')
        a('v_add_u32 v10, 0x%x, v10' % LY.G)
        a('buffer_load_dword v%d, v10, s[%d:%d], 0 offen%s' % (self.GR, R_WS, R_WS + 3, SCL()))
        for i in range(3):
            a('buffer_load_dwordx2 %s, v%d, s[%d:%d], 0 offen offset:%d' % (vr(self.QR + 2 * i, 2), self.VO, R_X, R_X + 3, 32 * i))
        for i in range(3):
            a('buffer_load_dwordx2 %s, v11, s[%d:%d], 0 offen offset:%d' % (vr(self.B2R + 2 * i, 2), R_HK, R_HK + 3, 32 * i))
        self.m_in = a.vm_mark()
        a('s_lshl_b32 s%d, s%d, 11' % (ST + 1, ST + 1))
        a('s_lshl_b32 s%d, s%d, 1' % (ST, ST))
        a('s_add_u32 s%d, s%d, s%d' % (ST, ST, ST + 1))
        a('s_add_u32 s%d, s%d, 0x%x' % (ST, ST, LY.Y2T))
        a('v_lshrrev_b32 v10, 1, v1')
        a('v_lshlrev_b32 v10, 12, v10')
        a('v_and_b32 v11, 1, v1')
        a('v_lshl_add_u32 v10, v11, 4, v10')
        a('v_add_u32 v%d, s%d, v10' % (self.VY, ST))
        a('s_mul_i32 s%d, s%d, 1536' % (ST, S_W))
        a('s_add_u32 s%d, s%d, %d' % (ST, ST, YL))
        a('v_add_u32 v%d, s%d, v%d' % (self.VYW, ST, V_L16))
        a('v_lshlrev_b32 v10, 3, v1')
        a('v_add_u32 v%d, s%d, v10' % (self.VYR, ST))
        a('s_mul_i32 s%d, s%d, 5' % (ST, S_W3))
        a('s_mul_i32 s%d, s%d, 3' % (ST + 1, S_WH))
        a('s_add_u32 s%d, s%d, s%d' % (ST, ST, ST + 1))
        a('s_lshl_b32 s%d, s%d, 10' % (ST, ST))
        a('s_add_u32 s%d, s%d, %d' % (ST, ST, PART))
        a('v_add_u32 v%d, s%d, v%d' % (self.VRR, ST, V_L16))

    def y_loads(self, a):
        L = a.newlabel('L_yl')
        a('buffer_load_dwordx4 %s, v%d, s[%d:%d], 0 offen%s' % (vr(self.YRAW, 4), self.VY, R_WS, R_WS + 3, SCL()))
        if 0 not in a.active:
            self.m_y_hi = a.vm_mark()
            return
        a('s_mov_b32 s%d, %d' % (ST, 32 * 4096))
        a('s_mov_b64 exec, 0xffffffff')
        a('buffer_load_dwordx4 %s, v%d, s[%d:%d], s%d offen%s' % (vr(self.YRAW + 4, 4), self.VY, R_WS, R_WS + 3, ST, SCL()))
        a('s_mov_b64 exec, -1')
        self.m_y_lo = a.vm_mark()

    def pre_final(self, a):
        OM, QF = self.OM, self.QF
        a.wait_vm(self.m_in)
        a('v_sub_f32 v%d, 1.0, v%d' % (OM, self.GR))
        a('v_cvt_pk_bf16_f32 v%d, v%d, v%d' % (OM, OM, OM))
        a('v_lshlrev_b32 v%d, 16, v%d' % (OM, OM))
        a('v_mov_b32 v%d, v%d' % (OM + 1, OM))
        for n in range(6):
            unpack(a, QF + 2 * n, QF + 2 * n + 1, self.QR + n)
        for n in range(12):
            a('v_mul_f32 v%d, v%d, v%d' % (QF + n, QF + n, self.GR))

    def main_hi(self, a, bg, f3_issue, f3_check):
        bg.add(self.h_items(0) + self.h_items(1) + self.h_items(2))
        bg.emit(a, 12)
        self.iteration(a, 0, [], bg, 2)
        ts(a, 19)
        bg.add(self.h_items(3))
        self.iteration(a, 1, self.hi_writes(0), bg, 2)
        bg.drain(a)
        ts(a, 20)
        self.epi_in(a)
        self.iteration(a, 2, self.hi_writes(1), bg)
        ts(a, 21)
        self.iteration(a, 3, self.hi_writes(2), bg)
        for x in self.hi_writes(3):
            do(a, x)
        ts(a, 22)
        self.pre_final(a)
        acc0 = self.ACC + 20
        for n in range(6):
            unpack(a, acc0 + 2 * n, acc0 + 2 * n + 1, self.B2R + n)
        f3_issue(a)
        f3_check(a)
        self.y_loads(a)

    def main_lo(self, a, bg, after0, f3_issue, f3_check):
        bg.add(self.h_items(1) + self.h_items(2))
        self.iteration(a, 0, [], bg, 2)
        ts(a, 19)
        after0(a)
        bg.drain(a)
        self.lo_merge(a, 0, 36, range(5))
        bg.add(self.h_items(3))
        self.iteration(a, 1, [], bg, 2)
        bg.drain(a)
        ts(a, 20)
        self.lo_merge(a, 1, 56, range(5))
        self.epi_in(a)
        f3_issue(a)
        self.iteration(a, 2, [], bg)
        ts(a, 21)
        self.lo_merge(a, 2, 80, range(5))
        f3_check(a)
        self.y_loads(a)
        self.iteration(a, 3, [], bg)
        ts(a, 22)
        self.pre_final(a)
        self.lo_merge(a, 3, 104, (3, 4))
        acc0 = self.ACC + 20
        for n in range(6):
            unpack(a, 2 + 2 * n, 3 + 2 * n, self.B2R + n)
        for n in range(6):
            a('v_pk_add_f32 %s, %s, %s' % (vr(acc0 + 2 * n, 2), vr(acc0 + 2 * n, 2), vr(2 + 2 * n, 2)))

    def final(self, a):
        OM, QF = self.OM, self.QF
        acc0 = self.ACC + 20
        a('s_waitcnt lgkmcnt(0)')
        a('s_barrier')
        ts(a, 23)
        bufs = [104, 116, 16, 2]
        marks = {}
        Lo = a.newlabel('L_f3')
        for k in range(4):
            a('s_add_u32 s%d, s%d, %d' % (ST, S_W3, 1 + k))
            a('s_and_b32 s%d, s%d, 3' % (ST, ST))
            a('s_mul_i32 s%d, s%d, 20480' % (ST, ST))
            a('v_add_u32 v%d, s%d, v%d' % (100 + k, ST, self.VRR))
        for k in range(3):
            for i in range(3):
                a('ds_read_b128 %s, v%d offset:%d' % (vr(bufs[k] + 4 * i, 4), 100 + k, 1024 * i))
            marks[k] = a.lgkm_mark()
        a.wait_vm(self.m_y)
        a('ds_write_b128 v%d, %s' % (self.VYW, vr(self.YRAW, 4)))
        a('s_mov_b64 exec, 0xffffffff')
        a('ds_write_b128 v%d, %s offset:1024' % (self.VYW, vr(self.YRAW + 4, 4)))
        a('s_mov_b64 exec, -1')
        for i in range(3):
            a('ds_read_b64_tr_b16 %s, v%d offset:%d' % (vr(self.YT + 2 * i, 2), self.VYR, 512 * i))
        for k in range(3):
            a.wait_lgkm(marks[k])
            for n in range(6):
                a('v_pk_add_f32 %s, %s, %s' % (vr(acc0 + 2 * n, 2), vr(acc0 + 2 * n, 2), vr(bufs[k] + 2 * n, 2)))
        a('s_cmp_eq_u32 s%d, 0' % S_WH)
        a('s_cbranch_scc1 %s' % Lo)
        for i in range(2):
            a('ds_read_b128 %s, v103 offset:%d' % (vr(bufs[3] + 4 * i, 4), 1024 * i))
        a('s_waitcnt lgkmcnt(0)')
        for n in range(4):
            a('v_pk_add_f32 %s, %s, %s' % (vr(acc0 + 2 * n, 2), vr(acc0 + 2 * n, 2), vr(bufs[3] + 2 * n, 2)))
        a.label(Lo)
        for n in range(6):
            a('v_pk_mul_f32 %s, %s, %s' % (vr(acc0 + 2 * n, 2), vr(acc0 + 2 * n, 2), vr(OM, 2)))
        a('s_waitcnt lgkmcnt(0)')
        YF = 104
        Lend = a.newlabel('L_fin')
        for i in range(3):
            if i == 2:
                a('s_cmp_lg_u32 s%d, 0' % S_WH)
                a('s_cbranch_scc1 %s' % Lend)
            for d in range(2):
                n = 2 * i + d
                unpack(a, YF + 2 * n, YF + 2 * n + 1, self.YT + n)
            for d in range(2):
                n = 2 * i + d
                a('v_pk_fma_f32 %s, %s, %s, %s' % (vr(QF + 2 * n, 2), vr(QF + 2 * n, 2), vr(YF + 2 * n, 2), vr(acc0 + 2 * n, 2)))
            for d in range(2):
                n = 2 * i + d
                a('v_cvt_pk_bf16_f32 v%d, v%d, v%d' % (self.QR + n, QF + 2 * n, QF + 2 * n + 1))
            a('buffer_store_dwordx2 %s, v%d, s[%d:%d], 0 offen offset:%d%s' % (vr(self.QR + 2 * i, 2), self.VO, R_OUT, R_OUT + 3, 32 * i, OPT.get('outsc', '')))
        a.label(Lend)

def lds_spin(a, addr, target, sreg=None):
    L = a.newlabel('L_ls'); Lok = a.newlabel('L_lsok')
    if sreg is None: a('v_mov_b32 v13, %d' % addr)
    else: a('v_mov_b32 v13, s%d' % sreg)
    a('s_mov_b32 s14, %d' % (SPIN_MAX * 16))
    a.label(L)
    a('ds_read_b32 v14, v13')
    a('s_waitcnt lgkmcnt(0)')
    a('v_readfirstlane_b32 s12, v14')
    a('s_cmp_ge_u32 s12, %d' % target)
    a('s_cbranch_scc1 %s' % Lok)
    a('s_sub_u32 s14, s14, 1')
    a('s_cmp_eq_u32 s14, 0')
    a('s_cbranch_scc1 %s' % Lok)
    a('s_sleep 1')
    a('s_branch %s' % L)
    a.label(Lok)

LITE = False
def ts(a, idx, real=False):
    if not PROF or (LITE and not real):
        return
    a('%s s[12:13]' % ('s_memrealtime' if real else 's_memtime'))
    a('s_waitcnt lgkmcnt(0)')
    a('v_writelane_b32 v%d, s12, %d' % (V_TS, idx))
def ts_flush(a):
    if not PROF:
        return
    a('s_lshl_b32 s12, s2, 3')
    a('s_add_u32 s12, s12, s%d' % S_W)
    a('s_lshl_b32 s12, s12, 7')
    a('s_add_u32 s12, s12, 0x%x' % LY.TS)
    a('v_lshlrev_b32 v2, 2, v1')
    a('s_mov_b64 exec, 0xffffffff')
    a('buffer_store_dword v%d, v2, s[%d:%d], s12 offen' % (V_TS, R_WS, R_WS + 3))
    a('s_mov_b64 exec, -1')

SPIN_MAX = 20000
def token_publish(a):
    L = a.newlabel('L_tokp')
    a('s_cmp_ge_u32 s2, 8')
    a('s_cbranch_scc1 %s' % L)
    a('s_cmp_lg_u32 s%d, 7' % S_W)
    a('s_cbranch_scc1 %s' % L)
    a('s_memrealtime s[12:13]')
    a('s_waitcnt lgkmcnt(0)')
    a('s_or_b32 s12, s12, 1')
    a('v_mov_b32 v4, s12')
    a('v_mov_b32 v5, s13')
    a('v_mov_b32 v6, 0')
    a('v_mov_b32 v7, 0')
    c = a.vm_issued
    a('s_mov_b64 exec, 1')
    a('global_atomic_cmpswap_x2 v6, v[4:7], s[%d:%d] sc1' % (P_DBG, P_DBG + 1))
    a('s_mov_b64 exec, -1')
    a('s_nop 1')
    a.vm_issued = c
    a.label(L)
def token_load(a):
    a('v_mov_b32 v%d, 0' % V_PA)
    a('global_load_dwordx2 %s, v%d, s[%d:%d] sc1' % (vr(V_TOK, 2), V_PA, P_DBG, P_DBG + 1))
    return a.vm_mark()
def token_check(a, mark):
    L = a.newlabel('L_tok'); Lok = a.newlabel('L_tokok')
    a.wait_vm(mark)
    a('s_mov_b32 s14, %d' % SPIN_MAX)
    a.label(L)
    a('v_readfirstlane_b32 s%d, v%d' % (TOK, V_TOK))
    a('v_readfirstlane_b32 s%d, v%d' % (TOK + 1, V_TOK + 1))
    a('s_cmp_lg_u32 s%d, 0' % TOK)
    a('s_cbranch_scc1 %s' % Lok)
    a('s_sub_u32 s14, s14, 1')
    a('s_cmp_eq_u32 s14, 0')
    a('s_cbranch_scc1 %s' % Lok)
    a('s_sleep 2')
    c = a.vm_issued
    a('global_load_dwordx2 %s, v%d, s[%d:%d] sc1' % (vr(V_TOK, 2), V_PA, P_DBG, P_DBG + 1))
    a('s_waitcnt vmcnt(0)')
    a.vm_issued = c
    a('s_branch %s' % L)
    a.label(Lok)
def flag_store_body(a, s_idx_expr):
    s_idx_expr(a)
    a('v_mov_b32 v%d, s%d' % (V_TOK, TOK))
    a('v_mov_b32 v%d, s%d' % (V_TOK + 1, TOK + 1))
    a('v_mov_b32 v%d, s12' % V_FA)
    c = a.vm_issued
    a('s_mov_b64 exec, 1')
    a('buffer_store_dwordx2 %s, v%d, s[%d:%d], 0 offen sc1' % (vr(V_TOK, 2), V_FA, R_WS, R_WS + 3))
    a('s_mov_b64 exec, -1')
    a.vm_issued = c
def flag_store(a, s_idx_expr, wave=0):
    L = a.newlabel('L_fs')
    a('s_cmp_lg_u32 s%d, %d' % (S_W, wave))
    a('s_cbranch_scc1 %s' % L)
    flag_store_body(a, s_idx_expr)
    a.label(L)
def publish_cnt(a, mark, cnt, s_idx_expr, nw=8):
    L = a.newlabel('L_pc')
    nw = abs(nw)
    a.wait_vm(mark)
    a('v_mov_b32 v%d, %d' % (V_FA, CNT + 16 * cnt))
    a('v_mov_b32 v%d, 1' % V_TOK)
    a('s_mov_b64 exec, 1')
    a('ds_add_rtn_u32 v%d, v%d, v%d' % (V_TOK + 1, V_FA, V_TOK))
    a('s_mov_b64 exec, -1')
    a('s_waitcnt lgkmcnt(0)')
    a('v_readfirstlane_b32 s12, v%d' % (V_TOK + 1))
    a('s_cmp_lg_u32 s12, %d' % (nw - 1))
    a('s_cbranch_scc1 %s' % L)
    flag_store_body(a, s_idx_expr)
    a.label(L)
def poll_issue(a, base_expr, n, wave=None):
    if wave is not None:
        L = a.newlabel('L_pi')
        c = a.vm_issued
        a('s_cmp_lg_u32 s%d, %d' % (S_W, wave))
        a('s_cbranch_scc1 %s' % L)
        poll_issue(a, base_expr, n)
        a.label(L)
        a.vm_issued = c
        return c
    base_expr(a)
    a('v_and_b32 v%d, %d, v1' % (V_PA, n - 1))
    a('v_lshlrev_b32 v%d, 3, v%d' % (V_PA, V_PA))
    a('v_add_u32 v%d, s12, v%d' % (V_PA, V_PA))
    a('buffer_load_dwordx2 %s, v%d, s[%d:%d], 0 offen sc1' % (vr(V_POLL, 2), V_PA, R_WS, R_WS + 3))
    return a.vm_mark()
def poll_check(a, mark, wave=None, sleep=4):
    if OPT.get('nopoll'): return
    L = a.newlabel('L_poll'); Lok = a.newlabel('L_pollok')
    if wave is not None:
        a('s_cmp_lg_u32 s%d, %d' % (S_W, wave))
        a('s_cbranch_scc1 %s' % Lok)
    a.wait_vm(mark)
    a('s_mov_b32 s14, %d' % SPIN_MAX)
    a.label(L)
    a('v_cmp_eq_u64 vcc, s[%d:%d], %s' % (TOK, TOK + 1, vr(V_POLL, 2)))
    a('s_nop 0')
    a('s_cmp_eq_u64 vcc, -1')
    a('s_cbranch_scc1 %s' % Lok)
    a('s_sub_u32 s14, s14, 1')
    a('s_cmp_eq_u32 s14, 0')
    a('s_cbranch_scc1 %s' % Lok)
    a('s_sleep %d' % sleep)
    c = a.vm_issued
    a('buffer_load_dwordx2 %s, v%d, s[%d:%d], 0 offen sc1' % (vr(V_POLL, 2), V_PA, R_WS, R_WS + 3))
    a('s_waitcnt vmcnt(0)')
    a.vm_issued = c
    a('s_branch %s' % L)
    a.label(Lok)

F1, F2, F3 = LY.FLAGS, LY.FLAGS + 4096, LY.FLAGS + 8192
def fbase_j(F):
    def f(a):
        a('s_lshl_b32 s12, s%d, 8' % S_J)
        a('s_add_u32 s12, s12, 0x%x' % F)
    return f
def fown_jq(F):
    def f(a):
        fbase_j(F)(a)
        a('s_lshl_b32 s13, s%d, 3' % S_Q)
        a('s_add_u32 s12, s12, s13')
    return f
def fown_g1(a):
    a('s_lshl_b32 s12, s%d, 7' % S_R)
    a('s_lshl_b32 s13, s%d, 3' % S_CB)
    a('s_add_u32 s12, s12, s13')
    a('s_add_u32 s12, s12, 0x%x' % F2)
def fbase_g2(a):
    a('s_lshr_b32 s12, s%d, 1' % S_Q)
    a('s_lshl_b32 s12, s12, 7')
    a('s_add_u32 s12, s12, 0x%x' % F2)

def fused_body(a):
    p = Prep(); g = G1(); c = Conv(); h = G2()
    h.m_h = {}
    p.addr(a)
    srds(a)
    if PROF:
        a('v_mov_b32 v%d, 0' % V_TS)
    ts(a, 30, True)
    ts(a, 0)
    p.loads(a)
    token_publish(a)
    srds2(a)
    c.channels(a)
    ne = OPT.get('dma_early', 2)
    L_lo = a.newlabel('L_lo'); L_ej = a.newlabel('L_ej')
    a('s_cmp_lt_u32 s%d, 4' % S_W)
    a('s_cbranch_scc1 %s' % L_lo)
    with a.only(range(4, 8)):
        g.setup(a)
        g.bias_load(a)
        if OPT.get('p2_first', 1): c.load_p(a, [2], [44])
        a('s_barrier')
        g.dma_early(a, list(range(ne)))
        if not OPT.get('p2_first', 1): c.load_p(a, [2], [44])
        hi_marks = dict(g.marks)
        ts(a, 1)
        g.setup2(a)
        g.unpack_bias(a)
        a('s_branch %s' % L_ej)
    a.label(L_lo)
    with a.only(range(4)):
        c0 = a.vmw[0]
        g.bias_load(a)
        c.load_p(a, [0, 1], [32, 38])
        ncommon = a.vmw[0] - c0
        a('s_barrier')
        g.setup(a)
        for _ in range(ne):
            g.adv(a)
        p.compute(a, ncommon)
        ts(a, 1)
        a('s_waitcnt vmcnt(0)')
        p.transpose(a)
        ts(a, 2)
        c.build_p(a, [0, 1], [32, 38], 60)
        g.setup2(a)
        g.m_bias = tuple([-100] * 8)
        g.unpack_bias(a)
    a.label(L_ej)
    g.marks = {k: tuple([-100] * 4 + list(v[4:])) for k, v in hi_marks.items()}
    m_p2 = tuple([-100] * 4 + list(a.vmw[4:])) if not OPT.get('p2_first', 1) else None
    st = {}
    w2bg = BG(h.w2_items())
    pre, post, mid, bgs, prebar = {}, {}, {}, {}, {}
    def addhook(d, i, f):
        old = d.get(i)
        d[i] = (lambda a, old=old, f=f: ((old(a) if old else None), f(a)))
    c.d_load(a)
    st['tok'] = token_load(a)
    addhook(post, 0, c.d_fix)
    def bp2(a):
        L = a.newlabel('L_bp2')
        lc = a.lgkm_issued
        a('s_cmp_lt_u32 s%d, 4' % S_W)
        a('s_cbranch_scc1 %s' % L)
        with a.only(range(4, 8)):
            if m_p2: a.wait_vm(m_p2)
            c.build_p(a, [2], [44], 96)
        a.label(L)
        a.lgkm_issued = lc
    addhook(mid, OPT.get('bp2', 0), bp2)
    addhook(mid, OPT.get('gate_ld', 3), p.gate_loads)
    addhook(mid, OPT.get('gate_cp', 6), p.gate_compute)
    fp = OPT['f1_pub']
    m_st = tuple(list(p.m_st[:4]) + [-100] * 4)
    pre[fp] = lambda: m_st
    def pub_f1(a):
        token_check(a, st['tok'])
        flag_store(a, fown_jq(F1), 7)
        ts(a, 28)
    addhook(post, fp, pub_f1)
    addhook(mid, OPT['f1_issue'], lambda a: st.__setitem__('f1', poll_issue(a, fbase_j(F1), 32, 7)))
    fc = OPT['f1_chk']
    addhook(prebar, fc, lambda a: poll_check(a, st['f1'], 7))
    addhook(post, fc, c.load_q)
    for i in range(fc, 10):
        bgs[i] = [(lambda a: w2bg.emit(a, 1))] * OPT['w2_g1']
    if PROF:
        for i in range(10):
            addhook(mid, i, lambda a, i=i: ts(a, 3 + i))
    g.main(a, pre, post, mid, bgs, prebar)
    assert w2bg.i <= 20, w2bg.i
    token_fetch(a)
    ts(a, 13)
    c.build_q(a)
    g.epilogue(a, w2bg, OPT['w2_gelu'] // 2)
    m_hst = a.vm_mark()
    ts(a, 15)
    c.task_setup(a)
    a('s_waitcnt lgkmcnt(0)')
    a('s_barrier')
    ts(a, 16)
    L_hi = a.newlabel('L_whi'); L_fin = a.newlabel('L_wfin')
    F2SEEN = CNT + 64
    F3SEEN = CNT + 160
    def poll7(a, base, n, seen, sleep):
        Lp = a.newlabel('L_p7')
        a('s_cmp_lg_u32 s%d, 7' % S_W)
        a('s_cbranch_scc1 %s' % Lp)
        with a.only([7]):
            m = poll_issue(a, base, n)
            poll_check(a, m, None, sleep)
            a('v_mov_b32 v13, %d' % seen)
            a('v_mov_b32 v14, 1')
            a('ds_write_b32 v13, v14')
        a.label(Lp)
    f3_issue = lambda a: (poll7(a, fbase_j(F3), 32, F3SEEN, OPT.get('f3_sleep', 6)) if 7 in a.active else None)
    f3_check = lambda a: (lds_spin(a, F3SEEN, 1), ts(a, 18))
    bg0 = w2bg.i
    a('s_cmp_ge_u32 s%d, 4' % S_W)
    a('s_cbranch_scc1 %s' % L_hi)
    with a.only(range(4)):
        hooks = {}
        addhook(hooks, OPT.get('f2_pub', 1), lambda a: (ts(a, 27), publish_cnt(a, m_hst, 0, fown_g1), ts(a, 25)))
        hit0 = h.h_items(0)
        def at_end(a):
            w2bg.drain(a)
            ts(a, 14)
            lds_spin(a, F2SEEN, 1)
            ts(a, 26)
            w2bg.add(hit0[:5])
            w2bg.drain(a)
        hooks['end'] = at_end
        c.run(a, hooks, w2bg, OPT['conv_every'], lambda: h.m_h.clear())
        m_yst = a.vm_mark()
        ts(a, 17)
        w2bg.add(hit0[5:])
        h.main_lo(a, w2bg, lambda a: publish_cnt(a, m_yst, 3, fown_jq(F3), 4), f3_issue, f3_check)
        a('s_branch %s' % L_fin)
    a.label(L_hi)
    with a.only(range(4, 8)):
        h.m_h = {}
        w2bg.i = bg0; del w2bg.items[30:]
        w2bg.emit(a, OPT.get('hi_pre', 4))
        ts(a, 27)
        publish_cnt(a, m_hst, 0, fown_g1)
        ts(a, 25)
        w2bg.drain(a)
        ts(a, 14)
        poll7(a, fbase_g2, 16, F2SEEN, OPT.get('f2_sleep', 6))
        lds_spin(a, F2SEEN, 1)
        ts(a, 26)
        h.main_hi(a, w2bg, f3_issue, f3_check)
    a.label(L_fin)
    h.m_y = tuple(list(h.m_y_lo[:4]) + list(h.m_y_hi[4:]))
    h.final(a)
    ts(a, 24)
    ts(a, 31, True)
    ts_flush(a)

def build_fused(path):
    global SCS
    SCS = OPT.get('scs', ' sc1')
    name = NAME + '_kernel'
    a = AsmW(8, S_W)
    end = 'END_' + name
    prologue(a, end)
    fused_body(a)
    a.label(end)
    a('s_endpgm')
    a.raw('.p2align 13\n.fill 1024, 4, 0xbf800000')
    s = HEADER
    s += '; @launch grid=(256,1,1) block=(512,1,1) lds=163840\n'
    s += '.amdgcn_target "amdgcn-amd-amdhsa--gfx950"\n'
    s += '.text\n.globl %s\n.p2align 8\n.type %s,@function\n%s:\n' % (name, name, name) + a.text()
    s += '.section .rodata,"a"\n.p2align 6\n.amdhsa_kernel %s\n' % name
    s += '  .amdhsa_next_free_vgpr 256\n  .amdhsa_next_free_sgpr 102\n  .amdhsa_accum_offset %d\n' % NVG
    s += '  .amdhsa_group_segment_fixed_size 0\n  .amdhsa_kernarg_size 120\n  .amdhsa_user_sgpr_count 2\n'
    s += '  .amdhsa_user_sgpr_kernarg_segment_ptr 1\n  .amdhsa_system_sgpr_workgroup_id_x 1\n.end_amdhsa_kernel\n'
    open(path, 'w').write(s)
    import re
    mv = max(int(x) for x in re.findall(r'\bv\[?(?:\d+:)?(\d+)', a.text()))
    ma = max(int(x) for x in re.findall(r'\ba\[?(?:\d+:)?(\d+)', a.text()))
    assert mv < NVG and ma < 256 - NVG, (mv, ma)

if __name__ == '__main__':
    for kv in sys.argv[1:]:
        k_, v_ = kv.split('=')
        OPT[k_] = int(v_) if v_.lstrip('-').isdigit() else v_.replace('_', ' ')
    build_fused('k_fused.s')
    PROF = True
    build_fused('k_fused_prof.s')
```

```python
import sys, struct
from asmlib import *
import layout as LY

NAME = 'gated_mix__ssm_conv_h3__dense_activation_gelu__prompt'
HEADER = open('cdna_kernels/%s.s.ref' % NAME).read().split('; Override launch')[0]
OPT = dict(nt=1, scl=' sc1', lead=3, prep_stage=0, f1_pub=3, f1_issue=5, f1_chk=7, psc=' sc1', cas=1, cnt2=1, cnt3=1, f2_pub=2, rot=1, arr=1, f2_issue=4, f2_chk=6, w2_g1=8, w2_gelu=18)

S_XCD, S_IDX, S_Q, S_J, S_R, S_CB, S_W = 3, 4, 5, 6, 7, 8, 9
TOK = 10
P_Q, P_K, P_V, P_SK, P_HK, P_D, P_BX, P_W1, P_B1, P_W2, P_B2, P_GW, P_OUT, P_DBG, P_WS = range(16, 46, 2)
R_X, R_K, R_V, R_W1, R_W2, R_WS, R_OUT, R_HK = range(48, 80, 4)
ST = 80
NB_SD = 2048 * 1280
SCS = ' sc1'
def NT():
    return ' nt' if OPT.get('nt', 0) else ''
def SCL():
    return OPT.get('scl', '')
V_FA, V_TOK, V_POLL, V_PA, V_TS = 243, 244, 246, 248, 251
PROF = False

def f32hex(x):
    return '0x%08x' % struct.unpack('<I', struct.pack('<f', x))[0]
def srd(a, r, p, nbytes):
    a('s_mov_b32 s%d, s%d' % (r, p))
    a('s_and_b32 s%d, s%d, 0xffff' % (r + 1, p + 1))
    a('s_mov_b32 s%d, 0x%x' % (r + 2, nbytes))
    a('s_mov_b32 s%d, 0x20000' % (r + 3))
def scsel(a, dst, vt, vf):
    a('s_mov_b32 s%d, %d' % (dst, vf))
    a('s_cmov_b32 s%d, %d' % (dst, vt))
def unpack(a, dst_lo, dst_hi, src):
    a('v_lshlrev_b32 v%d, 16, v%d' % (dst_lo, src))
    a('v_and_b32 v%d, 0xffff0000, v%d' % (dst_hi, src))
def do(a, x):
    if callable(x): x(a)
    else: a(x)

class BG:
    def __init__(self, items=None):
        self.items = list(items or []); self.i = 0
    def add(self, items): self.items += items
    def left(self): return len(self.items) - self.i
    def emit(self, a, n=1):
        for _ in range(n):
            if self.i < len(self.items):
                do(a, self.items[self.i]); self.i += 1
    def drain(self, a): self.emit(a, self.left())
    def save(self): return self.i
    def restore(self, i): self.i = i

CODE_PIECES = 7
def prologue(a, end_label):
    a('s_cmp_ge_u32 s2, 256')
    a('s_cbranch_scc1 %s' % end_label)
    a('s_load_dwordx16 s[16:31], s[0:1], 0')
    a('s_load_dwordx8 s[32:39], s[0:1], 64')
    a('s_load_dwordx4 s[40:43], s[0:1], 96')
    a('s_load_dwordx2 s[44:45], s[0:1], 112')
    a('s_and_b32 s%d, s2, 7' % S_XCD)
    a('s_lshr_b32 s%d, s2, 3' % S_IDX)
    a('s_getpc_b64 s[12:13]')
    a('s_and_b32 s14, s%d, 7' % S_IDX)
    a('s_min_u32 s14, s14, %d' % (CODE_PIECES - 1))
    a('s_lshl_b32 s14, s14, 12')
    a('s_add_u32 s12, s12, s14')
    a('s_addc_u32 s13, s13, 0')
    a('v_lshlrev_b32 v2, 4, v0')
    a('v_mov_b32 v3, s13')
    a('v_add_co_u32 v2, vcc, s12, v2')
    a('v_addc_co_u32 v3, vcc, 0, v3, vcc')
    a('global_load_dwordx4 v[252:255], v[2:3], off')
    a('v_lshrrev_b32 v2, 6, v0')
    a('v_and_b32 v1, 63, v0')
    a('s_and_b32 s%d, s%d, 3' % (S_Q, S_IDX))
    a('v_readfirstlane_b32 s%d, v2' % S_W)
    a('s_lshl_b32 s%d, s%d, 2' % (ST, S_XCD))
    a('s_lshr_b32 s%d, s%d, 2' % (S_J, S_IDX))
    if OPT['arr']:
        a('s_lshr_b32 s%d, s%d, 1' % (S_R, S_XCD))
        a('s_lshl_b32 s%d, s%d, 2' % (S_R, S_R))
        a('s_add_u32 s%d, s%d, s%d' % (S_R, S_R, S_Q))
        a('s_and_b32 s%d, s%d, 1' % (S_CB, S_XCD))
        a('s_lshl_b32 s%d, s%d, 3' % (S_CB, S_CB))
        a('s_add_u32 s%d, s%d, s%d' % (S_CB, S_CB, S_J))
    else:
        a('s_and_b32 s%d, s%d, 1' % (S_R, S_IDX))
        a('s_lshl_b32 s%d, s%d, 1' % (ST + 1, S_XCD))
        a('s_add_u32 s%d, s%d, s%d' % (S_R, S_R, ST + 1))
        a('s_lshr_b32 s%d, s%d, 1' % (S_CB, S_IDX))
    a('s_mul_i32 s15, s%d, 3' % S_Q)
    a('s_add_u32 s15, s15, s%d' % S_J)
    a('s_sub_u32 s14, s15, 10')
    a('s_cmp_ge_u32 s15, 10')
    a('s_cselect_b32 s15, s14, s15')
    if not OPT['rot']:
        a('s_mov_b32 s15, 0')
    a('s_add_u32 s%d, s%d, s%d' % (S_Q, S_Q, ST))

def srds(a):
    a('s_waitcnt lgkmcnt(0)')
    srd(a, R_X, P_Q, NB_SD)
    srd(a, R_W1, P_W1, 640 * 3072)
def srds2(a):
    srd(a, R_K, P_K, NB_SD)
    srd(a, R_V, P_V, NB_SD)
    srd(a, R_W2, P_W2, 1536 * 1280)
    srd(a, R_WS, P_WS, 0x10000000)
    srd(a, R_OUT, P_OUT, NB_SD)

class Prep:
    LKV, LW2 = 0, 10240
    KR, VR_, SKR, T = 120, 148, 164, 180

    def loads(self, a):
        L_gate = a.newlabel('L_gate'); L_join = a.newlabel('L_pl')
        KR, VR_, SKR = self.KR, self.VR_, self.SKR
        a('s_cmp_eq_u32 s%d, 3' % S_W)
        a('s_cbranch_scc1 %s' % L_gate)
        a('v_mul_u32_u24 v12, 6554, v0')
        a('v_lshrrev_b32 v12, 16, v12')
        a('v_mul_u32_u24 v13, 10, v12')
        a('v_sub_u32 v13, v0, v13')
        a('s_mul_i32 s%d, s%d, %d' % (ST, S_Q, 64 * 1280))
        a('s_mul_i32 s%d, s%d, 160' % (ST + 1, S_J))
        a('s_add_u32 s%d, s%d, s%d' % (ST, ST, ST + 1))
        a('v_mul_u32_u24 v4, 5120, v12')
        a('v_lshl_add_u32 v4, v13, 4, v4')
        a('v_add_u32 v4, s%d, v4' % ST)
        a('v_subrev_u32 v5, 3840, v4')
        a('s_mul_i32 s%d, s%d, 640' % (ST + 1, S_J))
        a('v_lshlrev_b32 v6, 6, v13')
        a('v_add_u32 v6, s%d, v6' % (ST + 1))
        a('v_cmp_gt_u32 vcc, 160, v0')
        a('s_and_saveexec_b64 s[%d:%d], vcc' % (ST + 2, ST + 3))
        for r in range(4):
            a('buffer_load_dwordx4 %s, v4, s[%d:%d], 0 offen offset:%d%s' % (vr(KR + 12 + 4 * r, 4), R_K, R_K + 3, 1280 * r, NT()))
        for r in range(4):
            a('buffer_load_dwordx4 %s, v4, s[%d:%d], 0 offen offset:%d%s' % (vr(VR_ + 4 * r, 4), R_V, R_V + 3, 1280 * r, NT()))
        for r in range(4):
            a('buffer_load_dwordx4 %s, v4, s[%d:%d], 0 offen offset:%d%s' % (ar(4 * r, 4), R_W2, R_W2 + 3, 1280 * r, NT()))
        for i in range(4):
            a('global_load_dwordx4 %s, v6, s[%d:%d] offset:%d' % (vr(SKR + 4 * i, 4), P_SK, P_SK + 1, 16 * i))
        for r in range(3):
            a('buffer_load_dwordx4 %s, v5, s[%d:%d], 0 offen offset:%d%s' % (vr(KR + 4 * r, 4), R_K, R_K + 3, 1280 * r, NT()))
        a('s_mov_b64 exec, s[%d:%d]' % (ST + 2, ST + 3))
        a('s_branch %s' % L_join)
        endA = a.vm_issued
        a.label(L_gate)
        a('v_lshrrev_b32 v12, 3, v1')
        a('v_and_b32 v13, 7, v1')
        a('s_lshl_b32 s%d, s%d, 7' % (ST, S_R))
        a('s_lshl_b32 s%d, s%d, 3' % (ST + 1, S_CB))
        a('s_add_u32 s%d, s%d, s%d' % (ST, ST, ST + 1))
        a('v_add_u32 v12, s%d, v12' % ST)
        a('v_mul_u32_u24 v4, 1280, v12')
        a('v_lshlrev_b32 v5, 4, v13')
        a('v_add_u32 v4, v4, v5')
        for n in range(10):
            a('buffer_load_dwordx4 %s, v4, s[%d:%d], 0 offen offset:%d' % (vr(120 + 4 * n, 4), R_X, R_X + 3, 128 * n))
            a('global_load_dwordx4 %s, v5, s[%d:%d] offset:%d' % (ar(16 + 4 * n, 4), P_GW, P_GW + 1, 128 * n))
        a.label(L_join)
        a.vm_issued = endA
        self.m_all = endA

    def compute(self, a):
        L_gate = a.newlabel('L_gate'); L_join = a.newlabel('L_prepjoin')
        KR, VR_, SKR, T = self.KR, self.VR_, self.SKR, self.T
        LKV, LW2 = self.LKV, self.LW2
        a.wait_vm(self.m_all)
        a('s_cmp_eq_u32 s%d, 3' % S_W)
        a('s_cbranch_scc1 %s' % L_gate)
        a('v_mul_u32_u24 v8, 640, v12')
        a('v_lshlrev_b32 v9, 4, v13')
        a('v_sub_u32 v7, v9, v8')
        a('v_add_u32 v7, %d, v7' % (LKV + 60 * 160))
        a('v_add_u32 v8, v8, v9')
        a('v_add_u32 v8, %d, v8' % LW2)
        a('v_cmp_gt_u32 vcc, 160, v0')
        a('s_and_saveexec_b64 s[%d:%d], vcc' % (ST + 2, ST + 3))
        for r in range(4):
            a('ds_write_b128 v8, %s offset:%d' % (ar(4 * r, 4), r * 160))
        KF, SF, VF, AC = T, T + 14, T + 22, T + 30
        for d in range(4):
            for r in range(7):
                unpack(a, KF + 2 * r, KF + 2 * r + 1, KR + 4 * r + d)
            for h in range(2):
                unpack(a, SF + 0 + h, SF + 2 + h, SKR + 2 * (2 * d + h))
                unpack(a, SF + 4 + h, SF + 6 + h, SKR + 2 * (2 * d + h) + 1)
            for r in range(4):
                unpack(a, VF + 2 * r, VF + 2 * r + 1, VR_ + 4 * r + d)
            for j in range(4):
                for r in range(4):
                    acc = vr(AC + 2 * r, 2); kf = vr(KF + 2 * (r + 3 - j), 2); sf = vr(SF + 2 * j, 2)
                    if j == 0: a('v_pk_mul_f32 %s, %s, %s' % (acc, kf, sf))
                    else: a('v_pk_fma_f32 %s, %s, %s, %s' % (acc, kf, sf, acc))
            for r in range(4):
                a('v_pk_mul_f32 %s, %s, %s' % (vr(AC + 2 * r, 2), vr(AC + 2 * r, 2), vr(VF + 2 * r, 2)))
            for r in range(4):
                a('v_cvt_pk_bf16_f32 v%d, v%d, v%d' % (VR_ + 4 * r + d, AC + 2 * r, AC + 2 * r + 1))
        for r in range(4):
            a('ds_write_b128 v7, %s offset:%d' % (vr(VR_ + 4 * r, 4), (3 - r) * 160))
        a('s_mov_b64 exec, s[%d:%d]' % (ST + 2, ST + 3))
        a('s_branch %s' % L_join)
        cA = a.vm_issued
        a.label(L_gate)
        a('v_mov_b32 v10, 0')
        a('v_mov_b32 v11, 0')
        for n in range(40):
            a('v_accvgpr_read_b32 v%d, a%d' % (T + n, 16 + n))
        for n in range(40):
            acc = 10 + (n & 1)
            a('v_dot2_f32_bf16 v%d, v%d, v%d, v%d' % (acc, 120 + n, T + n, acc))
        a('s_nop 3')
        a('v_add_f32 v10, v10, v11')
        a('v_add_f32_dpp v10, v10, v10 quad_perm:[1,0,3,2] row_mask:0xf bank_mask:0xf')
        a('v_add_f32_dpp v10, v10, v10 quad_perm:[2,3,0,1] row_mask:0xf bank_mask:0xf')
        a('v_add_f32_dpp v10, v10, v10 row_half_mirror row_mask:0xf bank_mask:0xf')
        a('v_cvt_pk_bf16_f32 v10, v10, v10')
        a('v_lshlrev_b32 v10, 16, v10')
        a('v_mul_f32 v10, 0xbfb8aa3b, v10')
        a('v_exp_f32 v10, v10')
        a('v_add_f32 v10, 1.0, v10')
        a('v_rcp_f32 v10, v10')
        a('v_cvt_pk_bf16_f32 v10, v10, v10')
        a('v_lshlrev_b32 v10, 16, v10')
        a('v_lshlrev_b32 v4, 2, v12')
        a('v_add_u32 v4, 0x%x, v4' % LY.G)
        a('v_cmp_eq_u32 vcc, 0, v13')
        a('s_and_saveexec_b64 s[%d:%d], vcc' % (ST + 2, ST + 3))
        a('buffer_store_dword v10, v4, s[%d:%d], 0 offen%s' % (R_WS, R_WS + 3, SCS))
        a('s_mov_b64 exec, s[%d:%d]' % (ST + 2, ST + 3))
        a.label(L_join)
        a.vm_issued = cA

    def transpose(self, a):
        L_skip = a.newlabel('L_prepskip')
        LKV, LW2 = self.LKV, self.LW2
        O = self.T
        a('v_and_b32 v2, 15, v1')
        a('v_lshrrev_b32 v3, 4, v1')
        a('v_lshrrev_b32 v4, 2, v2')
        a('v_and_b32 v5, 3, v1')
        a('s_and_b32 s%d, s%d, 1' % (ST, S_W))
        a('s_cmp_ge_u32 s%d, 2' % S_W)
        a('s_cselect_b32 s%d, 2, 3' % (ST + 1))
        scsel(a, ST + 2, 2560, 640)
        scsel(a, ST + 3, LW2, LKV)
        scsel(a, ST + 4, 1024, 65536)
        a('s_mul_i32 s%d, s%d, %d' % (ST + 5, ST, 32 * 160))
        a('s_add_u32 s%d, s%d, s%d' % (ST + 3, ST + 3, ST + 5))
        a('v_lshlrev_b32 v6, s%d, v3' % (ST + 1))
        a('v_add_u32 v6, v6, v4')
        a('v_mul_u32_u24 v6, 160, v6')
        a('v_lshl_add_u32 v6, v5, 3, v6')
        a('v_add_u32 v6, s%d, v6' % (ST + 3))
        a('v_add_u32 v7, s%d, v6' % (ST + 2))
        for u in range(5):
            a('ds_read_b64_tr_b16 %s, v6 offset:%d' % (vr(O + 4 * u, 2), 32 * u))
            a('ds_read_b64_tr_b16 %s, v7 offset:%d' % (vr(O + 2 + 4 * u, 2), 32 * u))
        m = a.lgkm_mark()
        a('s_mul_i32 s%d, s%d, %d' % (ST + 5, S_J, 80 * 4096))
        a('s_lshl_b32 s%d, s%d, 7' % (ST + 6, S_Q))
        a('s_sub_u32 s%d, s%d, s%d' % (ST + 5, ST + 5, ST + 6))
        a('s_lshl_b32 s%d, s%d, 6' % (ST + 6, ST))
        a('s_add_u32 s%d, s%d, s%d' % (ST + 5, ST + 5, ST + 6))
        a('s_add_u32 s%d, s%d, %d' % (ST + 5, ST + 5, LY.KVT + 2 * 1984))
        a('v_lshlrev_b32 v8, 12, v2')
        a('v_lshl_add_u32 v8, v3, 4, v8')
        a('s_mul_i32 s%d, s%d, 48' % (ST + 6, S_J))
        a('s_lshl_b32 s%d, s%d, 1' % (ST + 7, S_Q))
        a('s_add_u32 s%d, s%d, s%d' % (ST + 6, ST + 6, ST + 7))
        a('s_add_u32 s%d, s%d, s%d' % (ST + 6, ST + 6, ST))
        a('s_mul_i32 s%d, s%d, 5120' % (ST + 6, ST + 6))
        a('s_add_u32 s%d, s%d, 0x%x' % (ST + 6, ST + 6, LY.W2T))
        a('v_lshlrev_b32 v9, 4, v1')
        a('s_cmp_ge_u32 s%d, 2' % S_W)
        a('s_cselect_b32 s%d, s%d, s%d' % (ST + 5, ST + 6, ST + 5))
        a('s_cselect_b64 vcc, -1, 0')
        a('v_cndmask_b32 v8, v8, v9, vcc')
        a('s_cselect_b32 s%d, s%d, 0' % (ST + 7, S_Q))
        a('s_cmp_ge_u32 s%d, 24' % (ST + 7))
        a.wait_lgkm(m)
        a('s_cbranch_scc1 %s' % L_skip)
        cB = a.vm_issued
        for u in range(5):
            a('buffer_store_dwordx4 %s, v8, s[%d:%d], s%d offen%s' % (vr(O + 4 * u, 4), R_WS, R_WS + 3, ST + 5, SCS))
            if u < 4:
                a('s_add_u32 s%d, s%d, s%d' % (ST + 5, ST + 5, ST + 4))
        a.label(L_skip)
        a('s_nop 1')
        a.vm_issued = cB
        self.m_st = cB

RB = 20480
SLOT = 28672
NSLOT = 5
class G1:
    VX, VW, VB = 16, 20, 24
    ACC, BIAS, BRAW = 36, 84, 108
    AF, BF = 192, 240
    SX, SWO = 96, 97

    def setup(self, a):
        a('v_lshrrev_b32 v2, 3, v1')
        a('v_and_b32 v3, 7, v1')
        a('s_lshl_b32 s%d, s%d, 7' % (ST, S_R))
        a('s_lshl_b32 s%d, s%d, 5' % (ST + 1, S_W))
        a('s_add_u32 s%d, s%d, s%d' % (ST, ST, ST + 1))
        a('s_mul_i32 s%d, s%d, 1280' % (ST, ST))
        for i in range(2):
            a('v_add_u32 v4, %d, v2' % (8 * i))
            a('v_bfe_u32 v5, v4, 1, 3')
            a('v_xor_b32 v5, v5, v3')
            a('v_mul_u32_u24 v4, 1280, v4')
            a('v_lshl_add_u32 v4, v5, 4, v4')
            a('v_add_u32 v4, s%d, v4' % ST)
            if i == 0: a('v_mov_b32 v%d, v4' % (self.VX))
            else: a('v_subrev_u32 v%d, %d, v4' % (self.VX + i, 1024 * i))
            a('v_add_u32 v%d, %d, v4' % (self.VX + i + 2, 16 * 1280 - 1024 * (i + 2)))
        a('s_mul_i32 s%d, s%d, %d' % (ST, S_W, 16 * 3072))
        a('s_mul_i32 s%d, s%d, 192' % (ST + 1, S_CB))
        a('s_add_u32 s%d, s%d, s%d' % (ST, ST, ST + 1))
        for i in range(3):
            a('v_add_u32 v4, %d, v1' % (64 * i))
            a('v_mul_u32_u24 v5, 5462, v4')
            a('v_lshrrev_b32 v5, 16, v5')
            a('v_mul_u32_u24 v6, 12, v5')
            a('v_sub_u32 v6, v4, v6')
            a('v_bfe_u32 v7, v5, 3, 1')
            a('v_lshlrev_b32 v7, 1, v7')
            a('v_sub_u32 v6, v6, v7')
            a('v_add_u32 v7, 12, v6')
            a('v_min_u32 v6, v6, v7')
            a('v_mul_u32_u24 v5, 3072, v5')
            a('v_lshl_add_u32 v5, v6, 4, v5')
            a('v_add_u32 v5, s%d, v5' % ST)
            a('v_subrev_u32 v%d, %d, v5' % (self.VW + i, 1024 * i))
        a('s_lshl_b32 s%d, s15, 7' % self.SX)
        a('s_mul_i32 s%d, s15, %d' % (self.SWO, 64 * 3072))
        a('s_lshl_b32 s98, s%d, 12' % S_W)
        a('s_mul_i32 s99, s%d, 3072' % S_W)
        a('s_add_u32 s99, s99, 16384')
        self.marks = {}

    def dma_items(self, stage):
        slot = RB + SLOT * (stage % NSLOT)
        L = []
        def first(a):
            a('s_add_u32 m0, s98, %d' % slot)
            a('buffer_load_dwordx4 v%d, s[%d:%d], s%d offen lds' % (self.VX, R_X, R_X + 3, self.SX))
        L.append(first)
        for i in range(1, 4):
            L.append('buffer_load_dwordx4 v%d, s[%d:%d], s%d offen offset:%d lds' % (self.VX + i, R_X, R_X + 3, self.SX, 1024 * i))
        def mid(a):
            a('s_add_u32 m0, s99, %d' % slot)
            a('s_add_u32 s%d, s%d, 128' % (self.SX, self.SX))
            a('buffer_load_dwordx4 v%d, s[%d:%d], s%d offen lds' % (self.VW, R_W1, R_W1 + 3, self.SWO))
        L.append(mid)
        L.append('buffer_load_dwordx4 v%d, s[%d:%d], s%d offen offset:1024 lds' % (self.VW + 1, R_W1, R_W1 + 3, self.SWO))
        def last(a):
            a('buffer_load_dwordx4 v%d, s[%d:%d], s%d offen offset:2048 lds' % (self.VW + 2, R_W1, R_W1 + 3, self.SWO))
            self.marks[stage] = a.vm_mark()
            a('s_add_u32 s%d, s%d, %d' % (self.SWO, self.SWO, 64 * 3072))
            a('s_cmp_eq_u32 s%d, 1280' % self.SX)
            a('s_cmov_b32 s%d, 0' % self.SX)
            a('s_cmov_b32 s%d, 0' % self.SWO)
        L.append(last)
        return L

    def dma(self, a, stage):
        for x in self.dma_items(stage):
            do(a, x)

    def bias_load(self, a):
        a('v_lshrrev_b32 v3, 4, v1')
        a('s_mul_i32 s%d, s%d, 192' % (ST, S_CB))
        a('v_lshlrev_b32 v4, 3, v3')
        a('v_add_u32 v4, s%d, v4' % ST)
        for ft in range(6):
            a('global_load_dwordx2 %s, v4, s[%d:%d] offset:%d' % (vr(self.BRAW + 2 * ft, 2), P_B1, P_B1 + 1, 32 * ft))
        self.m_bias = a.vm_mark()

    def setup2(self, a):
        a('v_lshrrev_b32 v3, 4, v1')
        a('v_and_b32 v2, 15, v1')
        a('v_lshrrev_b32 v4, 1, v2')
        a('v_xor_b32 v4, v4, v3')
        a('v_lshlrev_b32 v4, 4, v4')
        a('v_lshl_add_u32 v4, v2, 7, v4')
        a('v_add_u32 v4, s98, v4')
        a('v_xor_b32 v5, 64, v4')
        a('v_lshrrev_b32 v6, 2, v2')
        a('v_lshl_add_u32 v6, v3, 3, v6')
        a('v_mul_u32_u24 v6, 192, v6')
        a('v_and_b32 v7, 3, v1')
        a('v_lshl_add_u32 v6, v7, 3, v6')
        a('v_and_b32 v7, 1, v3')
        a('v_lshl_add_u32 v6, v7, 5, v6')
        a('v_mul_u32_u24 v7, 192, v7')
        a('v_sub_u32 v7, v6, v7')
        for grp in range(3):
            off = RB + 2 * SLOT * grp
            a('v_add_u32 v%d, %d, v4' % (self.VB + 4 * grp, off))
            a('v_add_u32 v%d, %d, v5' % (self.VB + 4 * grp + 1, off))
            a('v_add_u32 v%d, %d, v6' % (self.VB + 4 * grp + 2, off + 16384))
            a('v_add_u32 v%d, %d, v7' % (self.VB + 4 * grp + 3, off + 16384))

    def unpack_bias(self, a):
        a.wait_vm(self.m_bias)
        for ft in range(6):
            for d in range(2):
                unpack(a, self.BIAS + 4 * ft + 2 * d, self.BIAS + 4 * ft + 2 * d + 1, self.BRAW + 2 * ft + d)

    def reads(self, stage, kk):
        slot = stage % NSLOT
        grp, so = slot // 2, (slot % 2) * SLOT
        L = []
        for st in range(2):
            L.append('ds_read_b128 %s, v%d offset:%d' % (ar(self.BF + 8 * kk + 4 * st, 4), self.VB + 4 * grp + kk, so + 2048 * st))
        for ft in range(6):
            base = self.VB + 4 * grp + (3 if ft == 5 else 2)
            for h in range(2):
                L.append('ds_read_b64_tr_b16 %s, v%d offset:%d' % (ar(self.AF + 24 * kk + 4 * ft + 2 * h, 2), base, so + 6144 * kk + 768 * h + 32 * ft))
        return L

    def mfma(self, kk, ft, st, first):
        acc = vr(self.ACC + 8 * ft + 4 * st, 4)
        c = vr(self.BIAS + 4 * ft, 4) if first else acc
        return 'v_mfma_f32_16x16x32_bf16 %s, %s, %s, %s' % (acc, ar(self.AF + 24 * kk + 4 * ft, 4), ar(self.BF + 8 * kk + 4 * st, 4), c)

    def block(self, a, kk, first, rmarks, nxt, bg):
        newmarks = []
        ni = 0
        for ft in range(6):
            if rmarks is not None:
                a.wait_lgkm(rmarks[2 + 2 * ft + 1])
            for st in range(2):
                a(self.mfma(kk, ft, st, first))
                if ni < len(nxt):
                    for _ in range(2):
                        a(nxt[ni]); newmarks.append(a.lgkm_mark()); ni += 1
                elif bg is not None:
                    bg.emit(a, 1)
        return newmarks

    def main(self, a, pre, post, mid, bgs):
        lead = OPT['lead']
        pm = None
        for i in range(10):
            if pm is not None:
                a('s_waitcnt lgkmcnt(0)')
            a.wait_vm(max(self.marks[i], pre[i]() if i in pre else 0))
            a('s_barrier')
            bg = BG()
            if i + lead <= 9 and (i + lead) not in self.marks:
                bg.add(self.dma_items(i + lead))
            if i in bgs:
                bg.add(bgs[i])
            rd = self.reads(i, 0)
            if pm is None:
                m0 = []
                for x in rd:
                    a(x); m0.append(a.lgkm_mark())
                bg.emit(a, 4)
            else:
                m0 = self.block(a, 1, False, None, rd, bg)
            if i in post:
                post[i](a)
            pm = self.block(a, 0, i == 0, m0, self.reads(i, 1), bg)
            bg.drain(a)
            if i in mid:
                mid[i](a)
        self.block(a, 1, False, pm, [], bgs.get(10))

    def epilogue(self, a, bg, per):
        C1, C2, ONE, T, O = 84, 86, 88, 90, 124
        c1 = -2.0 * 1.4426950408889634 * 0.7978845608028654
        for r, val in ((C1, c1), (C2, c1 * 0.044715), (ONE, 1.0)):
            a('v_mov_b32 v%d, %s' % (r, f32hex(val)))
            a('v_mov_b32 v%d, %s' % (r + 1, f32hex(val)))
        a('s_lshl_b32 s%d, s%d, 3' % (ST, S_R))
        a('s_lshl_b32 s%d, s%d, 1' % (ST + 1, S_W))
        a('s_add_u32 s%d, s%d, s%d' % (ST, ST, ST + 1))
        a('s_mul_i32 s%d, s%d, 48' % (ST, ST))
        a('s_mul_i32 s%d, s%d, 3' % (ST + 1, S_CB))
        a('s_add_u32 s%d, s%d, s%d' % (ST, ST, ST + 1))
        a('s_lshl_b32 s%d, s%d, 10' % (ST, ST))
        a('s_add_u32 s%d, s%d, 0x%x' % (ST, ST, LY.HF))
        a('s_add_u32 s%d, s%d, %d' % (ST + 1, ST, 48 * 1024))
        a('v_lshlrev_b32 v2, 4, v1')
        k = 0
        for st in range(2):
            for J in range(3):
                o = O + 4 * (k % 4); t0 = T + 16 * (k % 2); k += 1
                prs = [self.ACC + 8 * (2 * J + h) + 4 * st + 2 * p for h in range(2) for p in range(2)]
                for n, x in enumerate(prs):
                    a('v_pk_mul_f32 %s, %s, %s' % (vr(t0 + 2 * n, 2), vr(x, 2), vr(x, 2)))
                for n, x in enumerate(prs):
                    a('v_pk_fma_f32 %s, %s, %s, %s' % (vr(t0 + 2 * n, 2), vr(t0 + 2 * n, 2), vr(C2, 2), vr(C1, 2)))
                for n, x in enumerate(prs):
                    a('v_pk_mul_f32 %s, %s, %s' % (vr(t0 + 2 * n, 2), vr(t0 + 2 * n, 2), vr(x, 2)))
                bg.emit(a, (per + 2) // 3)
                for n in range(8):
                    a('v_exp_f32 v%d, v%d' % (t0 + n, t0 + n))
                for n, x in enumerate(prs):
                    a('v_pk_add_f32 %s, %s, %s' % (vr(t0 + 2 * n, 2), vr(t0 + 2 * n, 2), vr(ONE, 2)))
                bg.emit(a, (per + 1) // 3)
                for n in range(8):
                    a('v_rcp_f32 v%d, v%d' % (t0 + n, t0 + n))
                for n, x in enumerate(prs):
                    a('v_pk_mul_f32 %s, %s, %s' % (vr(t0 + 2 * n, 2), vr(t0 + 2 * n, 2), vr(x, 2)))
                bg.emit(a, per // 3)
                for n in range(4):
                    a('v_cvt_pk_bf16_f32 v%d, v%d, v%d' % (o + n, t0 + 2 * n, t0 + 2 * n + 1))
                a('buffer_store_dwordx4 %s, v2, s[%d:%d], s%d offen offset:%d%s' % (vr(o, 4), R_WS, R_WS + 3, ST + st, 1024 * J, SCS))

PP = 4160
QO0 = 16656
QO1 = QO0 + 4640
CS = 25856
CB = 0
TOP = [7, 6, 5, 2]
BOT = [4, 3, 1, 0]

class Conv:
    VADR = 16
    FR, ACC = 32, 112
    PRAW, QRAW, PT = 220, 140, 180
    SCH = 90
    S_D = 93

    def channels(self, a):
        a('s_mul_i32 s%d, s%d, 80' % (ST, S_J))
        a('s_lshr_b32 s%d, s%d, 1' % (ST + 1, S_Q))
        a('s_mul_i32 s%d, s%d, 5' % (ST + 1, ST + 1))
        a('s_add_u32 s%d, s%d, s%d' % (ST, ST, ST + 1))
        a('s_and_b32 s%d, s%d, 1' % (ST + 1, S_Q))
        a('s_mul_i32 s%d, s%d, 3' % (ST + 1, ST + 1))
        a('s_add_u32 s%d, s%d, s%d' % (self.SCH, ST, ST + 1))
        a('s_add_u32 s%d, s%d, 1' % (self.SCH + 1, self.SCH))
        a('s_add_u32 s%d, s%d, 2' % (self.SCH + 2, ST))

    def load_p(self, a):
        a('v_lshlrev_b32 v2, 4, v0')
        a('v_subrev_u32 v3, 8, v2')
        a('s_mov_b32 s%d, 4096' % (R_HK + 2))
        a('s_mov_b32 s%d, 0x20000' % (R_HK + 3))
        for sl in range(3):
            a('s_lshl_b32 s%d, s%d, 12' % (ST, self.SCH + sl))
            a('s_add_u32 s%d, s%d, s%d' % (R_HK, P_HK, ST))
            a('s_addc_u32 s%d, s%d, 0' % (R_HK + 1, P_HK + 1))
            a('s_and_b32 s%d, s%d, 0xffff' % (R_HK + 1, R_HK + 1))
            a('buffer_load_dwordx4 %s, v2, s[%d:%d], 0 offen%s' % (vr(self.PRAW + 6 * sl + 2, 4), R_HK, R_HK + 3, NT()))
            a('buffer_load_dwordx2 %s, v3, s[%d:%d], 0 offen%s' % (vr(self.PRAW + 6 * sl, 2), R_HK, R_HK + 3, NT()))
        self.m_p = a.vm_mark()

    def load_q(self, a):
        a('v_lshlrev_b32 v2, 4, v0')
        for sl in range(3):
            a('s_lshl_b32 s%d, s%d, 12' % (ST + sl, self.SCH + sl))
            if LY.KVT:
                a('s_add_u32 s%d, s%d, 0x%x' % (ST + sl, ST + sl, LY.KVT))
            a('buffer_load_dwordx4 %s, v2, s[%d:%d], s%d offen%s' % (vr(self.QRAW + 4 * sl, 4), R_WS, R_WS + 3, ST + sl, SCL()))
        self.m_q = a.vm_mark()

    def zero_fill(self, a):
        L = a.newlabel('L_zf')
        a('s_cmp_ge_u32 s%d, 3' % S_W)
        a('s_cbranch_scc1 %s' % L)
        c = a.lgkm_issued
        for i in range(4):
            a('v_mov_b32 v%d, 0' % (8 + i))
        a('s_mul_i32 s%d, s%d, %d' % (ST, S_W, CS))
        a('v_lshlrev_b32 v2, 4, v1')
        a('v_add_u32 v2, s%d, v2' % ST)
        a('v_bfe_u32 v3, v1, 2, 2')
        a('v_mul_u32_u24 v3, %d, v3' % PP)
        a('v_and_b32 v4, 3, v1')
        a('v_lshl_add_u32 v3, v4, 4, v3')
        a('v_add_u32 v3, s%d, v3' % ST)
        a('v_cmp_gt_u32 vcc, 29, v1')
        a('s_and_saveexec_b64 s[%d:%d], vcc' % (ST + 2, ST + 3))
        a('ds_write_b128 v2, v[8:11] offset:%d' % (CB + QO0 + 4080))
        a('ds_write_b128 v2, v[8:11] offset:%d' % (CB + QO1 + 4096))
        a('ds_write_b128 v3, v[8:11] offset:%d' % CB)
        a('v_and_b32 v4, 3, v1')
        a('v_lshlrev_b32 v4, 4, v4')
        a('v_add_u32 v4, %d, v4' % (3 * CS))
        a('ds_write_b128 v4, v[8:11]')
        a('s_mov_b64 exec, s[%d:%d]' % (ST + 2, ST + 3))
        a.lgkm_issued = c
        a.label(L)

    def build_p(self, a):
        a('v_lshlrev_b32 v2, 4, v0')
        a.wait_vm(self.m_p)
        for sl in range(3):
            D = self.PRAW + 6 * sl
            T = self.PT + 12 * sl
            base = CB + CS * sl + 48
            assert base + 3 * PP <= 65535
            for k in range(4):
                a('v_alignbit_b32 v%d, v%d, v%d, 16' % (T + k, D + k + 1, D + k))
            a('ds_write_b128 v2, %s offset:%d' % (vr(D + 2, 4), base + 3 * PP))
            for k in range(4):
                a('v_mov_b32 v%d, v%d' % (T + 4 + k, D + 1 + k))
            a('ds_write_b128 v2, %s offset:%d' % (vr(T, 4), base))
            for k in range(3):
                a('v_mov_b32 v%d, v%d' % (T + 8 + k, T + 1 + k))
            a('v_alignbit_b32 v%d, v%d, v%d, 16' % (T + 11, D + 5, D + 4))
            a('ds_write_b128 v2, %s offset:%d' % (vr(T + 4, 4), base + PP))
            a('ds_write_b128 v2, %s offset:%d' % (vr(T + 8, 4), base + 2 * PP))

    def build_q(self, a):
        a('v_lshlrev_b32 v2, 4, v0')
        for sl in range(3):
            a('v_add_u32 v%d, %d, v2' % (4 + sl, CB + CS * sl + QO0 - 8))
        a.wait_vm(self.m_q)
        for sl in range(3):
            Q = self.QRAW + 4 * sl
            a('ds_write_b128 v%d, %s offset:%d' % (4 + sl, vr(Q, 4), QO1 - QO0 + 8))
            a('ds_write2_b64 v%d, %s, %s offset0:0 offset1:1' % (4 + sl, vr(Q, 2), vr(Q + 2, 2)))

    def task_setup(self, a):
        a('v_and_b32 v2, 15, v1')
        a('v_lshrrev_b32 v3, 4, v1')
        a('v_and_b32 v4, 3, v1')
        a('v_lshrrev_b32 v5, 2, v2')
        a('v_add_u32 v5, v5, v3')
        a('v_mul_u32_u24 v4, %d, v4' % PP)
        a('v_lshl_add_u32 v28, v5, 4, v4')
        a('v_and_b32 v4, 1, v1')
        a('v_lshrrev_b32 v5, 1, v2')
        a('v_lshlrev_b32 v5, 6, v5')
        a('v_lshlrev_b32 v6, 4, v3')
        a('v_mul_u32_u24 v7, 4640, v4')
        a('v_add_u32 v7, v7, v6')
        a('v_sub_u32 v7, v7, v5')
        a('v_add_u32 v29, %d, v7' % (QO0 + 448))
        a('v_add_u32 v5, v5, v6')
        a('v_lshl_add_u32 v31, v4, 3, v5')
        a('v_sub_u32 v30, %d, v31' % (QO1 + 504))
        a('s_cmp_eq_u32 s%d, 3' % S_W)
        a('s_cselect_b32 s%d, 0, s%d' % (ST + 2, S_W))
        a('s_cmp_eq_u32 s%d, 1' % (ST + 2))
        a('s_cselect_b32 s%d, s%d, s%d' % (ST + 3, self.SCH + 1, self.SCH))
        a('s_cmp_eq_u32 s%d, 2' % (ST + 2))
        a('s_cselect_b32 s%d, s%d, s%d' % (ST + 3, self.SCH + 2, ST + 3))
        a('s_mov_b32 s%d, s%d' % (ST + 4, self.SCH + 1))
        for k in range(2):
            ch = ST + 3 + k
            a('s_lshr_b32 s%d, s%d, 1' % (ST, ch))
            a('s_lshl_b32 s%d, s%d, 2' % (ST, ST))
            a('s_load_dword s%d, s[%d:%d], s%d' % (self.S_D + k, P_D, P_D + 1, ST))
            if k == 0:
                a('s_mul_i32 s%d, s%d, %d' % (ST, ST + 2, CS))
                if CB: a('s_add_u32 s%d, s%d, %d' % (ST, ST, CB))
            else:
                a('s_mov_b32 s%d, %d' % (ST, CB + CS))
            for n in range(3):
                a('v_add_u32 v%d, s%d, v%d' % (self.VADR + 4 * k + n, ST, 28 + n))
            a('s_lshl_b32 s%d, s%d, 12' % (ST + 1, ch))
            a('s_add_u32 s%d, s%d, 0x%x' % (ST + 1, ST + 1, LY.Y2T))
            a('v_add_u32 v%d, s%d, v31' % (self.VADR + 4 * k + 3, ST + 1))
        a('s_waitcnt lgkmcnt(0)')
        for k in range(2):
            a('s_lshl_b32 s%d, s%d, 16' % (ST, self.S_D + k))
            a('s_and_b32 s%d, s%d, 0xffff0000' % (self.S_D + k, self.S_D + k))
            a('s_bitcmp0_b32 s%d, 0' % (ST + 3 + k))
            a('s_cselect_b32 s%d, s%d, s%d' % (self.S_D + k, ST, self.S_D + k))

    def task(self, a, subs, hooks, bg, bg_every):
        freg = {}
        nr = self.FR
        for k, tiles in subs:
            n = max(tiles) + 1
            for p in range(n):
                freg[(k, 'A', p)] = nr; nr += 4
            for p in range(n):
                freg[(k, 'B', p)] = nr; nr += 4
        assert nr <= self.ACC
        areg = {}
        na = self.ACC
        for k, tiles in subs:
            for t in tiles:
                areg[(k, t)] = na; na += 4
        order = []
        maxp = max(max(t) for _, t in subs)
        for p in range(maxp + 1):
            for k, tiles in subs:
                for t in tiles:
                    if t >= p:
                        order.append((k, t, p))
        def rd(key, r):
            k, ab, p = key
            if ab == 'A':
                return 'ds_read_b128 %s, v%d offset:%d' % (vr(freg[key], 4), self.VADR + 4 * k, 512 * p + 64 * r)
            return 'ds_read_b128 %s, v%d offset:%d' % (vr(freg[key], 4), self.VADR + 4 * k + 1, 512 * (7 - p) + 64 * r)
        uses = [((k, 'A', p), (k, 'B', t - p)) for k, t, p in order]
        last = {}; first = {}
        for i, us in enumerate(uses):
            for u in us:
                last[u] = i; first.setdefault(u, i)
        mark = {}
        for key in sorted(first, key=lambda u: first[u]):
            a(rd(key, 0)); mark[key] = a.lgkm_mark()
        cnt = 0
        umark = {}
        UT = 144 - 0
        for r in range(8):
            if r in hooks:
                hooks[r](a)
            waited = -1
            seen = set()
            for i, (k, t, p) in enumerate(order):
                need = max(mark[u] for u in uses[i])
                if need > waited:
                    a.wait_lgkm(need); waited = need
                acc = vr(areg[(k, t)], 4)
                c = acc if (r > 0 or (k, t) in seen) else '0'
                seen.add((k, t))
                a('v_mfma_f32_16x16x32_bf16 %s, %s, %s, %s' % (acc, vr(freg[uses[i][0]], 4), vr(freg[uses[i][1]], 4), c))
                newm = {}
                for u in uses[i]:
                    if last[u] == i and r < 7:
                        a(rd(u, r + 1)); newm[u] = a.lgkm_mark()
                    elif last[u] == i and r == 7 and u[1] == 'A' and u[2] < len(dict(subs)[u[0]]):
                        tt = dict(subs)[u[0]][u[2]]
                        a('ds_read_b64 %s, v%d offset:%d' % (vr(freg[u], 2), self.VADR + 4 * u[0] + 2, 512 * (7 - tt)))
                        umark[(u[0], tt)] = (freg[u], a.lgkm_mark())
                for u, m in newm.items():
                    mark[(u, 'next')] = m
                cnt += 1
                if cnt % bg_every == 0:
                    bg.emit(a, 1)
            for u in list(first):
                if (u, 'next') in mark:
                    mark[u] = mark.pop((u, 'next'))
        X = 2
        for k, tiles in subs:
            for t in sorted(tiles):
                U, m = umark[(k, t)]
                A = areg[(k, t)]
                a.wait_lgkm(m)
                X = 4 if X == 8 else 8
                unpack(a, X + 3, X + 2, U)
                unpack(a, X + 1, X + 0, U + 1)
                for n in range(4):
                    a('v_fma_f32 v%d, v%d, s%d, v%d' % (X + n, X + n, self.S_D + k, A + n))
                a('v_cvt_pk_bf16_f32 v%d, v%d, v%d' % (U, X, X + 1))
                a('v_cvt_pk_bf16_f32 v%d, v%d, v%d' % (U + 1, X + 2, X + 3))
                a('buffer_store_dwordx2 %s, v%d, s[%d:%d], 0 offen offset:%d%s' % (vr(U, 2), self.VADR + 4 * k + 3, R_WS, R_WS + 3, 512 * t, SCS))

    def run(self, a, hooks, bg, bg_every):
        L_b1 = a.newlabel('L_bot1'); L_b2 = a.newlabel('L_bot2'); L_done = a.newlabel('L_cdone')
        a('s_cmp_eq_u32 s%d, 3' % S_W)
        a('s_cbranch_scc1 %s' % L_b2)
        a('s_and_b32 s%d, s%d, 1' % (ST + 4, S_Q))
        a('s_add_u32 s%d, s%d, s%d' % (ST + 4, ST + 4, S_W))
        a('s_cmp_ge_u32 s%d, 3' % (ST + 4))
        a('s_cbranch_scc1 %s' % L_b1)
        c0 = a.vm_issued; b0 = bg.save(); n0 = len(bg.items)
        ends = []; bgi = []
        for lab, subs, every in ((None, [(0, TOP)], bg_every), (L_b1, [(0, BOT)], max(1, bg_every // 2)), (L_b2, [(0, BOT), (1, BOT)], bg_every)):
            a.vm_issued = c0; bg.restore(b0); del bg.items[n0:]
            if lab:
                a.label(lab)
                a('s_nop 1')
            self._bgdrain = True
            self.task_wrapper(a, subs, hooks, bg, every)
            ends.append(a.vm_issued)
            bgi.append((bg.i, len(bg.items)))
            if lab != L_b2:
                a('s_branch %s' % L_done)
        a.label(L_done)
        assert len(set(bgi)) == 1, bgi
        assert ends[0] == ends[1] == ends[2] - 4, ends
        a.vm_issued = min(ends)

    def task_wrapper(self, a, subs, hooks, bg, every):
        self.task(a, subs, hooks, bg, every)

RED = 81920
YL = 143360
class G2:
    ACC, VL = 16, 60
    HB = [144, 192, 64, 144]
    QR, B2R, GR = 112, 122, 132
    B2F, Y, YT = 192, 212, 224
    VLW = 242

    def w2_items(self):
        L = []
        def init(a):
            a('v_lshlrev_b32 v%d, 4, v1' % self.VLW)
            a('s_mul_i32 s101, s%d, 48' % S_J)
            a('s_mul_i32 s100, s%d, 12' % S_W)
            a('s_add_u32 s101, s101, s100')
            a('s_mul_i32 s101, s101, 5120')
            a('s_add_u32 s101, s101, 0x%x' % LY.W2T)
        for n in range(60):
            def f(a, n=n):
                if n == 0: init(a)
                a('buffer_load_dwordx4 %s, v%d, s[%d:%d], s101 offen offset:%d%s' % (ar(4 * n, 4), self.VLW, R_WS, R_WS + 3, 1024 * (n % 4), SCL()))
                if n % 4 == 3:
                    a('s_add_u32 s101, s101, 4096')
                self.m_w2 = a.vm_mark()
            L.append(f)
        return L

    def h_items(self, it):
        L = []
        for ks in range(12):
            def f(a, ks=ks):
                if ks == 0:
                    a('s_add_u32 s100, s%d, %d' % (S_W, 1 + it))
                    a('s_and_b32 s100, s100, 3')
                    a('s_lshl_b32 s95, s%d, 2' % S_Q)
                    a('s_add_u32 s95, s95, s100')
                    a('s_mul_i32 s95, s95, 48')
                    a('s_mul_i32 s100, s%d, 12' % S_W)
                    a('s_add_u32 s95, s95, s100')
                    a('s_lshl_b32 s95, s95, 10')
                    a('s_add_u32 s95, s95, 0x%x' % LY.HF)
                a('buffer_load_dwordx4 %s, v%d, s[%d:%d], s95 offen offset:%d%s' % (vr(self.HB[it] + 4 * ks, 4), self.VLW, R_WS, R_WS + 3, 1024 * (ks % 4), SCL()))
                self.m_h[(it, ks)] = a.vm_mark()
                if ks % 4 == 3 and ks < 11:
                    a('s_add_u32 s95, s95, 4096')
            L.append(f)
        return L

    def epi_addr(self, a):
        a('v_lshlrev_b32 v%d, 4, v1' % self.VL)
        a('v_and_b32 v10, 15, v1')
        a('v_lshrrev_b32 v11, 4, v1')
        a('s_lshl_b32 s%d, s%d, 6' % (ST, S_Q))
        a('s_lshl_b32 s%d, s%d, 4' % (ST + 1, S_W))
        a('s_add_u32 s%d, s%d, s%d' % (ST, ST, ST + 1))
        a('s_mul_i32 s%d, s%d, 160' % (ST + 1, S_J))
        a('v_add_u32 v10, s%d, v10' % ST)
        a('v_lshlrev_b32 v4, 3, v11')
        a('v_add_u32 v4, s%d, v4' % (ST + 1))
        a('v_mul_u32_u24 v3, 1280, v10')
        a('v_add_u32 v3, v3, v4')
        a('v_lshlrev_b32 v5, 2, v10')
        a('v_add_u32 v5, 0x%x, v5' % LY.G)
        a('s_mul_i32 s%d, s%d, %d' % (ST + 1, S_J, 80 * 4096))
        a('s_lshl_b32 s%d, s%d, 1' % (ST, ST))
        a('s_add_u32 s%d, s%d, s%d' % (ST, ST, ST + 1))
        a('s_add_u32 s%d, s%d, 0x%x' % (ST, ST, LY.Y2T))
        a('v_lshrrev_b32 v6, 1, v1')
        a('v_lshlrev_b32 v6, 12, v6')
        a('v_and_b32 v10, 1, v1')
        a('v_lshl_add_u32 v6, v10, 4, v6')
        a('v_add_u32 v6, s%d, v6' % ST)
        a('s_mul_i32 s%d, s%d, 2560' % (ST, S_W))
        a('s_add_u32 s%d, s%d, %d' % (ST, ST, YL))
        a('v_add_u32 v7, s%d, v%d' % (ST, self.VL))
        a('v_lshlrev_b32 v8, 3, v1')
        a('v_add_u32 v8, s%d, v8' % ST)
        for it in range(3):
            a('s_add_u32 s%d, s%d, %d' % (ST, S_W, 1 + it))
            a('s_and_b32 s%d, s%d, 3' % (ST, ST))
            a('s_mul_i32 s%d, s%d, 15360' % (ST, ST))
            a('s_add_u32 s%d, s%d, %d' % (ST, ST, RED + 5120 * it))
            a('v_add_u32 v%d, s%d, v%d' % (12 + it, ST, self.VL))
        a('s_mul_i32 s%d, s%d, 15360' % (ST, S_W))
        a('s_add_u32 s%d, s%d, %d' % (ST, ST, RED))
        a('v_add_u32 v15, s%d, v%d' % (ST, self.VL))

    def epi_input_items(self):
        L = []
        for dt in range(5):
            L.append('global_load_dwordx2 %s, v4, s[%d:%d] offset:%d' % (vr(self.B2R + 2 * dt, 2), P_B2, P_B2 + 1, 32 * dt))
        for dt in range(5):
            L.append('buffer_load_dwordx2 %s, v3, s[%d:%d], 0 offen offset:%d' % (vr(self.QR + 2 * dt, 2), R_X, R_X + 3, 32 * dt))
        def f(a):
            a('buffer_load_dword v%d, v5, s[%d:%d], 0 offen%s' % (self.GR, R_WS, R_WS + 3, SCL()))
            self.m_in = a.vm_mark()
        L.append(f)
        return L

    def y_loads(self, a):
        Y = self.Y
        a('s_mov_b32 s%d, %d' % (ST, 32 * 4096))
        a('s_mov_b32 s%d, %d' % (ST + 1, 64 * 4096))
        a('buffer_load_dwordx4 %s, v6, s[%d:%d], 0 offen%s' % (vr(Y, 4), R_WS, R_WS + 3, SCL()))
        a('buffer_load_dwordx4 %s, v6, s[%d:%d], s%d offen%s' % (vr(Y + 4, 4), R_WS, R_WS + 3, ST, SCL()))
        a('s_mov_b64 exec, 0xffffffff')
        a('buffer_load_dwordx4 %s, v6, s[%d:%d], s%d offen%s' % (vr(Y + 8, 4), R_WS, R_WS + 3, ST + 1, SCL()))
        a('s_mov_b64 exec, -1')
        self.m_y = a.vm_mark()

    def y_stage(self, a):
        Y = self.Y
        a.wait_vm(self.m_y)
        a('ds_write_b128 v7, %s' % vr(Y, 4))
        a('ds_write_b128 v7, %s offset:1024' % vr(Y + 4, 4))
        a('s_mov_b64 exec, 0xffffffff')
        a('ds_write_b128 v7, %s offset:2048' % vr(Y + 8, 4))
        a('s_mov_b64 exec, -1')
        for dt in range(5):
            a('ds_read_b64_tr_b16 %s, v8 offset:%d' % (vr(self.YT + 2 * dt, 2), 512 * dt))

    def iteration(self, a, it, fill, bg=None, bg_every=4):
        acc0 = self.ACC + 20 * (it % 2)
        fi = 0; cnt = 0
        for ks in range(12):
            while (it, ks) not in self.m_h:
                bg.emit(a, 1)
            a.wait_vm(max(self.m_h[(it, ks)], self.m_w2 if (it == 0 and ks == 0) else 0))
            for dt in range(5):
                acc = vr(acc0 + 4 * dt, 4)
                c = acc if ks > 0 else (vr(self.B2F + 4 * dt, 4) if it == 3 else '0')
                a('v_mfma_f32_16x16x32_bf16 %s, %s, %s, %s' % (acc, ar(4 * (5 * ks + dt), 4), vr(self.HB[it] + 4 * ks, 4), c))
                cnt += 1
                if bg is not None and cnt % bg_every == 0 and bg.left():
                    bg.emit(a, 1)
                elif ks >= 2 and fi < len(fill):
                    a(fill[fi]); fi += 1
        while fi < len(fill):
            a(fill[fi]); fi += 1

    def red_writes(self, it):
        acc0 = self.ACC + 20 * (it % 2)
        return ['ds_write_b128 v%d, %s offset:%d' % (12 + it, vr(acc0 + 4 * dt, 4), 1024 * dt) for dt in range(5)]

    def main(self, a, bg, after0, after1, after2):
        self.epi_addr(a)
        bg.add(self.h_items(2))
        bg.add(self.epi_input_items())
        self.iteration(a, 0, [], bg, 3)
        ts(a, 19)
        after0(a)
        bg.add(self.h_items(3))
        self.iteration(a, 1, self.red_writes(0), bg, 3)
        bg.drain(a)
        ts(a, 20)
        after1(a)
        self.iteration(a, 2, self.red_writes(1), bg)
        ts(a, 21)
        a.wait_vm(self.m_in)
        for dt in range(5):
            for d in range(2):
                unpack(a, self.B2F + 4 * dt + 2 * d, self.B2F + 4 * dt + 2 * d + 1, self.B2R + 2 * dt + d)
        after2(a)
        self.y_loads(a)
        G_, OM = 56, 58
        QF, YF, R = 64, 84, 144
        fl = self.red_writes(2)
        fl.append('v_sub_f32 v%d, 1.0, v%d' % (OM, self.GR))
        fl.append('v_mov_b32 v%d, v%d' % (G_, self.GR))
        fl.append('v_cvt_pk_bf16_f32 v%d, v%d, v%d' % (OM, OM, OM))
        fl.append('v_mov_b32 v%d, v%d' % (G_ + 1, self.GR))
        fl.append('v_lshlrev_b32 v%d, 16, v%d' % (OM, OM))
        for n in range(10):
            fl.append('v_lshlrev_b32 v%d, 16, v%d' % (QF + 2 * n, self.QR + n))
            fl.append('v_and_b32 v%d, 0xffff0000, v%d' % (QF + 2 * n + 1, self.QR + n))
        fl.append('v_mov_b32 v%d, v%d' % (OM + 1, OM))
        for n in range(20):
            fl.append('v_mul_f32 v%d, v%d, v%d' % (QF + n, QF + n, G_))
        self.iteration(a, 3, fl, bg)
        ts(a, 22)
        a('s_waitcnt lgkmcnt(0)')
        a('s_barrier')
        ts(a, 23)
        for n in range(15):
            a('ds_read_b128 %s, v15 offset:%d' % (vr(R + 4 * n, 4), 1024 * n))
        m0 = a.lgkm_mark()
        self.y_stage(a)
        my = a.lgkm_mark()
        acc0 = self.ACC + 20
        for sl in range(3):
            a.wait_lgkm(m0 - 10 + 5 * sl)
            for n in range(10):
                a('v_pk_add_f32 %s, %s, %s' % (vr(acc0 + 2 * n, 2), vr(acc0 + 2 * n, 2), vr(R + 20 * sl + 2 * n, 2)))
        for n in range(10):
            a('v_pk_mul_f32 %s, %s, %s' % (vr(acc0 + 2 * n, 2), vr(acc0 + 2 * n, 2), vr(OM, 2)))
        a.wait_lgkm(my)
        for dt in range(5):
            for d in range(2):
                n = 2 * dt + d
                unpack(a, YF + 2 * n, YF + 2 * n + 1, self.YT + n)
            for d in range(2):
                n = 2 * dt + d
                a('v_pk_fma_f32 %s, %s, %s, %s' % (vr(QF + 2 * n, 2), vr(QF + 2 * n, 2), vr(YF + 2 * n, 2), vr(acc0 + 2 * n, 2)))
            for d in range(2):
                n = 2 * dt + d
                a('v_cvt_pk_bf16_f32 v%d, v%d, v%d' % (self.QR + n, QF + 2 * n, QF + 2 * n + 1))
            a('buffer_store_dwordx2 %s, v3, s[%d:%d], 0 offen offset:%d' % (vr(self.QR + 2 * dt, 2), R_OUT, R_OUT + 3, 32 * dt))

LITE = False
def ts(a, idx, real=False):
    if not PROF or (LITE and not real):
        return
    a('%s s[12:13]' % ('s_memrealtime' if real else 's_memtime'))
    a('s_waitcnt lgkmcnt(0)')
    a('v_writelane_b32 v%d, s12, %d' % (V_TS, idx))
def ts_flush(a):
    if not PROF:
        return
    a('s_lshl_b32 s12, s2, 2')
    a('s_add_u32 s12, s12, s%d' % S_W)
    a('s_lshl_b32 s12, s12, 7')
    a('s_add_u32 s12, s12, 0x%x' % LY.TS)
    a('v_lshlrev_b32 v2, 2, v1')
    a('s_mov_b64 exec, 0xffffffff')
    a('buffer_store_dword v%d, v2, s[%d:%d], s12 offen' % (V_TS, R_WS, R_WS + 3))
    a('s_mov_b64 exec, -1')

SPIN_MAX = 20000
def token_publish(a):
    L = a.newlabel('L_tokp')
    if OPT.get('cas'):
        a('s_cmp_ge_u32 s2, 8')
        a('s_cbranch_scc1 %s' % L)
        a('s_cmp_lg_u32 s%d, 3' % S_W)
        a('s_cbranch_scc1 %s' % L)
        a('s_memrealtime s[12:13]')
        a('s_waitcnt lgkmcnt(0)')
        a('s_or_b32 s12, s12, 1')
        a('v_mov_b32 v4, s12')
        a('v_mov_b32 v5, s13')
        a('v_mov_b32 v6, 0')
        a('v_mov_b32 v7, 0')
        c = a.vm_issued
        a('s_mov_b64 exec, 1')
        a('global_atomic_cmpswap_x2 v6, v[4:7], s[%d:%d] sc1' % (P_DBG, P_DBG + 1))
        a('s_mov_b64 exec, -1')
        a('s_nop 1')
        a.vm_issued = c
        a.label(L)
        return
    a('s_add_u32 s12, s2, s%d' % S_W)
    a('s_cmp_lg_u32 s12, 0')
    a('s_cbranch_scc1 %s' % L)
    a('s_memrealtime s[12:13]')
    a('s_waitcnt lgkmcnt(0)')
    a('s_or_b32 s12, s12, 1')
    a('v_mov_b32 v2, s12')
    a('v_mov_b32 v3, s13')
    a('v_mov_b32 v4, 0')
    c = a.vm_issued
    a('s_mov_b64 exec, 1')
    a(('global_store_dwordx2 v4, v[2:3], s[%d:%d]%%s' % (P_DBG, P_DBG + 1)) % OPT['psc'])
    a('s_mov_b64 exec, -1')
    a.vm_issued = c
    a.label(L)
def token_load(a):
    a('v_mov_b32 v%d, 0' % V_PA)
    a(('global_load_dwordx2 %s, v%d, s[%d:%d]%%s' % (vr(V_TOK, 2), V_PA, P_DBG, P_DBG + 1)) % OPT['psc'])
    return a.vm_mark()
def token_check(a, mark):
    L = a.newlabel('L_tok'); Lok = a.newlabel('L_tokok')
    a.wait_vm(mark)
    a('s_mov_b32 s14, %d' % SPIN_MAX)
    a.label(L)
    a('v_readfirstlane_b32 s%d, v%d' % (TOK, V_TOK))
    a('v_readfirstlane_b32 s%d, v%d' % (TOK + 1, V_TOK + 1))
    a('s_cmp_lg_u32 s%d, 0' % TOK)
    a('s_cbranch_scc1 %s' % Lok)
    a('s_sub_u32 s14, s14, 1')
    a('s_cmp_eq_u32 s14, 0')
    a('s_cbranch_scc1 %s' % Lok)
    a('s_sleep 2')
    c = a.vm_issued
    a(('global_load_dwordx2 %s, v%d, s[%d:%d]%%s' % (vr(V_TOK, 2), V_PA, P_DBG, P_DBG + 1)) % OPT['psc'])
    a('s_waitcnt vmcnt(0)')
    a.vm_issued = c
    a('s_branch %s' % L)
    a.label(Lok)
CNT = 3 * CS
def publish_cnt(a, mark, cnt, s_idx_expr):
    a.wait_vm(mark)
    a('v_mov_b32 v%d, %d' % (V_FA, CNT + 16 * cnt))
    a('v_mov_b32 v%d, 1' % V_TOK)
    a('s_mov_b64 exec, 1')
    a('ds_add_rtn_u32 v%d, v%d, v%d' % (V_TOK + 1, V_FA, V_TOK))
    a('s_mov_b64 exec, -1')
    a('s_waitcnt lgkmcnt(0)')
    a('v_readfirstlane_b32 s12, v%d' % (V_TOK + 1))
    flag_store(a, s_idx_expr, 12, 3)
def flag_store(a, s_idx_expr, sreg=S_W, val=0):
    L = a.newlabel('L_fs')
    a('s_cmp_lg_u32 s%d, %d' % (sreg, val))
    a('s_cbranch_scc1 %s' % L)
    s_idx_expr(a)
    a('v_mov_b32 v%d, s%d' % (V_TOK, TOK))
    a('v_mov_b32 v%d, s%d' % (V_TOK + 1, TOK + 1))
    a('v_mov_b32 v%d, s12' % V_FA)
    c = a.vm_issued
    a('s_mov_b64 exec, 1')
    a(('buffer_store_dwordx2 %s, v%d, s[%d:%d], 0 offen%%s' % (vr(V_TOK, 2), V_FA, R_WS, R_WS + 3)) % OPT['psc'])
    a('s_mov_b64 exec, -1')
    a.vm_issued = c
    a.label(L)
def poll_issue(a, base_expr, n):
    base_expr(a)
    a('v_and_b32 v%d, %d, v1' % (V_PA, n - 1))
    a('v_lshlrev_b32 v%d, 3, v%d' % (V_PA, V_PA))
    a('v_add_u32 v%d, s12, v%d' % (V_PA, V_PA))
    a(('buffer_load_dwordx2 %s, v%d, s[%d:%d], 0 offen%%s' % (vr(V_POLL, 2), V_PA, R_WS, R_WS + 3)) % OPT['psc'])
    return a.vm_mark()
def poll_check(a, mark):
    L = a.newlabel('L_poll'); Lok = a.newlabel('L_pollok')
    a.wait_vm(mark)
    a('s_mov_b32 s14, %d' % SPIN_MAX)
    a.label(L)
    a('v_cmp_eq_u64 vcc, s[%d:%d], %s' % (TOK, TOK + 1, vr(V_POLL, 2)))
    a('s_nop 0')
    a('s_cmp_eq_u64 vcc, -1')
    a('s_cbranch_scc1 %s' % Lok)
    a('s_sub_u32 s14, s14, 1')
    a('s_cmp_eq_u32 s14, 0')
    a('s_cbranch_scc1 %s' % Lok)
    a('s_sleep 1')
    c = a.vm_issued
    a(('buffer_load_dwordx2 %s, v%d, s[%d:%d], 0 offen%%s' % (vr(V_POLL, 2), V_PA, R_WS, R_WS + 3)) % OPT['psc'])
    a('s_waitcnt vmcnt(0)')
    a.vm_issued = c
    a('s_branch %s' % L)
    a.label(Lok)

F1, F2, F3 = LY.FLAGS, LY.FLAGS + 4096, LY.FLAGS + 8192
def fbase_j(F):
    def f(a):
        a('s_lshl_b32 s12, s%d, 8' % S_J)
        a('s_add_u32 s12, s12, 0x%x' % F)
    return f
def fown_jq(F):
    def f(a):
        fbase_j(F)(a)
        a('s_lshl_b32 s13, s%d, 3' % S_Q)
        a('s_add_u32 s12, s12, s13')
    return f
def fown_g1(a):
    a('s_lshl_b32 s12, s%d, 7' % S_R)
    a('s_lshl_b32 s13, s%d, 3' % S_CB)
    a('s_add_u32 s12, s12, s13')
    a('s_add_u32 s12, s12, 0x%x' % F2)
def fbase_g2(a):
    a('s_lshr_b32 s12, s%d, 1' % S_Q)
    a('s_lshl_b32 s12, s12, 7')
    a('s_add_u32 s12, s12, 0x%x' % F2)

def fused_body(a):
    p = Prep(); g = G1(); c = Conv(); h = G2()
    h.m_h = {}
    if OPT.get('diag'):
        a('s_memrealtime s[46:47]')
    g.setup(a)
    srds(a)
    if PROF:
        a('v_mov_b32 v%d, 0' % V_TS)
    ts(a, 30, True)
    ts(a, 0)
    nd = OPT.get('dma_first', 0)
    for s_ in range(nd):
        g.dma(a, s_)
    srds2(a)
    token_publish(a)
    p.loads(a)
    g.bias_load(a)
    if OPT['prep_stage'] < 0:
        for s_ in range(nd, OPT.get('e_dma', 1)):
            g.dma(a, s_)
        g.setup2(a)
        p.compute(a)
        for s_ in range(OPT.get('e_dma', 1), OPT.get('e_dma2', 2)):
            g.dma(a, s_)
        a('s_waitcnt lgkmcnt(0)')
        a('s_barrier')
        p.transpose(a)
        for s_ in range(OPT.get('e_dma2', 2), OPT['lead']):
            g.dma(a, s_)
    else:
        for s_ in range(nd, OPT['lead']):
            g.dma(a, s_)
        g.setup2(a)
    m_tok = token_load(a)
    c.channels(a)
    g.unpack_bias(a)
    ts(a, 1)
    st = {}
    w2bg = BG(h.w2_items())
    ps = OPT['prep_stage']
    pre, post, mid, bgs = {}, {}, {}, {}
    def addhook(d, i, f):
        old = d.get(i)
        d[i] = (lambda a, old=old, f=f: ((old(a) if old else None), f(a)))
    if ps >= 0:
        addhook(mid, ps, p.compute)
        addhook(post, ps + 1, p.transpose)
    addhook(mid, OPT.get('p_ld', 1), c.load_p)
    pre[OPT['f1_pub']] = lambda: p.m_st
    def pub_f1(a):
        token_check(a, m_tok)
        flag_store(a, fown_jq(F1))
    addhook(post, OPT['f1_pub'], pub_f1)
    addhook(mid, OPT['f1_issue'], lambda a: st.__setitem__('f1', poll_issue(a, fbase_j(F1), 32)))
    addhook(post, 7, c.zero_fill)
    addhook(post, 8, c.build_p)
    def chk_f1(a):
        poll_check(a, st['f1'])
        ts(a, 14)
        c.load_q(a)
    addhook(mid, OPT['f1_chk'], chk_f1)
    n1 = OPT['w2_g1']
    if OPT['f1_chk'] < 9:
        items = [(lambda a: w2bg.emit(a, 1))] * n1
        bgs[9] = items
    bgs[10] = w2bg if OPT.get('w2_tail', 1) else None
    if PROF:
        for i in range(10):
            addhook(mid, i, lambda a, i=i: ts(a, 3 + i))
    tail = BG([(lambda a: w2bg.emit(a, 1)) if k % 4 == 3 else (lambda a: None) for k in range(12)])
    bgs[10] = tail
    g.main(a, pre, post, mid, bgs)
    if OPT.get('diag') == 3:
        a('s_memrealtime s[12:13]')
        a('s_waitcnt lgkmcnt(0)')
        a('s_mov_b32 s47, s12')
    ts(a, 13)
    g.epilogue(a, w2bg, OPT['w2_gelu'] // 6)
    m_hst = a.vm_mark()
    ts(a, 15)
    c.build_q(a)
    c.task_setup(a)
    w2bg.emit(a, 2)
    a('s_waitcnt lgkmcnt(0)')
    if not OPT.get('cnt2'):
        a.wait_vm(m_hst)
    a('s_barrier')
    if not OPT.get('cnt2'):
        flag_store(a, fown_g1)
    ts(a, 16)
    hooks = {}
    if OPT.get('cnt2'):
        hooks[OPT['f2_pub']] = lambda a: publish_cnt(a, m_hst, 0, fown_g1)
    hooks[OPT['f2_issue']] = lambda a: st.__setitem__('f2', poll_issue(a, fbase_g2, 16))
    def chk_f2(a):
        w2bg.drain(a)
        poll_check(a, st['f2'])
        w2bg.add(h.h_items(0) + h.h_items(1))
    if OPT['f2_chk'] < 8:
        hooks[OPT['f2_chk']] = chk_f2
    def tw(a, subs, hooks_, bg, every):
        h.m_h.clear()
        c.task(a, subs, hooks_, bg, every)
    c.task_wrapper = tw
    c.run(a, hooks, w2bg, OPT.get('conv_every', 4))
    m_yst = a.vm_mark()
    ts(a, 17)
    if OPT['f2_chk'] >= 8:
        chk_f2(a)
    def pub_f3(a):
        if OPT.get('cnt3'):
            publish_cnt(a, m_yst, 1, fown_jq(F3))
            return
        a.wait_vm(m_yst)
        a('s_barrier')
        flag_store(a, fown_jq(F3))
    h.main(a, w2bg, pub_f3, lambda a: st.__setitem__('f3', poll_issue(a, fbase_j(F3), 32)), lambda a: poll_check(a, st['f3']))
    if OPT.get('diag') == 1:
        L = a.newlabel('L_dg')
        a('s_memrealtime s[12:13]')
        a('s_waitcnt lgkmcnt(0)')
        a('s_sub_u32 s14, s12, s46')
        a('s_add_u32 s14, s14, s12')
        a.label(L)
        a('s_memrealtime s[12:13]')
        a('s_waitcnt lgkmcnt(0)')
        a('s_sub_u32 s13, s14, s12')
        a('s_cmp_gt_i32 s13, 0')
        a('s_cbranch_scc1 %s' % L)
    if OPT.get('diag') == 2:
        L = a.newlabel('L_dg')
        a('s_memtime s[12:13]')
        a('s_waitcnt lgkmcnt(0)')
        a('s_add_u32 s14, s12, 20000')
        a.label(L)
        a('s_memtime s[12:13]')
        a('s_waitcnt lgkmcnt(0)')
        a('s_sub_u32 s13, s14, s12')
        a('s_cmp_gt_i32 s13, 0')
        a('s_cbranch_scc1 %s' % L)
    if OPT.get('diag') == 3:
        L = a.newlabel('L_dg')
        a('s_memrealtime s[12:13]')
        a('s_waitcnt lgkmcnt(0)')
        a('s_sub_u32 s14, s47, s46')
        a('s_add_u32 s14, s14, s12')
        a.label(L)
        a('s_memrealtime s[12:13]')
        a('s_waitcnt lgkmcnt(0)')
        a('s_sub_u32 s13, s14, s12')
        a('s_cmp_gt_i32 s13, 0')
        a('s_cbranch_scc1 %s' % L)
    ts(a, 24)
    ts(a, 31, True)
    ts_flush(a)

def build_fused(path):
    name = NAME + '_kernel'
    a = Asm()
    end = 'END_' + name
    prologue(a, end)
    fused_body(a)
    a.label(end)
    a('s_endpgm')
    a.raw('.p2align 12\n.fill 1024, 4, 0xbf800000')
    s = HEADER
    s += '; @launch grid=(256,1,1) block=(256,1,1) lds=163840\n'
    s += '.amdgcn_target "amdgcn-amd-amdhsa--gfx950"\n'
    s += '.text\n.globl %s\n.p2align 8\n.type %s,@function\n%s:\n' % (name, name, name) + a.text()
    s += '.section .rodata,"a"\n.p2align 6\n.amdhsa_kernel %s\n' % name
    s += '  .amdhsa_next_free_vgpr 512\n  .amdhsa_next_free_sgpr 102\n  .amdhsa_accum_offset 256\n'
    s += '  .amdhsa_group_segment_fixed_size 0\n  .amdhsa_kernarg_size 120\n  .amdhsa_user_sgpr_count 2\n'
    s += '  .amdhsa_user_sgpr_kernarg_segment_ptr 1\n  .amdhsa_system_sgpr_workgroup_id_x 1\n.end_amdhsa_kernel\n'
    open(path, 'w').write(s)

if __name__ == '__main__':
    for kv in sys.argv[1:]:
        k_, v_ = kv.split('=')
        OPT[k_] = int(v_) if v_.lstrip('-').isdigit() else v_.replace('_', ' ')
    build_fused('k_fused.s')
    PROF = True
    build_fused('k_fused_prof.s')
```

```python
import sys, struct
from asmlib import *
import layout as LY

NAME = 'gated_mix__ssm_conv_h3__dense_activation_gelu__prompt'
HEADER = open('cdna_kernels/%s.s.ref' % NAME).read().split('; Override launch')[0]
OPT = dict(nt=1, scl=' sc1', lead=3, prep_stage=0, f1_pub=3, f1_issue=6, f1_chk=8, late_p=1, gate_late=5, p_ld=3, psc=' sc1', cas=1, cnt2=0, cnt3=0, f2_pub=2, rot=1, arr=1, f2_issue=4, f2_chk=6, w2_g1=8, w2_gelu=18)

S_XCD, S_IDX, S_Q, S_J, S_R, S_CB, S_W = 3, 4, 5, 6, 7, 8, 9
TOK = 10
P_Q, P_K, P_V, P_SK, P_HK, P_D, P_BX, P_W1, P_B1, P_W2, P_B2, P_GW, P_OUT, P_DBG, P_WS = range(16, 46, 2)
R_X, R_K, R_V, R_W1, R_W2, R_WS, R_OUT, R_HK = range(48, 80, 4)
ST = 80
NB_SD = 2048 * 1280
SCS = ' sc1'
def NT():
    return ' nt' if OPT.get('nt', 0) else ''
def SCL():
    return OPT.get('scl', '')
V_FA, V_TOK, V_POLL, V_PA, V_TS = 243, 244, 246, 248, 251
PROF = False

def f32hex(x):
    return '0x%08x' % struct.unpack('<I', struct.pack('<f', x))[0]
def srd(a, r, p, nbytes):
    a('s_mov_b32 s%d, s%d' % (r, p))
    a('s_and_b32 s%d, s%d, 0xffff' % (r + 1, p + 1))
    a('s_mov_b32 s%d, 0x%x' % (r + 2, nbytes))
    a('s_mov_b32 s%d, 0x20000' % (r + 3))
def scsel(a, dst, vt, vf):
    a('s_mov_b32 s%d, %d' % (dst, vf))
    a('s_cmov_b32 s%d, %d' % (dst, vt))
def unpack(a, dst_lo, dst_hi, src):
    a('v_lshlrev_b32 v%d, 16, v%d' % (dst_lo, src))
    a('v_and_b32 v%d, 0xffff0000, v%d' % (dst_hi, src))
def do(a, x):
    if callable(x): x(a)
    else: a(x)

class BG:
    def __init__(self, items=None):
        self.items = list(items or []); self.i = 0
    def add(self, items): self.items += items
    def left(self): return len(self.items) - self.i
    def emit(self, a, n=1):
        for _ in range(n):
            if self.i < len(self.items):
                do(a, self.items[self.i]); self.i += 1
    def drain(self, a): self.emit(a, self.left())
    def save(self): return self.i
    def restore(self, i): self.i = i

CODE_PIECES = 7
def prologue(a, end_label):
    a('s_cmp_ge_u32 s2, 256')
    a('s_cbranch_scc1 %s' % end_label)
    a('s_load_dwordx16 s[16:31], s[0:1], 0')
    a('s_load_dwordx8 s[32:39], s[0:1], 64')
    a('s_load_dwordx4 s[40:43], s[0:1], 96')
    a('s_load_dwordx2 s[44:45], s[0:1], 112')
    a('s_and_b32 s%d, s2, 7' % S_XCD)
    a('s_lshr_b32 s%d, s2, 3' % S_IDX)
    a('s_getpc_b64 s[12:13]')
    a('s_and_b32 s14, s%d, 7' % S_IDX)
    a('s_min_u32 s14, s14, %d' % (CODE_PIECES - 1))
    a('s_lshl_b32 s14, s14, 12')
    a('s_add_u32 s12, s12, s14')
    a('s_addc_u32 s13, s13, 0')
    a('v_lshlrev_b32 v2, 4, v0')
    a('v_mov_b32 v3, s13')
    a('v_add_co_u32 v2, vcc, s12, v2')
    a('v_addc_co_u32 v3, vcc, 0, v3, vcc')
    a('global_load_dwordx4 v[252:255], v[2:3], off')
    a('v_lshrrev_b32 v2, 6, v0')
    a('v_and_b32 v1, 63, v0')
    a('s_and_b32 s%d, s%d, 3' % (S_Q, S_IDX))
    a('v_readfirstlane_b32 s%d, v2' % S_W)
    a('s_lshl_b32 s%d, s%d, 2' % (ST, S_XCD))
    a('s_lshr_b32 s%d, s%d, 2' % (S_J, S_IDX))
    if OPT['arr']:
        a('s_lshr_b32 s%d, s%d, 1' % (S_R, S_XCD))
        a('s_lshl_b32 s%d, s%d, 2' % (S_R, S_R))
        a('s_add_u32 s%d, s%d, s%d' % (S_R, S_R, S_Q))
        a('s_and_b32 s%d, s%d, 1' % (S_CB, S_XCD))
        a('s_lshl_b32 s%d, s%d, 3' % (S_CB, S_CB))
        a('s_add_u32 s%d, s%d, s%d' % (S_CB, S_CB, S_J))
    else:
        a('s_and_b32 s%d, s%d, 1' % (S_R, S_IDX))
        a('s_lshl_b32 s%d, s%d, 1' % (ST + 1, S_XCD))
        a('s_add_u32 s%d, s%d, s%d' % (S_R, S_R, ST + 1))
        a('s_lshr_b32 s%d, s%d, 1' % (S_CB, S_IDX))
    a('s_mul_i32 s15, s%d, 3' % S_Q)
    a('s_add_u32 s15, s15, s%d' % S_J)
    a('s_sub_u32 s14, s15, 10')
    a('s_cmp_ge_u32 s15, 10')
    a('s_cselect_b32 s15, s14, s15')
    if not OPT['rot']:
        a('s_mov_b32 s15, 0')
    a('s_add_u32 s%d, s%d, s%d' % (S_Q, S_Q, ST))

def srds(a):
    a('s_waitcnt lgkmcnt(0)')
    srd(a, R_X, P_Q, NB_SD)
    srd(a, R_W1, P_W1, 640 * 3072)
def srds2(a):
    srd(a, R_K, P_K, NB_SD)
    srd(a, R_V, P_V, NB_SD)
    srd(a, R_W2, P_W2, 1536 * 1280)
    srd(a, R_WS, P_WS, 0x10000000)
    srd(a, R_OUT, P_OUT, NB_SD)

class Prep:
    LKV, LW2 = 0, 10240
    KR, VR_, SKR, T = 120, 148, 164, 180

    def addr(self, a):
        L_gate = a.newlabel('L_gate'); L_join = a.newlabel('L_pl')
        a('s_cmp_eq_u32 s%d, 3' % S_W)
        a('s_cbranch_scc1 %s' % L_gate)
        a('v_min_u32 v14, 159, v0')
        a('v_mul_u32_u24 v12, 6554, v14')
        a('v_lshrrev_b32 v12, 16, v12')
        a('v_mul_u32_u24 v13, 10, v12')
        a('v_sub_u32 v13, v14, v13')
        a('s_mul_i32 s%d, s%d, %d' % (ST, S_Q, 64 * 1280))
        a('s_mul_i32 s%d, s%d, 160' % (ST + 1, S_J))
        a('s_add_u32 s%d, s%d, s%d' % (ST, ST, ST + 1))
        a('v_mul_u32_u24 v238, 5120, v12')
        a('v_lshl_add_u32 v238, v13, 4, v238')
        a('v_add_u32 v238, s%d, v238' % ST)
        a('v_subrev_u32 v239, 3840, v238')
        a('s_mul_i32 s%d, s%d, 640' % (ST + 1, S_J))
        a('v_lshlrev_b32 v240, 6, v13')
        a('v_add_u32 v240, s%d, v240' % (ST + 1))
        a('s_branch %s' % L_join)
        a.label(L_gate)
        a('v_lshrrev_b32 v12, 3, v1')
        a('v_and_b32 v13, 7, v1')
        a('s_lshl_b32 s%d, s%d, 7' % (ST, S_R))
        a('s_lshl_b32 s%d, s%d, 3' % (ST + 1, S_CB))
        a('s_add_u32 s%d, s%d, s%d' % (ST, ST, ST + 1))
        a('v_add_u32 v12, s%d, v12' % ST)
        a('v_mul_u32_u24 v238, 1280, v12')
        a('v_lshlrev_b32 v239, 4, v13')
        a('v_add_u32 v238, v238, v239')
        a('v_mov_b32 v240, 0')
        a.label(L_join)

    def load_items(self):
        KR, VR_, SKR = self.KR, self.VR_, self.SKR
        kv = []
        for r in range(4):
            kv.append('buffer_load_dwordx4 %s, v238, s[%d:%d], 0 offen offset:%d%s' % (vr(KR + 12 + 4 * r, 4), R_K, R_K + 3, 1280 * r, NT()))
        for r in range(3):
            kv.append('buffer_load_dwordx4 %s, v239, s[%d:%d], 0 offen offset:%d%s' % (vr(KR + 4 * r, 4), R_K, R_K + 3, 1280 * r, NT()))
        for r in range(4):
            kv.append('buffer_load_dwordx4 %s, v238, s[%d:%d], 0 offen offset:%d%s' % (vr(VR_ + 4 * r, 4), R_V, R_V + 3, 1280 * r, NT()))
        for r in range(4):
            kv.append('buffer_load_dwordx4 %s, v238, s[%d:%d], 0 offen offset:%d%s' % (ar(4 * r, 4), R_W2, R_W2 + 3, 1280 * r, NT()))
        for i in range(4):
            kv.append('global_load_dwordx4 %s, v240, s[%d:%d] offset:%d' % (vr(SKR + 4 * i, 4), P_SK, P_SK + 1, 16 * i))
        kv.append(kv[-1])
        gt = []
        for n in range(10):
            gt.append('buffer_load_dwordx4 %s, v238, s[%d:%d], 0 offen offset:%d' % (vr(120 + 4 * n, 4), R_X, R_X + 3, 128 * n))
            gt.append('global_load_dwordx4 %s, v239, s[%d:%d] offset:%d' % (ar(16 + 4 * n, 4), P_GW, P_GW + 1, 128 * n))
        L = []
        for k in range(20):
            def f(a, k=k):
                Lg = a.newlabel('L_ig'); Lj = a.newlabel('L_ij')
                a('s_cmp_eq_u32 s%d, 3' % S_W)
                a('s_cbranch_scc1 %s' % Lg)
                a(kv[k])
                c = a.vm_issued
                a('s_branch %s' % Lj)
                a.label(Lg)
                a(gt[k])
                a.vm_issued = c
                a.label(Lj)
                self.m_all = c
            L.append(f)
        return L

    mode = 'both'
    def gate_loads1(self, a):
        L = a.newlabel('L_gl')
        c = a.vm_issued
        a('s_cmp_lg_u32 s%d, 3' % S_W)
        a('s_cbranch_scc1 %s' % L)
        a('v_lshrrev_b32 v14, 3, v1')
        a('v_and_b32 v15, 7, v1')
        a('s_lshl_b32 s%d, s%d, 7' % (ST, S_R))
        a('s_lshl_b32 s%d, s%d, 3' % (ST + 1, S_CB))
        a('s_add_u32 s%d, s%d, s%d' % (ST, ST, ST + 1))
        a('v_add_u32 v14, s%d, v14' % ST)
        a('v_mul_u32_u24 v4, 1280, v14')
        a('v_lshlrev_b32 v5, 4, v15')
        a('v_add_u32 v4, v4, v5')
        for n in range(10):
            a('buffer_load_dwordx4 %s, v4, s[%d:%d], 0 offen offset:%d' % (vr(100 + 4 * n, 4), R_X, R_X + 3, 128 * n))
            a('global_load_dwordx4 %s, v5, s[%d:%d] offset:%d' % (vr(160 + 4 * n, 4), P_GW, P_GW + 1, 128 * n))
        a.label(L)
        a.vm_issued = c
        self.m_gate = c
    def gate_compute1(self, a):
        L = a.newlabel('L_gc')
        c = a.vm_issued
        a('s_cmp_lg_u32 s%d, 3' % S_W)
        a('s_cbranch_scc1 %s' % L)
        a.wait_vm(self.m_gate)
        a('v_mov_b32 v10, 0')
        a('v_mov_b32 v11, 0')
        for n in range(40):
            acc = 10 + (n & 1)
            a('v_dot2_f32_bf16 v%d, v%d, v%d, v%d' % (acc, 100 + n, 160 + n, acc))
        a('s_nop 3')
        a('v_add_f32 v10, v10, v11')
        a('v_add_f32_dpp v10, v10, v10 quad_perm:[1,0,3,2] row_mask:0xf bank_mask:0xf')
        a('v_add_f32_dpp v10, v10, v10 quad_perm:[2,3,0,1] row_mask:0xf bank_mask:0xf')
        a('v_add_f32_dpp v10, v10, v10 row_half_mirror row_mask:0xf bank_mask:0xf')
        a('v_cvt_pk_bf16_f32 v10, v10, v10')
        a('v_lshlrev_b32 v10, 16, v10')
        a('v_mul_f32 v10, 0xbfb8aa3b, v10')
        a('v_exp_f32 v10, v10')
        a('v_add_f32 v10, 1.0, v10')
        a('v_rcp_f32 v10, v10')
        a('v_cvt_pk_bf16_f32 v10, v10, v10')
        a('v_lshlrev_b32 v10, 16, v10')
        a('v_lshlrev_b32 v4, 2, v14')
        a('v_add_u32 v4, 0x%x, v4' % LY.G)
        a('v_cmp_eq_u32 vcc, 0, v15')
        a('s_and_saveexec_b64 s[%d:%d], vcc' % (ST + 2, ST + 3))
        a('buffer_store_dword v10, v4, s[%d:%d], 0 offen%s' % (R_WS, R_WS + 3, SCS))
        a('s_mov_b64 exec, s[%d:%d]' % (ST + 2, ST + 3))
        a.label(L)
        a.vm_issued = c

    def gate_loads(self, a):
        if not OPT.get('gate4'): return self.gate_loads1(a)
        a('v_lshrrev_b32 v14, 5, v1')
        a('v_and_b32 v15, 31, v1')
        a('s_lshl_b32 s%d, s%d, 7' % (ST, S_R))
        a('s_lshl_b32 s%d, s%d, 3' % (ST + 1, S_CB))
        a('s_add_u32 s%d, s%d, s%d' % (ST, ST, ST + 1))
        a('s_lshl_b32 s%d, s%d, 1' % (ST + 1, S_W))
        a('s_add_u32 s%d, s%d, s%d' % (ST, ST, ST + 1))
        a('v_add_u32 v14, s%d, v14' % ST)
        a('v_mul_u32_u24 v4, 1280, v14')
        a('v_lshlrev_b32 v5, 3, v15')
        a('v_add_u32 v4, v4, v5')
        for n in range(5):
            a('buffer_load_dwordx2 %s, v4, s[%d:%d], 0 offen offset:%d' % (vr(100 + 2 * n, 2), R_X, R_X + 3, 256 * n))
            a('global_load_dwordx2 %s, v5, s[%d:%d] offset:%d' % (vr(110 + 2 * n, 2), P_GW, P_GW + 1, 256 * n))
        self.m_gate = a.vm_mark()
    def gate_compute(self, a):
        if not OPT.get('gate4'): return self.gate_compute1(a)
        a.wait_vm(self.m_gate)
        a('v_mov_b32 v10, 0')
        a('v_mov_b32 v11, 0')
        for n in range(10):
            acc = 10 + (n & 1)
            a('v_dot2_f32_bf16 v%d, v%d, v%d, v%d' % (acc, 100 + n, 110 + n, acc))
        a('s_nop 3')
        a('v_add_f32 v10, v10, v11')
        a('v_add_f32_dpp v10, v10, v10 quad_perm:[1,0,3,2] row_mask:0xf bank_mask:0xf')
        a('v_add_f32_dpp v10, v10, v10 quad_perm:[2,3,0,1] row_mask:0xf bank_mask:0xf')
        a('v_add_f32_dpp v10, v10, v10 row_half_mirror row_mask:0xf bank_mask:0xf')
        a('v_add_f32_dpp v10, v10, v10 row_mirror row_mask:0xf bank_mask:0xf')
        a('v_add_f32_dpp v10, v10, v10 row_bcast:15 row_mask:0xa bank_mask:0xf')
        a('v_cvt_pk_bf16_f32 v10, v10, v10')
        a('v_lshlrev_b32 v10, 16, v10')
        a('v_mul_f32 v10, 0xbfb8aa3b, v10')
        a('v_exp_f32 v10, v10')
        a('v_add_f32 v10, 1.0, v10')
        a('v_rcp_f32 v10, v10')
        a('v_cvt_pk_bf16_f32 v10, v10, v10')
        a('v_lshlrev_b32 v10, 16, v10')
        a('v_lshlrev_b32 v4, 2, v14')
        a('v_add_u32 v4, 0x%x, v4' % LY.G)
        a('v_cmp_eq_u32 vcc, 31, v15')
        a('s_and_saveexec_b64 s[%d:%d], vcc' % (ST + 2, ST + 3))
        a('buffer_store_dword v10, v4, s[%d:%d], 0 offen%s' % (R_WS, R_WS + 3, SCS))
        a('s_mov_b64 exec, s[%d:%d]' % (ST + 2, ST + 3))

    def loads(self, a):
        L_gate = a.newlabel('L_gate'); L_join = a.newlabel('L_pl')
        KR, VR_, SKR = self.KR, self.VR_, self.SKR
        self.c00 = a.vm_issued
        a('s_cmp_eq_u32 s%d, 3' % S_W)
        a('s_cbranch_scc1 %s' % L_gate)
        a('v_mul_u32_u24 v12, 6554, v0')
        a('v_lshrrev_b32 v12, 16, v12')
        a('v_mul_u32_u24 v13, 10, v12')
        a('v_sub_u32 v13, v0, v13')
        a('s_mul_i32 s%d, s%d, %d' % (ST, S_Q, 64 * 1280))
        a('s_mul_i32 s%d, s%d, 160' % (ST + 1, S_J))
        a('s_add_u32 s%d, s%d, s%d' % (ST, ST, ST + 1))
        a('v_mul_u32_u24 v4, 5120, v12')
        a('v_lshl_add_u32 v4, v13, 4, v4')
        a('v_add_u32 v4, s%d, v4' % ST)
        a('v_subrev_u32 v5, 3840, v4')
        a('s_mul_i32 s%d, s%d, 640' % (ST + 1, S_J))
        a('v_lshlrev_b32 v6, 6, v13')
        a('v_add_u32 v6, s%d, v6' % (ST + 1))
        a('v_cmp_gt_u32 vcc, 160, v0')
        a('s_and_saveexec_b64 s[%d:%d], vcc' % (ST + 2, ST + 3))
        for r in range(4):
            a('buffer_load_dwordx4 %s, v4, s[%d:%d], 0 offen offset:%d%s' % (vr(KR + 12 + 4 * r, 4), R_K, R_K + 3, 1280 * r, NT()))
        for r in range(4):
            a('buffer_load_dwordx4 %s, v4, s[%d:%d], 0 offen offset:%d%s' % (vr(VR_ + 4 * r, 4), R_V, R_V + 3, 1280 * r, NT()))
        for r in range(4):
            a('buffer_load_dwordx4 %s, v4, s[%d:%d], 0 offen offset:%d%s' % (ar(4 * r, 4), R_W2, R_W2 + 3, 1280 * r, NT()))
        for i in range(4):
            a('global_load_dwordx4 %s, v6, s[%d:%d] offset:%d' % (vr(SKR + 4 * i, 4), P_SK, P_SK + 1, 16 * i))
        for r in range(3):
            a('buffer_load_dwordx4 %s, v5, s[%d:%d], 0 offen offset:%d%s' % (vr(KR + 4 * r, 4), R_K, R_K + 3, 1280 * r, NT()))
        a('s_mov_b64 exec, s[%d:%d]' % (ST + 2, ST + 3))
        a('s_branch %s' % L_join)
        endA = a.vm_issued
        a.label(L_gate)
        if self.mode == 'kv':
            a.label(L_join)
            a.vm_issued = self.c00
            self.m_all = self.c00
            return
        a('v_lshrrev_b32 v12, 3, v1')
        a('v_and_b32 v13, 7, v1')
        a('s_lshl_b32 s%d, s%d, 7' % (ST, S_R))
        a('s_lshl_b32 s%d, s%d, 3' % (ST + 1, S_CB))
        a('s_add_u32 s%d, s%d, s%d' % (ST, ST, ST + 1))
        a('v_add_u32 v12, s%d, v12' % ST)
        a('v_mul_u32_u24 v4, 1280, v12')
        a('v_lshlrev_b32 v5, 4, v13')
        a('v_add_u32 v4, v4, v5')
        for n in range(10):
            a('buffer_load_dwordx4 %s, v4, s[%d:%d], 0 offen offset:%d' % (vr(120 + 4 * n, 4), R_X, R_X + 3, 128 * n))
            a('global_load_dwordx4 %s, v5, s[%d:%d] offset:%d' % (ar(16 + 4 * n, 4), P_GW, P_GW + 1, 128 * n))
        a.label(L_join)
        a.vm_issued = endA
        self.m_all = endA

    def compute(self, a):
        L_gate = a.newlabel('L_gate'); L_join = a.newlabel('L_prepjoin')
        KR, VR_, SKR, T = self.KR, self.VR_, self.SKR, self.T
        LKV, LW2 = self.LKV, self.LW2
        a.wait_vm(self.m_all)
        a('s_cmp_eq_u32 s%d, 3' % S_W)
        a('s_cbranch_scc1 %s' % L_gate)
        a('v_mul_u32_u24 v8, 640, v12')
        a('v_lshlrev_b32 v9, 4, v13')
        a('v_sub_u32 v7, v9, v8')
        a('v_add_u32 v7, %d, v7' % (LKV + 60 * 160))
        a('v_add_u32 v8, v8, v9')
        a('v_add_u32 v8, %d, v8' % LW2)
        a('v_cmp_gt_u32 vcc, 160, v0')
        a('s_and_saveexec_b64 s[%d:%d], vcc' % (ST + 2, ST + 3))
        for r in range(4):
            a('ds_write_b128 v8, %s offset:%d' % (ar(4 * r, 4), r * 160))
        KF, SF, VF, AC = T, T + 14, T + 22, T + 30
        for d in range(4):
            for r in range(7):
                unpack(a, KF + 2 * r, KF + 2 * r + 1, KR + 4 * r + d)
            for h in range(2):
                unpack(a, SF + 0 + h, SF + 2 + h, SKR + 2 * (2 * d + h))
                unpack(a, SF + 4 + h, SF + 6 + h, SKR + 2 * (2 * d + h) + 1)
            for r in range(4):
                unpack(a, VF + 2 * r, VF + 2 * r + 1, VR_ + 4 * r + d)
            for j in range(4):
                for r in range(4):
                    acc = vr(AC + 2 * r, 2); kf = vr(KF + 2 * (r + 3 - j), 2); sf = vr(SF + 2 * j, 2)
                    if j == 0: a('v_pk_mul_f32 %s, %s, %s' % (acc, kf, sf))
                    else: a('v_pk_fma_f32 %s, %s, %s, %s' % (acc, kf, sf, acc))
            for r in range(4):
                a('v_pk_mul_f32 %s, %s, %s' % (vr(AC + 2 * r, 2), vr(AC + 2 * r, 2), vr(VF + 2 * r, 2)))
            for r in range(4):
                a('v_cvt_pk_bf16_f32 v%d, v%d, v%d' % (VR_ + 4 * r + d, AC + 2 * r, AC + 2 * r + 1))
        for r in range(4):
            a('ds_write_b128 v7, %s offset:%d' % (vr(VR_ + 4 * r, 4), (3 - r) * 160))
        a('s_mov_b64 exec, s[%d:%d]' % (ST + 2, ST + 3))
        a('s_branch %s' % L_join)
        cA = a.vm_issued
        a.label(L_gate)
        if self.mode == 'kv':
            a.label(L_join)
            return
        a('v_mov_b32 v10, 0')
        a('v_mov_b32 v11, 0')
        for n in range(40):
            a('v_accvgpr_read_b32 v%d, a%d' % (T + n, 16 + n))
        for n in range(40):
            acc = 10 + (n & 1)
            a('v_dot2_f32_bf16 v%d, v%d, v%d, v%d' % (acc, 120 + n, T + n, acc))
        a('s_nop 3')
        a('v_add_f32 v10, v10, v11')
        a('v_add_f32_dpp v10, v10, v10 quad_perm:[1,0,3,2] row_mask:0xf bank_mask:0xf')
        a('v_add_f32_dpp v10, v10, v10 quad_perm:[2,3,0,1] row_mask:0xf bank_mask:0xf')
        a('v_add_f32_dpp v10, v10, v10 row_half_mirror row_mask:0xf bank_mask:0xf')
        a('v_cvt_pk_bf16_f32 v10, v10, v10')
        a('v_lshlrev_b32 v10, 16, v10')
        a('v_mul_f32 v10, 0xbfb8aa3b, v10')
        a('v_exp_f32 v10, v10')
        a('v_add_f32 v10, 1.0, v10')
        a('v_rcp_f32 v10, v10')
        a('v_cvt_pk_bf16_f32 v10, v10, v10')
        a('v_lshlrev_b32 v10, 16, v10')
        a('v_lshlrev_b32 v4, 2, v12')
        a('v_add_u32 v4, 0x%x, v4' % LY.G)
        a('v_cmp_eq_u32 vcc, 0, v13')
        a('s_and_saveexec_b64 s[%d:%d], vcc' % (ST + 2, ST + 3))
        a('buffer_store_dword v10, v4, s[%d:%d], 0 offen%s' % (R_WS, R_WS + 3, SCS))
        a('s_mov_b64 exec, s[%d:%d]' % (ST + 2, ST + 3))
        a.label(L_join)
        a.vm_issued = cA

    def transpose(self, a):
        L_skip = a.newlabel('L_prepskip')
        LKV, LW2 = self.LKV, self.LW2
        O = self.T
        a('v_and_b32 v2, 15, v1')
        a('v_lshrrev_b32 v3, 4, v1')
        a('v_lshrrev_b32 v4, 2, v2')
        a('v_and_b32 v5, 3, v1')
        a('s_and_b32 s%d, s%d, 1' % (ST, S_W))
        a('s_cmp_ge_u32 s%d, 2' % S_W)
        a('s_cselect_b32 s%d, 2, 3' % (ST + 1))
        scsel(a, ST + 2, 2560, 640)
        scsel(a, ST + 3, LW2, LKV)
        scsel(a, ST + 4, 1024, 65536)
        a('s_mul_i32 s%d, s%d, %d' % (ST + 5, ST, 32 * 160))
        a('s_add_u32 s%d, s%d, s%d' % (ST + 3, ST + 3, ST + 5))
        a('v_lshlrev_b32 v6, s%d, v3' % (ST + 1))
        a('v_add_u32 v6, v6, v4')
        a('v_mul_u32_u24 v6, 160, v6')
        a('v_lshl_add_u32 v6, v5, 3, v6')
        a('v_add_u32 v6, s%d, v6' % (ST + 3))
        a('v_add_u32 v7, s%d, v6' % (ST + 2))
        for u in range(5):
            a('ds_read_b64_tr_b16 %s, v6 offset:%d' % (vr(O + 4 * u, 2), 32 * u))
            a('ds_read_b64_tr_b16 %s, v7 offset:%d' % (vr(O + 2 + 4 * u, 2), 32 * u))
        m = a.lgkm_mark()
        a('s_mul_i32 s%d, s%d, %d' % (ST + 5, S_J, 80 * 4096))
        a('s_lshl_b32 s%d, s%d, 7' % (ST + 6, S_Q))
        a('s_sub_u32 s%d, s%d, s%d' % (ST + 5, ST + 5, ST + 6))
        a('s_lshl_b32 s%d, s%d, 6' % (ST + 6, ST))
        a('s_add_u32 s%d, s%d, s%d' % (ST + 5, ST + 5, ST + 6))
        a('s_add_u32 s%d, s%d, %d' % (ST + 5, ST + 5, LY.KVT + 2 * 1984))
        a('v_lshlrev_b32 v8, 12, v2')
        a('v_lshl_add_u32 v8, v3, 4, v8')
        a('s_mul_i32 s%d, s%d, 48' % (ST + 6, S_J))
        a('s_lshl_b32 s%d, s%d, 1' % (ST + 7, S_Q))
        a('s_add_u32 s%d, s%d, s%d' % (ST + 6, ST + 6, ST + 7))
        a('s_add_u32 s%d, s%d, s%d' % (ST + 6, ST + 6, ST))
        a('s_mul_i32 s%d, s%d, 5120' % (ST + 6, ST + 6))
        a('s_add_u32 s%d, s%d, 0x%x' % (ST + 6, ST + 6, LY.W2T))
        a('v_lshlrev_b32 v9, 4, v1')
        a('s_cmp_ge_u32 s%d, 2' % S_W)
        a('s_cselect_b32 s%d, s%d, s%d' % (ST + 5, ST + 6, ST + 5))
        a('s_cselect_b64 vcc, -1, 0')
        a('v_cndmask_b32 v8, v8, v9, vcc')
        a('s_cselect_b32 s%d, s%d, 0' % (ST + 7, S_Q))
        a('s_cmp_ge_u32 s%d, 24' % (ST + 7))
        a.wait_lgkm(m)
        a('s_cbranch_scc1 %s' % L_skip)
        cB = a.vm_issued
        for u in range(5):
            a('buffer_store_dwordx4 %s, v8, s[%d:%d], s%d offen%s' % (vr(O + 4 * u, 4), R_WS, R_WS + 3, ST + 5, SCS))
            if u < 4:
                a('s_add_u32 s%d, s%d, s%d' % (ST + 5, ST + 5, ST + 4))
        a.label(L_skip)
        a('s_nop 1')
        a.vm_issued = cB
        self.m_st = cB

RB = 20480
SLOT = 28672
NSLOT = 5
class G1:
    VX, VW, VB = 16, 20, 24
    ACC, BIAS, BRAW = 36, 84, 108
    AF, BF = 192, 240
    SX, SWO = 96, 97

    def setup(self, a):
        a('v_lshrrev_b32 v2, 3, v1')
        a('v_and_b32 v3, 7, v1')
        a('s_lshl_b32 s%d, s%d, 7' % (ST, S_R))
        a('s_lshl_b32 s%d, s%d, 5' % (ST + 1, S_W))
        a('s_add_u32 s%d, s%d, s%d' % (ST, ST, ST + 1))
        a('s_mul_i32 s%d, s%d, 1280' % (ST, ST))
        for i in range(2):
            a('v_add_u32 v4, %d, v2' % (8 * i))
            a('v_bfe_u32 v5, v4, 1, 3')
            a('v_xor_b32 v5, v5, v3')
            a('v_mul_u32_u24 v4, 1280, v4')
            a('v_lshl_add_u32 v4, v5, 4, v4')
            a('v_add_u32 v4, s%d, v4' % ST)
            if i == 0: a('v_mov_b32 v%d, v4' % (self.VX))
            else: a('v_subrev_u32 v%d, %d, v4' % (self.VX + i, 1024 * i))
            a('v_add_u32 v%d, %d, v4' % (self.VX + i + 2, 16 * 1280 - 1024 * (i + 2)))
        a('s_mul_i32 s%d, s%d, %d' % (ST, S_W, 16 * 3072))
        a('s_mul_i32 s%d, s%d, 192' % (ST + 1, S_CB))
        a('s_add_u32 s%d, s%d, s%d' % (ST, ST, ST + 1))
        for i in range(3):
            a('v_add_u32 v4, %d, v1' % (64 * i))
            a('v_mul_u32_u24 v5, 5462, v4')
            a('v_lshrrev_b32 v5, 16, v5')
            a('v_mul_u32_u24 v6, 12, v5')
            a('v_sub_u32 v6, v4, v6')
            a('v_bfe_u32 v7, v5, 3, 1')
            a('v_lshlrev_b32 v7, 1, v7')
            a('v_sub_u32 v6, v6, v7')
            a('v_add_u32 v7, 12, v6')
            a('v_min_u32 v6, v6, v7')
            a('v_mul_u32_u24 v5, 3072, v5')
            a('v_lshl_add_u32 v5, v6, 4, v5')
            a('v_add_u32 v5, s%d, v5' % ST)
            a('v_subrev_u32 v%d, %d, v5' % (self.VW + i, 1024 * i))
        a('s_lshl_b32 s%d, s15, 7' % self.SX)
        a('s_mul_i32 s%d, s15, %d' % (self.SWO, 64 * 3072))
        a('s_lshl_b32 s98, s%d, 12' % S_W)
        a('s_mul_i32 s99, s%d, 3072' % S_W)
        a('s_add_u32 s99, s99, 16384')
        self.marks = {}

    def dma_items(self, stage):
        slot = RB + SLOT * (stage % NSLOT)
        L = []
        def first(a):
            a('s_add_u32 m0, s98, %d' % slot)
            a('buffer_load_dwordx4 v%d, s[%d:%d], s%d offen lds' % (self.VX, R_X, R_X + 3, self.SX))
        L.append(first)
        for i in range(1, 4):
            L.append('buffer_load_dwordx4 v%d, s[%d:%d], s%d offen offset:%d lds' % (self.VX + i, R_X, R_X + 3, self.SX, 1024 * i))
        def mid(a):
            a('s_add_u32 m0, s99, %d' % slot)
            a('s_add_u32 s%d, s%d, 128' % (self.SX, self.SX))
            a('buffer_load_dwordx4 v%d, s[%d:%d], s%d offen lds' % (self.VW, R_W1, R_W1 + 3, self.SWO))
        L.append(mid)
        L.append('buffer_load_dwordx4 v%d, s[%d:%d], s%d offen offset:1024 lds' % (self.VW + 1, R_W1, R_W1 + 3, self.SWO))
        def last(a):
            a('buffer_load_dwordx4 v%d, s[%d:%d], s%d offen offset:2048 lds' % (self.VW + 2, R_W1, R_W1 + 3, self.SWO))
            self.marks[stage] = a.vm_mark()
            a('s_add_u32 s%d, s%d, %d' % (self.SWO, self.SWO, 64 * 3072))
            a('s_cmp_eq_u32 s%d, 1280' % self.SX)
            a('s_cmov_b32 s%d, 0' % self.SX)
            a('s_cmov_b32 s%d, 0' % self.SWO)
        L.append(last)
        return L

    def dma(self, a, stage):
        for x in self.dma_items(stage):
            do(a, x)

    def bias_load(self, a):
        a('v_lshrrev_b32 v3, 4, v1')
        a('s_mul_i32 s%d, s%d, 192' % (ST, S_CB))
        a('v_lshlrev_b32 v4, 3, v3')
        a('v_add_u32 v4, s%d, v4' % ST)
        for ft in range(6):
            a('global_load_dwordx2 %s, v4, s[%d:%d] offset:%d' % (vr(self.BRAW + 2 * ft, 2), P_B1, P_B1 + 1, 32 * ft))
        self.m_bias = a.vm_mark()

    def setup2(self, a):
        a('v_lshrrev_b32 v3, 4, v1')
        a('v_and_b32 v2, 15, v1')
        a('v_lshrrev_b32 v4, 1, v2')
        a('v_xor_b32 v4, v4, v3')
        a('v_lshlrev_b32 v4, 4, v4')
        a('v_lshl_add_u32 v4, v2, 7, v4')
        a('v_add_u32 v4, s98, v4')
        a('v_xor_b32 v5, 64, v4')
        a('v_lshrrev_b32 v6, 2, v2')
        a('v_lshl_add_u32 v6, v3, 3, v6')
        a('v_mul_u32_u24 v6, 192, v6')
        a('v_and_b32 v7, 3, v1')
        a('v_lshl_add_u32 v6, v7, 3, v6')
        a('v_and_b32 v7, 1, v3')
        a('v_lshl_add_u32 v6, v7, 5, v6')
        a('v_mul_u32_u24 v7, 192, v7')
        a('v_sub_u32 v7, v6, v7')
        for grp in range(3):
            off = RB + 2 * SLOT * grp
            a('v_add_u32 v%d, %d, v4' % (self.VB + 4 * grp, off))
            a('v_add_u32 v%d, %d, v5' % (self.VB + 4 * grp + 1, off))
            a('v_add_u32 v%d, %d, v6' % (self.VB + 4 * grp + 2, off + 16384))
            a('v_add_u32 v%d, %d, v7' % (self.VB + 4 * grp + 3, off + 16384))

    def unpack_bias(self, a):
        a.wait_vm(self.m_bias)
        for ft in range(6):
            for d in range(2):
                unpack(a, self.BIAS + 4 * ft + 2 * d, self.BIAS + 4 * ft + 2 * d + 1, self.BRAW + 2 * ft + d)

    def reads(self, stage, kk):
        slot = stage % NSLOT
        grp, so = slot // 2, (slot % 2) * SLOT
        L = []
        for st in range(2):
            L.append('ds_read_b128 %s, v%d offset:%d' % (ar(self.BF + 8 * kk + 4 * st, 4), self.VB + 4 * grp + kk, so + 2048 * st))
        for ft in range(6):
            base = self.VB + 4 * grp + (3 if ft == 5 else 2)
            for h in range(2):
                L.append('ds_read_b64_tr_b16 %s, v%d offset:%d' % (ar(self.AF + 24 * kk + 4 * ft + 2 * h, 2), base, so + 6144 * kk + 768 * h + 32 * ft))
        return L

    def mfma(self, kk, ft, st, first):
        acc = vr(self.ACC + 8 * ft + 4 * st, 4)
        c = vr(self.BIAS + 4 * ft, 4) if first else acc
        return 'v_mfma_f32_16x16x32_bf16 %s, %s, %s, %s' % (acc, ar(self.AF + 24 * kk + 4 * ft, 4), ar(self.BF + 8 * kk + 4 * st, 4), c)

    def block(self, a, kk, first, rmarks, nxt, bg):
        newmarks = []
        ni = 0
        for ft in range(6):
            if rmarks is not None:
                a.wait_lgkm(rmarks[2 + 2 * ft + 1])
            for st in range(2):
                a(self.mfma(kk, ft, st, first))
                if ni < len(nxt):
                    for _ in range(2):
                        a(nxt[ni]); newmarks.append(a.lgkm_mark()); ni += 1
                elif bg is not None:
                    bg.emit(a, 1)
        return newmarks

    def main(self, a, pre, post, mid, bgs):
        lead = OPT['lead']
        pm = None
        for i in range(10):
            if pm is not None:
                a('s_waitcnt lgkmcnt(0)')
            a.wait_vm(max(self.marks[i], pre[i]() if i in pre else 0))
            a('s_barrier')
            bg = BG()
            if i + lead <= 9 and (i + lead) not in self.marks:
                bg.add(self.dma_items(i + lead))
            if i in bgs:
                bg.add(bgs[i])
            rd = self.reads(i, 0)
            if pm is None:
                m0 = []
                for x in rd:
                    a(x); m0.append(a.lgkm_mark())
                bg.emit(a, 4)
            else:
                m0 = self.block(a, 1, False, None, rd, bg)
            if i in post:
                post[i](a)
            pm = self.block(a, 0, i == 0, m0, self.reads(i, 1), bg)
            bg.drain(a)
            if i in mid:
                mid[i](a)
        self.block(a, 1, False, pm, [], bgs.get(10))

    def epilogue(self, a, bg, per):
        C1, C2, ONE, T, O = 84, 86, 88, 184, (90 if OPT.get('late_p') else 216)
        c1 = -2.0 * 1.4426950408889634 * 0.7978845608028654
        for r, val in ((C1, c1), (C2, c1 * 0.044715), (ONE, 1.0)):
            a('v_mov_b32 v%d, %s' % (r, f32hex(val)))
            a('v_mov_b32 v%d, %s' % (r + 1, f32hex(val)))
        a('s_lshl_b32 s%d, s%d, 3' % (ST, S_R))
        a('s_lshl_b32 s%d, s%d, 1' % (ST + 1, S_W))
        a('s_add_u32 s%d, s%d, s%d' % (ST, ST, ST + 1))
        a('s_mul_i32 s%d, s%d, 48' % (ST, ST))
        a('s_mul_i32 s%d, s%d, 3' % (ST + 1, S_CB))
        a('s_add_u32 s%d, s%d, s%d' % (ST, ST, ST + 1))
        a('s_lshl_b32 s%d, s%d, 10' % (ST, ST))
        a('s_add_u32 s%d, s%d, 0x%x' % (ST, ST, LY.HF))
        a('s_add_u32 s%d, s%d, %d' % (ST + 1, ST, 48 * 1024))
        a('v_lshlrev_b32 v2, 4, v1')
        k = 0
        for st in range(2):
            for J in range(3):
                o = O + 4 * (k % 4); t0 = T + 16 * (k % 2); k += 1
                prs = [self.ACC + 8 * (2 * J + h) + 4 * st + 2 * p for h in range(2) for p in range(2)]
                for n, x in enumerate(prs):
                    a('v_pk_mul_f32 %s, %s, %s' % (vr(t0 + 2 * n, 2), vr(x, 2), vr(x, 2)))
                for n, x in enumerate(prs):
                    a('v_pk_fma_f32 %s, %s, %s, %s' % (vr(t0 + 2 * n, 2), vr(t0 + 2 * n, 2), vr(C2, 2), vr(C1, 2)))
                for n, x in enumerate(prs):
                    a('v_pk_mul_f32 %s, %s, %s' % (vr(t0 + 2 * n, 2), vr(t0 + 2 * n, 2), vr(x, 2)))
                bg.emit(a, (per + 2) // 3)
                for n in range(8):
                    a('v_exp_f32 v%d, v%d' % (t0 + n, t0 + n))
                for n, x in enumerate(prs):
                    a('v_pk_add_f32 %s, %s, %s' % (vr(t0 + 2 * n, 2), vr(t0 + 2 * n, 2), vr(ONE, 2)))
                bg.emit(a, (per + 1) // 3)
                for n in range(8):
                    a('v_rcp_f32 v%d, v%d' % (t0 + n, t0 + n))
                for n, x in enumerate(prs):
                    a('v_pk_mul_f32 %s, %s, %s' % (vr(t0 + 2 * n, 2), vr(t0 + 2 * n, 2), vr(x, 2)))
                bg.emit(a, per // 3)
                for n in range(4):
                    a('v_cvt_pk_bf16_f32 v%d, v%d, v%d' % (o + n, t0 + 2 * n, t0 + 2 * n + 1))
                a('buffer_store_dwordx4 %s, v2, s[%d:%d], s%d offen offset:%d%s' % (vr(o, 4), R_WS, R_WS + 3, ST + st, 1024 * J, SCS))

PP = 4160
QO0 = 16656
QO1 = QO0 + 4640
CS = 25856
CB = 0
TOP = [7, 6, 5, 2]
BOT = [4, 3, 1, 0]

class Conv:
    VADR = 16
    FR, ACC = 32, 112
    PRAW, QRAW, PT = 220, 140, 180
    SCH = 90
    S_D = 93

    def channels(self, a):
        a('s_mul_i32 s%d, s%d, 80' % (ST, S_J))
        a('s_lshr_b32 s%d, s%d, 1' % (ST + 1, S_Q))
        a('s_mul_i32 s%d, s%d, 5' % (ST + 1, ST + 1))
        a('s_add_u32 s%d, s%d, s%d' % (ST, ST, ST + 1))
        a('s_and_b32 s%d, s%d, 1' % (ST + 1, S_Q))
        a('s_mul_i32 s%d, s%d, 3' % (ST + 1, ST + 1))
        a('s_add_u32 s%d, s%d, s%d' % (self.SCH, ST, ST + 1))
        a('s_add_u32 s%d, s%d, 1' % (self.SCH + 1, self.SCH))
        a('s_add_u32 s%d, s%d, 2' % (self.SCH + 2, ST))
        if OPT.get('d_early'):
            a('s_cmp_eq_u32 s%d, 1' % S_W)
            a('s_cselect_b32 s%d, s%d, s%d' % (ST + 3, self.SCH + 1, self.SCH))
            a('s_cmp_eq_u32 s%d, 2' % S_W)
            a('s_cselect_b32 s%d, s%d, s%d' % (ST + 3, self.SCH + 2, ST + 3))
            for k, ch in enumerate((ST + 3, self.SCH + 1)):
                a('s_lshr_b32 s%d, s%d, 1' % (ST, ch))
                a('s_lshl_b32 s%d, s%d, 2' % (ST, ST))
                a('s_load_dword s%d, s[%d:%d], s%d' % (self.S_D + k, P_D, P_D + 1, ST))

    def load_p(self, a):
        a('v_lshlrev_b32 v2, 4, v0')
        a('v_subrev_u32 v3, 8, v2')
        a('s_mov_b32 s%d, 4096' % (R_HK + 2))
        a('s_mov_b32 s%d, 0x20000' % (R_HK + 3))
        for sl in range(3):
            a('s_lshl_b32 s%d, s%d, 12' % (ST, self.SCH + sl))
            a('s_add_u32 s%d, s%d, s%d' % (R_HK, P_HK, ST))
            a('s_addc_u32 s%d, s%d, 0' % (R_HK + 1, P_HK + 1))
            a('s_and_b32 s%d, s%d, 0xffff' % (R_HK + 1, R_HK + 1))
            a('buffer_load_dwordx4 %s, v2, s[%d:%d], 0 offen%s' % (vr(self.PRAW + 6 * sl + 2, 4), R_HK, R_HK + 3, NT()))
            a('buffer_load_dwordx2 %s, v3, s[%d:%d], 0 offen%s' % (vr(self.PRAW + 6 * sl, 2), R_HK, R_HK + 3, NT()))
        self.m_p = a.vm_mark()

    def load_q(self, a):
        a('v_lshlrev_b32 v2, 4, v0')
        for sl in range(3):
            a('s_lshl_b32 s%d, s%d, 12' % (ST + sl, self.SCH + sl))
            if LY.KVT:
                a('s_add_u32 s%d, s%d, 0x%x' % (ST + sl, ST + sl, LY.KVT))
            a('buffer_load_dwordx4 %s, v2, s[%d:%d], s%d offen%s' % (vr(self.QRAW + 4 * sl, 4), R_WS, R_WS + 3, ST + sl, SCL()))
        self.m_q = a.vm_mark()

    def zero_fill(self, a):
        L = a.newlabel('L_zf')
        a('s_cmp_ge_u32 s%d, 3' % S_W)
        a('s_cbranch_scc1 %s' % L)
        c = a.lgkm_issued
        for i in range(4):
            a('v_mov_b32 v%d, 0' % (8 + i))
        a('s_mul_i32 s%d, s%d, %d' % (ST, S_W, CS))
        a('v_lshlrev_b32 v2, 4, v1')
        a('v_add_u32 v2, s%d, v2' % ST)
        a('v_bfe_u32 v3, v1, 2, 2')
        a('v_mul_u32_u24 v3, %d, v3' % PP)
        a('v_and_b32 v4, 3, v1')
        a('v_lshl_add_u32 v3, v4, 4, v3')
        a('v_add_u32 v3, s%d, v3' % ST)
        a('v_cmp_gt_u32 vcc, 29, v1')
        a('s_and_saveexec_b64 s[%d:%d], vcc' % (ST + 2, ST + 3))
        a('ds_write_b128 v2, v[8:11] offset:%d' % (CB + QO0 + 4080))
        a('ds_write_b128 v2, v[8:11] offset:%d' % (CB + QO1 + 4096))
        a('ds_write_b128 v3, v[8:11] offset:%d' % CB)
        a('v_and_b32 v4, 3, v1')
        a('v_lshlrev_b32 v4, 4, v4')
        a('v_add_u32 v4, %d, v4' % (3 * CS))
        a('ds_write_b128 v4, v[8:11]')
        a('s_mov_b64 exec, s[%d:%d]' % (ST + 2, ST + 3))
        a.lgkm_issued = c
        a.label(L)

    def build_p(self, a):
        a('v_lshlrev_b32 v2, 4, v0')
        a.wait_vm(self.m_p)
        for sl in range(3):
            D = self.PRAW + 6 * sl
            T = self.PT + 12 * sl
            base = CB + CS * sl + 48
            assert base + 3 * PP <= 65535
            for k in range(4):
                a('v_alignbit_b32 v%d, v%d, v%d, 16' % (T + k, D + k + 1, D + k))
            a('ds_write_b128 v2, %s offset:%d' % (vr(D + 2, 4), base + 3 * PP))
            for k in range(4):
                a('v_mov_b32 v%d, v%d' % (T + 4 + k, D + 1 + k))
            a('ds_write_b128 v2, %s offset:%d' % (vr(T, 4), base))
            for k in range(3):
                a('v_mov_b32 v%d, v%d' % (T + 8 + k, T + 1 + k))
            a('v_alignbit_b32 v%d, v%d, v%d, 16' % (T + 11, D + 5, D + 4))
            a('ds_write_b128 v2, %s offset:%d' % (vr(T + 4, 4), base + PP))
            a('ds_write_b128 v2, %s offset:%d' % (vr(T + 8, 4), base + 2 * PP))

    def build_q(self, a):
        a('v_lshlrev_b32 v2, 4, v0')
        for sl in range(3):
            a('v_add_u32 v%d, %d, v2' % (4 + sl, CB + CS * sl + QO0 - 8))
        a.wait_vm(self.m_q)
        for sl in range(3):
            Q = self.QRAW + 4 * sl
            a('ds_write_b128 v%d, %s offset:%d' % (4 + sl, vr(Q, 4), QO1 - QO0 + 8))
            a('ds_write2_b64 v%d, %s, %s offset0:0 offset1:1' % (4 + sl, vr(Q, 2), vr(Q + 2, 2)))

    def task_setup(self, a):
        a('v_and_b32 v2, 15, v1')
        a('v_lshrrev_b32 v3, 4, v1')
        a('v_and_b32 v4, 3, v1')
        a('v_lshrrev_b32 v5, 2, v2')
        a('v_add_u32 v5, v5, v3')
        a('v_mul_u32_u24 v4, %d, v4' % PP)
        a('v_lshl_add_u32 v28, v5, 4, v4')
        a('v_and_b32 v4, 1, v1')
        a('v_lshrrev_b32 v5, 1, v2')
        a('v_lshlrev_b32 v5, 6, v5')
        a('v_lshlrev_b32 v6, 4, v3')
        a('v_mul_u32_u24 v7, 4640, v4')
        a('v_add_u32 v7, v7, v6')
        a('v_sub_u32 v7, v7, v5')
        a('v_add_u32 v29, %d, v7' % (QO0 + 448))
        a('v_add_u32 v5, v5, v6')
        a('v_lshl_add_u32 v31, v4, 3, v5')
        a('v_sub_u32 v30, %d, v31' % (QO1 + 504))
        a('s_cmp_eq_u32 s%d, 3' % S_W)
        a('s_cselect_b32 s%d, 0, s%d' % (ST + 2, S_W))
        a('s_cmp_eq_u32 s%d, 1' % (ST + 2))
        a('s_cselect_b32 s%d, s%d, s%d' % (ST + 3, self.SCH + 1, self.SCH))
        a('s_cmp_eq_u32 s%d, 2' % (ST + 2))
        a('s_cselect_b32 s%d, s%d, s%d' % (ST + 3, self.SCH + 2, ST + 3))
        a('s_mov_b32 s%d, s%d' % (ST + 4, self.SCH + 1))
        for k in range(2):
            ch = ST + 3 + k
            if not OPT.get('d_early'):
                a('s_lshr_b32 s%d, s%d, 1' % (ST, ch))
                a('s_lshl_b32 s%d, s%d, 2' % (ST, ST))
                a('s_load_dword s%d, s[%d:%d], s%d' % (self.S_D + k, P_D, P_D + 1, ST))
            if k == 0:
                a('s_mul_i32 s%d, s%d, %d' % (ST, ST + 2, CS))
                if CB: a('s_add_u32 s%d, s%d, %d' % (ST, ST, CB))
            else:
                a('s_mov_b32 s%d, %d' % (ST, CB + CS))
            for n in range(3):
                a('v_add_u32 v%d, s%d, v%d' % (self.VADR + 4 * k + n, ST, 28 + n))
            a('s_lshl_b32 s%d, s%d, 12' % (ST + 1, ch))
            a('s_add_u32 s%d, s%d, 0x%x' % (ST + 1, ST + 1, LY.Y2T))
            a('v_add_u32 v%d, s%d, v31' % (self.VADR + 4 * k + 3, ST + 1))
        if not OPT.get('d_early'):
            a('s_waitcnt lgkmcnt(0)')
        for k in range(2):
            a('s_lshl_b32 s%d, s%d, 16' % (ST, self.S_D + k))
            a('s_and_b32 s%d, s%d, 0xffff0000' % (self.S_D + k, self.S_D + k))
            a('s_bitcmp0_b32 s%d, 0' % (ST + 3 + k))
            a('s_cselect_b32 s%d, s%d, s%d' % (self.S_D + k, ST, self.S_D + k))

    def task(self, a, subs, hooks, bg, bg_every):
        freg = {}
        nr = self.FR
        for k, tiles in subs:
            n = max(tiles) + 1
            for p in range(n):
                freg[(k, 'A', p)] = nr; nr += 4
            for p in range(n):
                freg[(k, 'B', p)] = nr; nr += 4
        assert nr <= self.ACC
        areg = {}
        na = self.ACC
        for k, tiles in subs:
            for t in tiles:
                areg[(k, t)] = na; na += 4
        order = []
        maxp = max(max(t) for _, t in subs)
        for p in range(maxp + 1):
            for k, tiles in subs:
                for t in tiles:
                    if t >= p:
                        order.append((k, t, p))
        def rd(key, r):
            k, ab, p = key
            if ab == 'A':
                return 'ds_read_b128 %s, v%d offset:%d' % (vr(freg[key], 4), self.VADR + 4 * k, 512 * p + 64 * r)
            return 'ds_read_b128 %s, v%d offset:%d' % (vr(freg[key], 4), self.VADR + 4 * k + 1, 512 * (7 - p) + 64 * r)
        uses = [((k, 'A', p), (k, 'B', t - p)) for k, t, p in order]
        last = {}; first = {}
        for i, us in enumerate(uses):
            for u in us:
                last[u] = i; first.setdefault(u, i)
        mark = {}
        for key in sorted(first, key=lambda u: first[u]):
            a(rd(key, 0)); mark[key] = a.lgkm_mark()
        cnt = 0
        umark = {}
        UT = 144 - 0
        for r in range(8):
            if r in hooks:
                hooks[r](a)
            waited = -1
            seen = set()
            for i, (k, t, p) in enumerate(order):
                need = max(mark[u] for u in uses[i])
                if need > waited:
                    a.wait_lgkm(need); waited = need
                acc = vr(areg[(k, t)], 4)
                c = acc if (r > 0 or (k, t) in seen) else '0'
                seen.add((k, t))
                a('v_mfma_f32_16x16x32_bf16 %s, %s, %s, %s' % (acc, vr(freg[uses[i][0]], 4), vr(freg[uses[i][1]], 4), c))
                newm = {}
                for u in uses[i]:
                    if last[u] == i and r < 7:
                        a(rd(u, r + 1)); newm[u] = a.lgkm_mark()
                    elif last[u] == i and r == 7 and u[1] == 'A' and u[2] < len(dict(subs)[u[0]]):
                        tt = dict(subs)[u[0]][u[2]]
                        a('ds_read_b64 %s, v%d offset:%d' % (vr(freg[u], 2), self.VADR + 4 * u[0] + 2, 512 * (7 - tt)))
                        umark[(u[0], tt)] = (freg[u], a.lgkm_mark())
                for u, m in newm.items():
                    mark[(u, 'next')] = m
                cnt += 1
                if cnt % bg_every == 0:
                    bg.emit(a, 1)
            for u in list(first):
                if (u, 'next') in mark:
                    mark[u] = mark.pop((u, 'next'))
        X = 2
        for k, tiles in subs:
            for t in sorted(tiles):
                U, m = umark[(k, t)]
                A = areg[(k, t)]
                a.wait_lgkm(m)
                X = 4 if X == 8 else 8
                unpack(a, X + 3, X + 2, U)
                unpack(a, X + 1, X + 0, U + 1)
                for n in range(4):
                    a('v_fma_f32 v%d, v%d, s%d, v%d' % (X + n, X + n, self.S_D + k, A + n))
                a('v_cvt_pk_bf16_f32 v%d, v%d, v%d' % (U, X, X + 1))
                a('v_cvt_pk_bf16_f32 v%d, v%d, v%d' % (U + 1, X + 2, X + 3))
                a('buffer_store_dwordx2 %s, v%d, s[%d:%d], 0 offen offset:%d%s' % (vr(U, 2), self.VADR + 4 * k + 3, R_WS, R_WS + 3, 512 * t, SCS))

    def run(self, a, hooks, bg, bg_every):
        L_b1 = a.newlabel('L_bot1'); L_b2 = a.newlabel('L_bot2'); L_done = a.newlabel('L_cdone')
        a('s_cmp_eq_u32 s%d, 3' % S_W)
        a('s_cbranch_scc1 %s' % L_b2)
        a('s_and_b32 s%d, s%d, 1' % (ST + 4, S_Q))
        a('s_add_u32 s%d, s%d, s%d' % (ST + 4, ST + 4, S_W))
        a('s_cmp_ge_u32 s%d, 3' % (ST + 4))
        a('s_cbranch_scc1 %s' % L_b1)
        c0 = a.vm_issued; b0 = bg.save(); n0 = len(bg.items)
        ends = []; bgi = []
        for lab, subs, every in ((None, [(0, TOP)], bg_every), (L_b1, [(0, BOT)], max(1, bg_every // 2)), (L_b2, [(0, BOT), (1, BOT)], bg_every)):
            a.vm_issued = c0; bg.restore(b0); del bg.items[n0:]
            if lab:
                a.label(lab)
                a('s_nop 1')
            self._bgdrain = True
            self.task_wrapper(a, subs, hooks, bg, every)
            ends.append(a.vm_issued)
            bgi.append((bg.i, len(bg.items)))
            if lab != L_b2:
                a('s_branch %s' % L_done)
        a.label(L_done)
        assert len(set(bgi)) == 1, bgi
        assert ends[0] == ends[1] == ends[2] - 4, ends
        a.vm_issued = min(ends)

    def task_wrapper(self, a, subs, hooks, bg, every):
        self.task(a, subs, hooks, bg, every)

RED = 81920
YL = 143360
class G2:
    ACC, VL = 16, 60
    HB = [144, 192, 64, 144]
    QR, B2R, GR = 112, 122, 132
    B2F, Y, YT = 192, 212, 224
    VLW = 242

    def w2_items(self):
        L = []
        def init(a):
            a('v_lshlrev_b32 v%d, 4, v1' % self.VLW)
            a('s_mul_i32 s101, s%d, 48' % S_J)
            a('s_mul_i32 s100, s%d, 12' % S_W)
            a('s_add_u32 s101, s101, s100')
            a('s_mul_i32 s101, s101, 5120')
            a('s_add_u32 s101, s101, 0x%x' % LY.W2T)
        for n in range(60):
            def f(a, n=n):
                if n == 0: init(a)
                a('buffer_load_dwordx4 %s, v%d, s[%d:%d], s101 offen offset:%d%s' % (ar(4 * n, 4), self.VLW, R_WS, R_WS + 3, 1024 * (n % 4), SCL()))
                if n % 4 == 3:
                    a('s_add_u32 s101, s101, 4096')
                self.m_w2 = a.vm_mark()
            L.append(f)
        return L

    def h_items(self, it):
        L = []
        for ks in range(12):
            def f(a, ks=ks):
                if ks == 0:
                    a('s_add_u32 s100, s%d, %d' % (S_W, 1 + it))
                    a('s_and_b32 s100, s100, 3')
                    a('s_lshl_b32 s95, s%d, 2' % S_Q)
                    a('s_add_u32 s95, s95, s100')
                    a('s_mul_i32 s95, s95, 48')
                    a('s_mul_i32 s100, s%d, 12' % S_W)
                    a('s_add_u32 s95, s95, s100')
                    a('s_lshl_b32 s95, s95, 10')
                    a('s_add_u32 s95, s95, 0x%x' % LY.HF)
                a('buffer_load_dwordx4 %s, v%d, s[%d:%d], s95 offen offset:%d%s' % (vr(self.HB[it] + 4 * ks, 4), self.VLW, R_WS, R_WS + 3, 1024 * (ks % 4), SCL()))
                self.m_h[(it, ks)] = a.vm_mark()
                if ks % 4 == 3 and ks < 11:
                    a('s_add_u32 s95, s95, 4096')
            L.append(f)
        return L

    def epi_addr(self, a):
        a('v_lshlrev_b32 v%d, 4, v1' % self.VL)
        a('v_and_b32 v10, 15, v1')
        a('v_lshrrev_b32 v11, 4, v1')
        a('s_lshl_b32 s%d, s%d, 6' % (ST, S_Q))
        a('s_lshl_b32 s%d, s%d, 4' % (ST + 1, S_W))
        a('s_add_u32 s%d, s%d, s%d' % (ST, ST, ST + 1))
        a('s_mul_i32 s%d, s%d, 160' % (ST + 1, S_J))
        a('v_add_u32 v10, s%d, v10' % ST)
        a('v_lshlrev_b32 v4, 3, v11')
        a('v_add_u32 v4, s%d, v4' % (ST + 1))
        a('v_mul_u32_u24 v3, 1280, v10')
        a('v_add_u32 v3, v3, v4')
        a('v_lshlrev_b32 v5, 2, v10')
        a('v_add_u32 v5, 0x%x, v5' % LY.G)
        a('s_mul_i32 s%d, s%d, %d' % (ST + 1, S_J, 80 * 4096))
        a('s_lshl_b32 s%d, s%d, 1' % (ST, ST))
        a('s_add_u32 s%d, s%d, s%d' % (ST, ST, ST + 1))
        a('s_add_u32 s%d, s%d, 0x%x' % (ST, ST, LY.Y2T))
        a('v_lshrrev_b32 v6, 1, v1')
        a('v_lshlrev_b32 v6, 12, v6')
        a('v_and_b32 v10, 1, v1')
        a('v_lshl_add_u32 v6, v10, 4, v6')
        a('v_add_u32 v6, s%d, v6' % ST)
        a('s_mul_i32 s%d, s%d, 2560' % (ST, S_W))
        a('s_add_u32 s%d, s%d, %d' % (ST, ST, YL))
        a('v_add_u32 v7, s%d, v%d' % (ST, self.VL))
        a('v_lshlrev_b32 v8, 3, v1')
        a('v_add_u32 v8, s%d, v8' % ST)
        for it in range(3):
            a('s_add_u32 s%d, s%d, %d' % (ST, S_W, 1 + it))
            a('s_and_b32 s%d, s%d, 3' % (ST, ST))
            a('s_mul_i32 s%d, s%d, 15360' % (ST, ST))
            a('s_add_u32 s%d, s%d, %d' % (ST, ST, RED + 5120 * it))
            a('v_add_u32 v%d, s%d, v%d' % (12 + it, ST, self.VL))
        a('s_mul_i32 s%d, s%d, 15360' % (ST, S_W))
        a('s_add_u32 s%d, s%d, %d' % (ST, ST, RED))
        a('v_add_u32 v15, s%d, v%d' % (ST, self.VL))

    def epi_input_items(self):
        L = []
        for dt in range(5):
            L.append('global_load_dwordx2 %s, v4, s[%d:%d] offset:%d' % (vr(self.B2R + 2 * dt, 2), P_B2, P_B2 + 1, 32 * dt))
        for dt in range(5):
            L.append('buffer_load_dwordx2 %s, v3, s[%d:%d], 0 offen offset:%d' % (vr(self.QR + 2 * dt, 2), R_X, R_X + 3, 32 * dt))
        def f(a):
            a('buffer_load_dword v%d, v5, s[%d:%d], 0 offen%s' % (self.GR, R_WS, R_WS + 3, SCL()))
            self.m_in = a.vm_mark()
        L.append(f)
        return L

    def y_loads(self, a):
        Y = self.Y
        a('s_mov_b32 s%d, %d' % (ST, 32 * 4096))
        a('s_mov_b32 s%d, %d' % (ST + 1, 64 * 4096))
        a('buffer_load_dwordx4 %s, v6, s[%d:%d], 0 offen%s' % (vr(Y, 4), R_WS, R_WS + 3, SCL()))
        a('buffer_load_dwordx4 %s, v6, s[%d:%d], s%d offen%s' % (vr(Y + 4, 4), R_WS, R_WS + 3, ST, SCL()))
        a('s_mov_b64 exec, 0xffffffff')
        a('buffer_load_dwordx4 %s, v6, s[%d:%d], s%d offen%s' % (vr(Y + 8, 4), R_WS, R_WS + 3, ST + 1, SCL()))
        a('s_mov_b64 exec, -1')
        self.m_y = a.vm_mark()

    def y_stage(self, a):
        Y = self.Y
        a.wait_vm(self.m_y)
        a('ds_write_b128 v7, %s' % vr(Y, 4))
        a('ds_write_b128 v7, %s offset:1024' % vr(Y + 4, 4))
        a('s_mov_b64 exec, 0xffffffff')
        a('ds_write_b128 v7, %s offset:2048' % vr(Y + 8, 4))
        a('s_mov_b64 exec, -1')
        for dt in range(5):
            a('ds_read_b64_tr_b16 %s, v8 offset:%d' % (vr(self.YT + 2 * dt, 2), 512 * dt))

    def iteration(self, a, it, fill, bg=None, bg_every=4):
        acc0 = self.ACC + 20 * (it % 2)
        fi = 0; cnt = 0
        for ks in range(12):
            while (it, ks) not in self.m_h:
                bg.emit(a, 1)
            a.wait_vm(max(self.m_h[(it, ks)], self.m_w2 if (it == 0 and ks == 0) else 0))
            for dt in range(5):
                acc = vr(acc0 + 4 * dt, 4)
                c = acc if ks > 0 else (vr(self.B2F + 4 * dt, 4) if it == 3 else '0')
                a('v_mfma_f32_16x16x32_bf16 %s, %s, %s, %s' % (acc, ar(4 * (5 * ks + dt), 4), vr(self.HB[it] + 4 * ks, 4), c))
                cnt += 1
                if bg is not None and cnt % bg_every == 0 and bg.left():
                    bg.emit(a, 1)
                elif ks >= 2 and fi < len(fill):
                    a(fill[fi]); fi += 1
        while fi < len(fill):
            a(fill[fi]); fi += 1

    def red_writes(self, it):
        acc0 = self.ACC + 20 * (it % 2)
        return ['ds_write_b128 v%d, %s offset:%d' % (12 + it, vr(acc0 + 4 * dt, 4), 1024 * dt) for dt in range(5)]

    def main(self, a, bg, after0, after1, after2):
        self.epi_addr(a)
        bg.add(self.h_items(2))
        bg.add(self.epi_input_items())
        self.iteration(a, 0, [], bg, 3)
        ts(a, 19)
        after0(a)
        bg.add(self.h_items(3))
        self.iteration(a, 1, self.red_writes(0), bg, 3)
        bg.drain(a)
        ts(a, 20)
        after1(a)
        self.iteration(a, 2, self.red_writes(1), bg)
        ts(a, 21)
        a.wait_vm(self.m_in)
        for dt in range(5):
            for d in range(2):
                unpack(a, self.B2F + 4 * dt + 2 * d, self.B2F + 4 * dt + 2 * d + 1, self.B2R + 2 * dt + d)
        after2(a)
        self.y_loads(a)
        G_, OM = 56, 58
        QF, YF, R = 64, 84, 144
        fl = self.red_writes(2)
        fl.append('v_sub_f32 v%d, 1.0, v%d' % (OM, self.GR))
        fl.append('v_mov_b32 v%d, v%d' % (G_, self.GR))
        fl.append('v_cvt_pk_bf16_f32 v%d, v%d, v%d' % (OM, OM, OM))
        fl.append('v_mov_b32 v%d, v%d' % (G_ + 1, self.GR))
        fl.append('v_lshlrev_b32 v%d, 16, v%d' % (OM, OM))
        for n in range(10):
            fl.append('v_lshlrev_b32 v%d, 16, v%d' % (QF + 2 * n, self.QR + n))
            fl.append('v_and_b32 v%d, 0xffff0000, v%d' % (QF + 2 * n + 1, self.QR + n))
        fl.append('v_mov_b32 v%d, v%d' % (OM + 1, OM))
        for n in range(20):
            fl.append('v_mul_f32 v%d, v%d, v%d' % (QF + n, QF + n, G_))
        self.iteration(a, 3, fl, bg)
        ts(a, 22)
        a('s_waitcnt lgkmcnt(0)')
        a('s_barrier')
        ts(a, 23)
        for n in range(15):
            a('ds_read_b128 %s, v15 offset:%d' % (vr(R + 4 * n, 4), 1024 * n))
        m0 = a.lgkm_mark()
        self.y_stage(a)
        my = a.lgkm_mark()
        acc0 = self.ACC + 20
        for sl in range(3):
            a.wait_lgkm(m0 - 10 + 5 * sl)
            for n in range(10):
                a('v_pk_add_f32 %s, %s, %s' % (vr(acc0 + 2 * n, 2), vr(acc0 + 2 * n, 2), vr(R + 20 * sl + 2 * n, 2)))
        for n in range(10):
            a('v_pk_mul_f32 %s, %s, %s' % (vr(acc0 + 2 * n, 2), vr(acc0 + 2 * n, 2), vr(OM, 2)))
        a.wait_lgkm(my)
        for dt in range(5):
            for d in range(2):
                n = 2 * dt + d
                unpack(a, YF + 2 * n, YF + 2 * n + 1, self.YT + n)
            for d in range(2):
                n = 2 * dt + d
                a('v_pk_fma_f32 %s, %s, %s, %s' % (vr(QF + 2 * n, 2), vr(QF + 2 * n, 2), vr(YF + 2 * n, 2), vr(acc0 + 2 * n, 2)))
            for d in range(2):
                n = 2 * dt + d
                a('v_cvt_pk_bf16_f32 v%d, v%d, v%d' % (self.QR + n, QF + 2 * n, QF + 2 * n + 1))
            a('buffer_store_dwordx2 %s, v3, s[%d:%d], 0 offen offset:%d' % (vr(self.QR + 2 * dt, 2), R_OUT, R_OUT + 3, 32 * dt))

LITE = False
def ts(a, idx, real=False):
    if not PROF or (LITE and not real):
        return
    a('%s s[12:13]' % ('s_memrealtime' if real else 's_memtime'))
    a('s_waitcnt lgkmcnt(0)')
    a('v_writelane_b32 v%d, s12, %d' % (V_TS, idx))
def ts_flush(a):
    if not PROF:
        return
    a('s_lshl_b32 s12, s2, 2')
    a('s_add_u32 s12, s12, s%d' % S_W)
    a('s_lshl_b32 s12, s12, 7')
    a('s_add_u32 s12, s12, 0x%x' % LY.TS)
    a('v_lshlrev_b32 v2, 2, v1')
    a('s_mov_b64 exec, 0xffffffff')
    a('buffer_store_dword v%d, v2, s[%d:%d], s12 offen' % (V_TS, R_WS, R_WS + 3))
    a('s_mov_b64 exec, -1')

SPIN_MAX = 20000
def token_publish(a):
    L = a.newlabel('L_tokp')
    if OPT.get('cas'):
        a('s_cmp_ge_u32 s2, 8')
        a('s_cbranch_scc1 %s' % L)
        a('s_cmp_lg_u32 s%d, 3' % S_W)
        a('s_cbranch_scc1 %s' % L)
        a('s_memrealtime s[12:13]')
        a('s_waitcnt lgkmcnt(0)')
        a('s_or_b32 s12, s12, 1')
        a('v_mov_b32 v4, s12')
        a('v_mov_b32 v5, s13')
        a('v_mov_b32 v6, 0')
        a('v_mov_b32 v7, 0')
        c = a.vm_issued
        a('s_mov_b64 exec, 1')
        a('global_atomic_cmpswap_x2 v6, v[4:7], s[%d:%d] sc1' % (P_DBG, P_DBG + 1))
        a('s_mov_b64 exec, -1')
        a('s_nop 1')
        a.vm_issued = c
        a.label(L)
        return
    a('s_add_u32 s12, s2, s%d' % S_W)
    a('s_cmp_lg_u32 s12, 0')
    a('s_cbranch_scc1 %s' % L)
    a('s_memrealtime s[12:13]')
    a('s_waitcnt lgkmcnt(0)')
    a('s_or_b32 s12, s12, 1')
    a('v_mov_b32 v2, s12')
    a('v_mov_b32 v3, s13')
    a('v_mov_b32 v4, 0')
    c = a.vm_issued
    a('s_mov_b64 exec, 1')
    a(('global_store_dwordx2 v4, v[2:3], s[%d:%d]%%s' % (P_DBG, P_DBG + 1)) % OPT['psc'])
    a('s_mov_b64 exec, -1')
    a.vm_issued = c
    a.label(L)
def token_load(a):
    a('v_mov_b32 v%d, 0' % V_PA)
    a(('global_load_dwordx2 %s, v%d, s[%d:%d]%%s' % (vr(V_TOK, 2), V_PA, P_DBG, P_DBG + 1)) % OPT['psc'])
    return a.vm_mark()
def token_check(a, mark):
    L = a.newlabel('L_tok'); Lok = a.newlabel('L_tokok')
    a.wait_vm(mark)
    a('s_mov_b32 s14, %d' % SPIN_MAX)
    a.label(L)
    a('v_readfirstlane_b32 s%d, v%d' % (TOK, V_TOK))
    a('v_readfirstlane_b32 s%d, v%d' % (TOK + 1, V_TOK + 1))
    a('s_cmp_lg_u32 s%d, 0' % TOK)
    a('s_cbranch_scc1 %s' % Lok)
    a('s_sub_u32 s14, s14, 1')
    a('s_cmp_eq_u32 s14, 0')
    a('s_cbranch_scc1 %s' % Lok)
    a('s_sleep 2')
    c = a.vm_issued
    a(('global_load_dwordx2 %s, v%d, s[%d:%d]%%s' % (vr(V_TOK, 2), V_PA, P_DBG, P_DBG + 1)) % OPT['psc'])
    a('s_waitcnt vmcnt(0)')
    a.vm_issued = c
    a('s_branch %s' % L)
    a.label(Lok)
CNT = 3 * CS
def publish_cnt(a, mark, cnt, s_idx_expr):
    a.wait_vm(mark)
    a('v_mov_b32 v%d, %d' % (V_FA, CNT + 16 * cnt))
    a('v_mov_b32 v%d, 1' % V_TOK)
    a('s_mov_b64 exec, 1')
    a('ds_add_rtn_u32 v%d, v%d, v%d' % (V_TOK + 1, V_FA, V_TOK))
    a('s_mov_b64 exec, -1')
    a('s_waitcnt lgkmcnt(0)')
    a('v_readfirstlane_b32 s12, v%d' % (V_TOK + 1))
    flag_store(a, s_idx_expr, 12, 3)
def flag_store(a, s_idx_expr, sreg=S_W, val=0):
    L = a.newlabel('L_fs')
    a('s_cmp_lg_u32 s%d, %d' % (sreg, val))
    a('s_cbranch_scc1 %s' % L)
    s_idx_expr(a)
    a('v_mov_b32 v%d, s%d' % (V_TOK, TOK))
    a('v_mov_b32 v%d, s%d' % (V_TOK + 1, TOK + 1))
    a('v_mov_b32 v%d, s12' % V_FA)
    c = a.vm_issued
    a('s_mov_b64 exec, 1')
    a(('buffer_store_dwordx2 %s, v%d, s[%d:%d], 0 offen%%s' % (vr(V_TOK, 2), V_FA, R_WS, R_WS + 3)) % OPT['psc'])
    a('s_mov_b64 exec, -1')
    a.vm_issued = c
    a.label(L)
def poll_issue(a, base_expr, n):
    base_expr(a)
    a('v_and_b32 v%d, %d, v1' % (V_PA, n - 1))
    a('v_lshlrev_b32 v%d, %d, v%d' % (V_PA, FS(), V_PA))
    a('v_add_u32 v%d, s12, v%d' % (V_PA, V_PA))
    a(('buffer_load_dwordx2 %s, v%d, s[%d:%d], 0 offen%%s' % (vr(V_POLL, 2), V_PA, R_WS, R_WS + 3)) % OPT['psc'])
    return a.vm_mark()
def poll_check(a, mark):
    if OPT.get('nopoll'): return
    L = a.newlabel('L_poll'); Lok = a.newlabel('L_pollok')
    a.wait_vm(mark)
    a('s_mov_b32 s14, %d' % SPIN_MAX)
    a.label(L)
    a('v_cmp_eq_u64 vcc, s[%d:%d], %s' % (TOK, TOK + 1, vr(V_POLL, 2)))
    a('s_nop 0')
    a('s_cmp_eq_u64 vcc, -1')
    a('s_cbranch_scc1 %s' % Lok)
    a('s_sub_u32 s14, s14, 1')
    a('s_cmp_eq_u32 s14, 0')
    a('s_cbranch_scc1 %s' % Lok)
    a('s_sleep %d' % OPT.get('psleep', 1))
    c = a.vm_issued
    a(('buffer_load_dwordx2 %s, v%d, s[%d:%d], 0 offen%%s' % (vr(V_POLL, 2), V_PA, R_WS, R_WS + 3)) % OPT['psc'])
    a('s_waitcnt vmcnt(0)')
    a.vm_issued = c
    a('s_branch %s' % L)
    a.label(Lok)

FB = 0xF00000
F1, F2, F3 = FB, FB + 0x10000, FB + 0x20000
def FS(): return OPT.get('fs', 7)
def fbase_j(F):
    def f(a):
        a('s_lshl_b32 s12, s%d, %d' % (S_J, FS() + 5))
        a('s_add_u32 s12, s12, 0x%x' % F)
    return f
def fown_jq(F):
    def f(a):
        fbase_j(F)(a)
        a('s_lshl_b32 s13, s%d, %d' % (S_Q, FS()))
        a('s_add_u32 s12, s12, s13')
    return f
def fown_g1(a):
    a('s_lshl_b32 s12, s%d, %d' % (S_R, FS() + 4))
    a('s_lshl_b32 s13, s%d, %d' % (S_CB, FS()))
    a('s_add_u32 s12, s12, s13')
    a('s_add_u32 s12, s12, 0x%x' % F2)
def fbase_g2(a):
    a('s_lshr_b32 s12, s%d, 1' % S_Q)
    a('s_lshl_b32 s12, s12, %d' % (FS() + 4))
    a('s_add_u32 s12, s12, 0x%x' % F2)

def fused_body(a):
    p = Prep(); g = G1(); c = Conv(); h = G2()
    h.m_h = {}
    if OPT.get('diag'):
        a('s_memrealtime s[46:47]')
    g.setup(a)
    srds(a)
    if PROF:
        a('v_mov_b32 v%d, 0' % V_TS)
    ts(a, 30, True)
    ts(a, 0)
    nd = OPT.get('dma_first', 0)
    for s_ in range(nd):
        g.dma(a, s_)
    srds2(a)
    token_publish(a)
    if OPT.get('gate_late', 0): p.mode = 'kv'
    spr = OPT.get('spr', 0)
    if spr:
        p.addr(a)
    else:
        p.loads(a)
    g.bias_load(a)
    if OPT['prep_stage'] < 0:
        for s_ in range(nd, OPT.get('e_dma', 1)):
            g.dma(a, s_)
        g.setup2(a)
        p.compute(a)
        for s_ in range(OPT.get('e_dma', 1), OPT.get('e_dma2', 2)):
            g.dma(a, s_)
        a('s_waitcnt lgkmcnt(0)')
        a('s_barrier')
        p.transpose(a)
        for s_ in range(OPT.get('e_dma2', 2), OPT['lead']):
            g.dma(a, s_)
    else:
        for s_ in range(nd, OPT['lead']):
            g.dma(a, s_)
        g.setup2(a)
    m_tok = token_load(a)
    c.channels(a)
    g.unpack_bias(a)
    a('s_waitcnt lgkmcnt(0)')
    ts(a, 1)
    st = {}
    w2bg = BG(h.w2_items())
    ps = OPT['prep_stage']
    pre, post, mid, bgs = {}, {}, {}, {}
    def addhook(d, i, f):
        old = d.get(i)
        d[i] = (lambda a, old=old, f=f: ((old(a) if old else None), f(a)))
    if spr:
        items = p.load_items()
        npre = OPT.get('spr_pre', 0)
        for x in items[:npre]:
            do(a, x)
        items = items[npre:]
        i_ = OPT.get('spr0', 0)
        while items:
            bgs[i_] = items[:spr]; items = items[spr:]; i_ += 1
        assert i_ <= ps + 1, (i_, ps)
    if ps >= 0:
        addhook(mid, ps, p.compute)
        addhook(post, ps + 1, p.transpose)
    addhook(mid, OPT.get('p_ld', 1), c.load_p)
    if OPT.get('gate_late', 0):
        addhook(mid, OPT['gate_late'], p.gate_loads)
        addhook(mid, OPT.get('gate_cp', 7), p.gate_compute)
    pre[OPT['f1_pub']] = lambda: p.m_st
    def pub_f1(a):
        token_check(a, m_tok)
        flag_store(a, fown_jq(F1))
    addhook(post, OPT['f1_pub'], pub_f1)
    addhook(mid, OPT['f1_issue'], lambda a: st.__setitem__('f1', poll_issue(a, fbase_j(F1), 32)))
    if not OPT.get('late_p', 0):
        addhook(post, 7, c.zero_fill)
        addhook(post, 8, c.build_p)
    else:
        addhook(post, 8, c.zero_fill)
    def chk_f1(a):
        poll_check(a, st['f1'])
        ts(a, 14)
        c.load_q(a)
    addhook(mid, OPT['f1_chk'], chk_f1)
    n1 = OPT['w2_g1']
    if OPT['f1_chk'] < 9:
        items = [(lambda a: w2bg.emit(a, 1))] * n1
        bgs[9] = items
    bgs[10] = w2bg if OPT.get('w2_tail', 1) else None
    if PROF:
        for i in range(10):
            addhook(mid, i, lambda a, i=i: ts(a, 3 + i))
    tail = BG([(lambda a: w2bg.emit(a, 1)) if k % 4 == 3 else (lambda a: None) for k in range(12)])
    bgs[10] = tail
    g.main(a, pre, post, mid, bgs)
    if OPT.get('diag') == 3:
        a('s_memrealtime s[12:13]')
        a('s_waitcnt lgkmcnt(0)')
        a('s_mov_b32 s47, s12')
    ts(a, 13)
    g.epilogue(a, w2bg, OPT['w2_gelu'] // 6)
    m_hst = a.vm_mark()
    ts(a, 15)
    if OPT.get('late_p', 0):
        c.PT = 36
        c.build_p(a)
    c.build_q(a)
    c.task_setup(a)
    w2bg.emit(a, 2)
    a('s_waitcnt lgkmcnt(0)')
    if not OPT.get('cnt2'):
        a.wait_vm(m_hst)
    a('s_barrier')
    if not OPT.get('cnt2'):
        flag_store(a, fown_g1)
    ts(a, 16)
    hooks = {}
    if OPT.get('cnt2'):
        hooks[OPT['f2_pub']] = lambda a: publish_cnt(a, m_hst, 0, fown_g1)
    hooks[OPT['f2_issue']] = lambda a: st.__setitem__('f2', poll_issue(a, fbase_g2, 16))
    def chk_f2(a):
        w2bg.drain(a)
        poll_check(a, st['f2'])
        w2bg.add(h.h_items(0) + h.h_items(1))
    if OPT['f2_chk'] < 8:
        hooks[OPT['f2_chk']] = chk_f2
    def tw(a, subs, hooks_, bg, every):
        h.m_h.clear()
        c.task(a, subs, hooks_, bg, every)
    c.task_wrapper = tw
    c.run(a, hooks, w2bg, OPT.get('conv_every', 4))
    m_yst = a.vm_mark()
    ts(a, 17)
    if OPT['f2_chk'] >= 8:
        chk_f2(a)
    def pub_f3(a):
        if OPT.get('cnt3'):
            publish_cnt(a, m_yst, 1, fown_jq(F3))
            return
        a.wait_vm(m_yst)
        a('s_barrier')
        flag_store(a, fown_jq(F3))
    nop = lambda a: None
    iss = lambda a: st.__setitem__('f3', poll_issue(a, fbase_j(F3), 32))
    chk = lambda a: poll_check(a, st['f3'])
    if OPT.get('f3_late', 0):
        h.main(a, w2bg, nop, pub_f3, lambda a: (iss(a), chk(a)))
    else:
        h.main(a, w2bg, pub_f3, iss, chk)
    if OPT.get('diag') == 1:
        L = a.newlabel('L_dg')
        a('s_memrealtime s[12:13]')
        a('s_waitcnt lgkmcnt(0)')
        a('s_sub_u32 s14, s12, s46')
        a('s_add_u32 s14, s14, s12')
        a.label(L)
        a('s_memrealtime s[12:13]')
        a('s_waitcnt lgkmcnt(0)')
        a('s_sub_u32 s13, s14, s12')
        a('s_cmp_gt_i32 s13, 0')
        a('s_cbranch_scc1 %s' % L)
    if OPT.get('diag') == 2:
        L = a.newlabel('L_dg')
        a('s_memtime s[12:13]')
        a('s_waitcnt lgkmcnt(0)')
        a('s_add_u32 s14, s12, 20000')
        a.label(L)
        a('s_memtime s[12:13]')
        a('s_waitcnt lgkmcnt(0)')
        a('s_sub_u32 s13, s14, s12')
        a('s_cmp_gt_i32 s13, 0')
        a('s_cbranch_scc1 %s' % L)
    if OPT.get('diag') == 3:
        L = a.newlabel('L_dg')
        a('s_memrealtime s[12:13]')
        a('s_waitcnt lgkmcnt(0)')
        a('s_sub_u32 s14, s47, s46')
        a('s_add_u32 s14, s14, s12')
        a.label(L)
        a('s_memrealtime s[12:13]')
        a('s_waitcnt lgkmcnt(0)')
        a('s_sub_u32 s13, s14, s12')
        a('s_cmp_gt_i32 s13, 0')
        a('s_cbranch_scc1 %s' % L)
    ts(a, 24)
    ts(a, 31, True)
    ts_flush(a)

def build_fused(path):
    name = NAME + '_kernel'
    a = Asm()
    end = 'END_' + name
    prologue(a, end)
    fused_body(a)
    abl = OPT.get('abl', '')
    if abl:
        def kill(t):
            if 'k' in abl and (('s[%d:%d]' % (R_K, R_K + 3)) in t or ('s[%d:%d]' % (R_V, R_V + 3)) in t or ('s[%d:%d]' % (R_W2, R_W2 + 3)) in t): return True
            if 's' in abl and t.startswith('buffer_store_dwordx4 v[18') or ('s' in abl and t.startswith('buffer_store_dwordx4 v[19')): return True
            if 'h' in abl and t.startswith('buffer_store_dwordx4 v[9') or ('h' in abl and t.startswith('buffer_store_dwordx4 v[10')): return True
            if 'c' in abl and t.startswith('v_mfma') and ' a[' not in t: return True
            if 'C' in abl and (t.startswith('v_mfma') and ' a[' not in t or (t.startswith('ds_read_b128 v') and ('v16 ' in t or 'v17 ' in t or 'v20 ' in t or 'v21 ' in t))): return True
            if 'e' in abl and (t.startswith('v_exp') or t.startswith('v_rcp') or t.startswith('v_pk')): return True
            if 'w' in abl and 's101 offen' in t: return True
            if 'H' in abl and 's95 offen' in t: return True
            if 'g' in abl and t.startswith('v_mfma') and ', a[' in t and ', v[' in t.split(', a[')[1][:20] and 'a[19' not in t and 'a[2' not in t: return False
            if 'D' in abl and t.endswith(' lds'): return True
            return False
        a.items = [it for it in a.items if not (isinstance(it, Ins) and kill(it.text))]
    a.label(end)
    a('s_endpgm')
    a.raw('.p2align 12\n.fill %d, 4, 0xbf800000' % (1024 if not OPT.get('abl') else 5120))
    s = HEADER
    s += '; @launch grid=(256,1,1) block=(256,1,1) lds=163840\n'
    s += '.amdgcn_target "amdgcn-amd-amdhsa--gfx950"\n'
    s += '.text\n.globl %s\n.p2align 8\n.type %s,@function\n%s:\n' % (name, name, name) + a.text()
    s += '.section .rodata,"a"\n.p2align 6\n.amdhsa_kernel %s\n' % name
    s += '  .amdhsa_next_free_vgpr 512\n  .amdhsa_next_free_sgpr 102\n  .amdhsa_accum_offset 256\n'
    s += '  .amdhsa_group_segment_fixed_size 0\n  .amdhsa_kernarg_size 120\n  .amdhsa_user_sgpr_count 2\n'
    s += '  .amdhsa_user_sgpr_kernarg_segment_ptr 1\n  .amdhsa_system_sgpr_workgroup_id_x 1\n.end_amdhsa_kernel\n'
    open(path, 'w').write(s)

if __name__ == '__main__':
    for kv in sys.argv[1:]:
        k_, v_ = kv.split('=')
        OPT[k_] = int(v_) if v_.lstrip('-').isdigit() else v_.replace('_', ' ')
    build_fused('k_fused.s')
    PROF = True
    build_fused('k_fused_prof.s')
```

```python
import sys, struct
from asmlib import *
import layout as LY

NAME = 'gated_mix__ssm_conv_h3__dense_activation_gelu__prompt'
HEADER = open('cdna_kernels/%s.s.ref' % NAME).read().split('; Override launch')[0]
OPT = dict(nt=1, scl=' sc1', lead=3, prep_stage=0, f1_pub=3, f1_issue=6, f1_chk=8, late_p=1, gate_late=5, p_ld=3, d_early=1, gate4=1, fast_start=1, psc=' sc1', cas=1, cnt2=0, cnt3=0, f2_pub=2, rot=1, arr=1, f2_issue=4, f2_chk=6, w2_g1=8, w2_gelu=18)

S_XCD, S_IDX, S_Q, S_J, S_R, S_CB, S_W = 3, 4, 5, 6, 7, 8, 9
TOK = 10
P_Q, P_K, P_V, P_SK, P_HK, P_D, P_BX, P_W1, P_B1, P_W2, P_B2, P_GW, P_OUT, P_DBG, P_WS = range(16, 46, 2)
R_X, R_K, R_V, R_W1, R_W2, R_WS, R_OUT, R_HK = range(48, 80, 4)
ST = 80
NB_SD = 2048 * 1280
SCS = ' sc1'
def NT():
    return ' nt' if OPT.get('nt', 0) else ''
def SCL():
    return OPT.get('scl', '')
V_FA, V_TOK, V_POLL, V_PA, V_TS = 243, 244, 246, 248, 251
PROF = False

def f32hex(x):
    return '0x%08x' % struct.unpack('<I', struct.pack('<f', x))[0]
def srd(a, r, p, nbytes):
    a('s_mov_b32 s%d, s%d' % (r, p))
    a('s_and_b32 s%d, s%d, 0xffff' % (r + 1, p + 1))
    a('s_mov_b32 s%d, 0x%x' % (r + 2, nbytes))
    a('s_mov_b32 s%d, 0x20000' % (r + 3))
def scsel(a, dst, vt, vf):
    a('s_mov_b32 s%d, %d' % (dst, vf))
    a('s_cmov_b32 s%d, %d' % (dst, vt))
def unpack(a, dst_lo, dst_hi, src):
    a('v_lshlrev_b32 v%d, 16, v%d' % (dst_lo, src))
    a('v_and_b32 v%d, 0xffff0000, v%d' % (dst_hi, src))
def do(a, x):
    if callable(x): x(a)
    else: a(x)

class BG:
    def __init__(self, items=None):
        self.items = list(items or []); self.i = 0
    def add(self, items): self.items += items
    def left(self): return len(self.items) - self.i
    def emit(self, a, n=1):
        for _ in range(n):
            if self.i < len(self.items):
                do(a, self.items[self.i]); self.i += 1
    def drain(self, a): self.emit(a, self.left())
    def save(self): return self.i
    def restore(self, i): self.i = i

CODE_PIECES = 7
def prologue(a, end_label):
    if PROF: a('s_memrealtime s[46:47]')
    a('s_cmp_ge_u32 s2, 256')
    a('s_cbranch_scc1 %s' % end_label)
    a('s_load_dwordx16 s[16:31], s[0:1], 0')
    a('s_load_dwordx8 s[32:39], s[0:1], 64')
    a('s_load_dwordx4 s[40:43], s[0:1], 96')
    a('s_load_dwordx2 s[44:45], s[0:1], 112')
    a('s_and_b32 s%d, s2, 7' % S_XCD)
    a('s_lshr_b32 s%d, s2, 3' % S_IDX)
    a('s_getpc_b64 s[12:13]')
    a('s_and_b32 s14, s%d, 7' % S_IDX)
    a('s_min_u32 s14, s14, %d' % (CODE_PIECES - 1))
    a('s_lshl_b32 s14, s14, 12')
    a('s_add_u32 s12, s12, s14')
    a('s_addc_u32 s13, s13, 0')
    a('v_lshlrev_b32 v2, 4, v0')
    a('v_mov_b32 v3, s13')
    a('v_add_co_u32 v2, vcc, s12, v2')
    a('v_addc_co_u32 v3, vcc, 0, v3, vcc')
    a('global_load_dwordx4 v[252:255], v[2:3], off')
    a('v_lshrrev_b32 v2, 6, v0')
    a('v_and_b32 v1, 63, v0')
    a('s_and_b32 s%d, s%d, 3' % (S_Q, S_IDX))
    a('v_readfirstlane_b32 s%d, v2' % S_W)
    a('s_lshl_b32 s%d, s%d, 2' % (ST, S_XCD))
    a('s_lshr_b32 s%d, s%d, 2' % (S_J, S_IDX))
    if OPT['arr']:
        a('s_lshr_b32 s%d, s%d, 1' % (S_R, S_XCD))
        a('s_lshl_b32 s%d, s%d, 2' % (S_R, S_R))
        a('s_add_u32 s%d, s%d, s%d' % (S_R, S_R, S_Q))
        a('s_and_b32 s%d, s%d, 1' % (S_CB, S_XCD))
        a('s_lshl_b32 s%d, s%d, 3' % (S_CB, S_CB))
        a('s_add_u32 s%d, s%d, s%d' % (S_CB, S_CB, S_J))
    else:
        a('s_and_b32 s%d, s%d, 1' % (S_R, S_IDX))
        a('s_lshl_b32 s%d, s%d, 1' % (ST + 1, S_XCD))
        a('s_add_u32 s%d, s%d, s%d' % (S_R, S_R, ST + 1))
        a('s_lshr_b32 s%d, s%d, 1' % (S_CB, S_IDX))
    a('s_mul_i32 s15, s%d, 3' % S_Q)
    a('s_add_u32 s15, s15, s%d' % S_J)
    a('s_sub_u32 s14, s15, 10')
    a('s_cmp_ge_u32 s15, 10')
    a('s_cselect_b32 s15, s14, s15')
    if not OPT['rot']:
        a('s_mov_b32 s15, 0')
    a('s_add_u32 s%d, s%d, s%d' % (S_Q, S_Q, ST))

def srds(a):
    a('s_waitcnt lgkmcnt(0)')
    srd(a, R_X, P_Q, NB_SD)
    srd(a, R_W1, P_W1, 640 * 3072)
def srds2(a):
    srd(a, R_K, P_K, NB_SD)
    srd(a, R_V, P_V, NB_SD)
    srd(a, R_W2, P_W2, 1536 * 1280)
    srd(a, R_WS, P_WS, 0x10000000)
    srd(a, R_OUT, P_OUT, NB_SD)

class Prep:
    LKV, LW2 = 0, 10240
    KR, VR_, SKR, T = 120, 148, 164, 180

    def addr(self, a):
        L_gate = a.newlabel('L_gate'); L_join = a.newlabel('L_pl')
        a('s_cmp_eq_u32 s%d, 3' % S_W)
        a('s_cbranch_scc1 %s' % L_gate)
        a('v_min_u32 v14, 159, v0')
        a('v_mul_u32_u24 v12, 6554, v14')
        a('v_lshrrev_b32 v12, 16, v12')
        a('v_mul_u32_u24 v13, 10, v12')
        a('v_sub_u32 v13, v14, v13')
        a('s_mul_i32 s%d, s%d, %d' % (ST, S_Q, 64 * 1280))
        a('s_mul_i32 s%d, s%d, 160' % (ST + 1, S_J))
        a('s_add_u32 s%d, s%d, s%d' % (ST, ST, ST + 1))
        a('v_mul_u32_u24 v238, 5120, v12')
        a('v_lshl_add_u32 v238, v13, 4, v238')
        a('v_add_u32 v238, s%d, v238' % ST)
        a('v_subrev_u32 v239, 3840, v238')
        a('s_mul_i32 s%d, s%d, 640' % (ST + 1, S_J))
        a('v_lshlrev_b32 v240, 6, v13')
        a('v_add_u32 v240, s%d, v240' % (ST + 1))
        a('s_branch %s' % L_join)
        a.label(L_gate)
        a('v_lshrrev_b32 v12, 3, v1')
        a('v_and_b32 v13, 7, v1')
        a('s_lshl_b32 s%d, s%d, 7' % (ST, S_R))
        a('s_lshl_b32 s%d, s%d, 3' % (ST + 1, S_CB))
        a('s_add_u32 s%d, s%d, s%d' % (ST, ST, ST + 1))
        a('v_add_u32 v12, s%d, v12' % ST)
        a('v_mul_u32_u24 v238, 1280, v12')
        a('v_lshlrev_b32 v239, 4, v13')
        a('v_add_u32 v238, v238, v239')
        a('v_mov_b32 v240, 0')
        a.label(L_join)

    def load_items(self):
        KR, VR_, SKR = self.KR, self.VR_, self.SKR
        kv = []
        for r in range(4):
            kv.append('buffer_load_dwordx4 %s, v238, s[%d:%d], 0 offen offset:%d%s' % (vr(KR + 12 + 4 * r, 4), R_K, R_K + 3, 1280 * r, NT()))
        for r in range(3):
            kv.append('buffer_load_dwordx4 %s, v239, s[%d:%d], 0 offen offset:%d%s' % (vr(KR + 4 * r, 4), R_K, R_K + 3, 1280 * r, NT()))
        for r in range(4):
            kv.append('buffer_load_dwordx4 %s, v238, s[%d:%d], 0 offen offset:%d%s' % (vr(VR_ + 4 * r, 4), R_V, R_V + 3, 1280 * r, NT()))
        for r in range(4):
            kv.append('buffer_load_dwordx4 %s, v238, s[%d:%d], 0 offen offset:%d%s' % (ar(4 * r, 4), R_W2, R_W2 + 3, 1280 * r, NT()))
        for i in range(4):
            kv.append('global_load_dwordx4 %s, v240, s[%d:%d] offset:%d' % (vr(SKR + 4 * i, 4), P_SK, P_SK + 1, 16 * i))
        kv.append(kv[-1])
        gt = []
        for n in range(10):
            gt.append('buffer_load_dwordx4 %s, v238, s[%d:%d], 0 offen offset:%d' % (vr(120 + 4 * n, 4), R_X, R_X + 3, 128 * n))
            gt.append('global_load_dwordx4 %s, v239, s[%d:%d] offset:%d' % (ar(16 + 4 * n, 4), P_GW, P_GW + 1, 128 * n))
        L = []
        for k in range(20):
            def f(a, k=k):
                Lg = a.newlabel('L_ig'); Lj = a.newlabel('L_ij')
                a('s_cmp_eq_u32 s%d, 3' % S_W)
                a('s_cbranch_scc1 %s' % Lg)
                a(kv[k])
                c = a.vm_issued
                a('s_branch %s' % Lj)
                a.label(Lg)
                a(gt[k])
                a.vm_issued = c
                a.label(Lj)
                self.m_all = c
            L.append(f)
        return L

    mode = 'both'
    def gate_loads1(self, a):
        L = a.newlabel('L_gl')
        c = a.vm_issued
        a('s_cmp_lg_u32 s%d, 3' % S_W)
        a('s_cbranch_scc1 %s' % L)
        a('v_lshrrev_b32 v14, 3, v1')
        a('v_and_b32 v15, 7, v1')
        a('s_lshl_b32 s%d, s%d, 7' % (ST, S_R))
        a('s_lshl_b32 s%d, s%d, 3' % (ST + 1, S_CB))
        a('s_add_u32 s%d, s%d, s%d' % (ST, ST, ST + 1))
        a('v_add_u32 v14, s%d, v14' % ST)
        a('v_mul_u32_u24 v4, 1280, v14')
        a('v_lshlrev_b32 v5, 4, v15')
        a('v_add_u32 v4, v4, v5')
        for n in range(10):
            a('buffer_load_dwordx4 %s, v4, s[%d:%d], 0 offen offset:%d' % (vr(100 + 4 * n, 4), R_X, R_X + 3, 128 * n))
            a('global_load_dwordx4 %s, v5, s[%d:%d] offset:%d' % (vr(160 + 4 * n, 4), P_GW, P_GW + 1, 128 * n))
        a.label(L)
        a.vm_issued = c
        self.m_gate = c
    def gate_compute1(self, a):
        L = a.newlabel('L_gc')
        c = a.vm_issued
        a('s_cmp_lg_u32 s%d, 3' % S_W)
        a('s_cbranch_scc1 %s' % L)
        a.wait_vm(self.m_gate)
        a('v_mov_b32 v10, 0')
        a('v_mov_b32 v11, 0')
        for n in range(40):
            acc = 10 + (n & 1)
            a('v_dot2_f32_bf16 v%d, v%d, v%d, v%d' % (acc, 100 + n, 160 + n, acc))
        a('s_nop 3')
        a('v_add_f32 v10, v10, v11')
        a('v_add_f32_dpp v10, v10, v10 quad_perm:[1,0,3,2] row_mask:0xf bank_mask:0xf')
        a('v_add_f32_dpp v10, v10, v10 quad_perm:[2,3,0,1] row_mask:0xf bank_mask:0xf')
        a('v_add_f32_dpp v10, v10, v10 row_half_mirror row_mask:0xf bank_mask:0xf')
        a('v_cvt_pk_bf16_f32 v10, v10, v10')
        a('v_lshlrev_b32 v10, 16, v10')
        a('v_mul_f32 v10, 0xbfb8aa3b, v10')
        a('v_exp_f32 v10, v10')
        a('v_add_f32 v10, 1.0, v10')
        a('v_rcp_f32 v10, v10')
        a('v_cvt_pk_bf16_f32 v10, v10, v10')
        a('v_lshlrev_b32 v10, 16, v10')
        a('v_lshlrev_b32 v4, 2, v14')
        a('v_add_u32 v4, 0x%x, v4' % LY.G)
        a('v_cmp_eq_u32 vcc, 0, v15')
        a('s_and_saveexec_b64 s[%d:%d], vcc' % (ST + 2, ST + 3))
        a('buffer_store_dword v10, v4, s[%d:%d], 0 offen%s' % (R_WS, R_WS + 3, SCS))
        a('s_mov_b64 exec, s[%d:%d]' % (ST + 2, ST + 3))
        a.label(L)
        a.vm_issued = c

    def gate_loads(self, a):
        if not OPT.get('gate4'): return self.gate_loads1(a)
        a('v_lshrrev_b32 v14, 5, v1')
        a('v_and_b32 v15, 31, v1')
        a('s_lshl_b32 s%d, s%d, 7' % (ST, S_R))
        a('s_lshl_b32 s%d, s%d, 3' % (ST + 1, S_CB))
        a('s_add_u32 s%d, s%d, s%d' % (ST, ST, ST + 1))
        a('s_lshl_b32 s%d, s%d, 1' % (ST + 1, S_W))
        a('s_add_u32 s%d, s%d, s%d' % (ST, ST, ST + 1))
        a('v_add_u32 v14, s%d, v14' % ST)
        a('v_mul_u32_u24 v4, 1280, v14')
        a('v_lshlrev_b32 v5, 3, v15')
        a('v_add_u32 v4, v4, v5')
        for n in range(5):
            a('buffer_load_dwordx2 %s, v4, s[%d:%d], 0 offen offset:%d' % (vr(100 + 2 * n, 2), R_X, R_X + 3, 256 * n))
            a('global_load_dwordx2 %s, v5, s[%d:%d] offset:%d' % (vr(110 + 2 * n, 2), P_GW, P_GW + 1, 256 * n))
        self.m_gate = a.vm_mark()
    def gate_compute(self, a):
        if not OPT.get('gate4'): return self.gate_compute1(a)
        a.wait_vm(self.m_gate)
        a('v_mov_b32 v10, 0')
        a('v_mov_b32 v11, 0')
        for n in range(10):
            acc = 10 + (n & 1)
            a('v_dot2_f32_bf16 v%d, v%d, v%d, v%d' % (acc, 100 + n, 110 + n, acc))
        a('s_nop 3')
        a('v_add_f32 v10, v10, v11')
        a('v_add_f32_dpp v10, v10, v10 quad_perm:[1,0,3,2] row_mask:0xf bank_mask:0xf')
        a('v_add_f32_dpp v10, v10, v10 quad_perm:[2,3,0,1] row_mask:0xf bank_mask:0xf')
        a('v_add_f32_dpp v10, v10, v10 row_half_mirror row_mask:0xf bank_mask:0xf')
        a('v_add_f32_dpp v10, v10, v10 row_mirror row_mask:0xf bank_mask:0xf')
        a('v_add_f32_dpp v10, v10, v10 row_bcast:15 row_mask:0xa bank_mask:0xf')
        a('v_cvt_pk_bf16_f32 v10, v10, v10')
        a('v_lshlrev_b32 v10, 16, v10')
        a('v_mul_f32 v10, 0xbfb8aa3b, v10')
        a('v_exp_f32 v10, v10')
        a('v_add_f32 v10, 1.0, v10')
        a('v_rcp_f32 v10, v10')
        a('v_cvt_pk_bf16_f32 v10, v10, v10')
        a('v_lshlrev_b32 v10, 16, v10')
        a('v_lshlrev_b32 v4, 2, v14')
        a('v_add_u32 v4, 0x%x, v4' % LY.G)
        a('v_cmp_eq_u32 vcc, 31, v15')
        a('s_and_saveexec_b64 s[%d:%d], vcc' % (ST + 2, ST + 3))
        a('buffer_store_dword v10, v4, s[%d:%d], 0 offen%s' % (R_WS, R_WS + 3, SCS))
        a('s_mov_b64 exec, s[%d:%d]' % (ST + 2, ST + 3))

    def loads(self, a):
        L_gate = a.newlabel('L_gate'); L_join = a.newlabel('L_pl')
        KR, VR_, SKR = self.KR, self.VR_, self.SKR
        self.c00 = a.vm_issued
        a('s_cmp_eq_u32 s%d, 3' % S_W)
        a('s_cbranch_scc1 %s' % L_gate)
        a('v_mul_u32_u24 v12, 6554, v0')
        a('v_lshrrev_b32 v12, 16, v12')
        a('v_mul_u32_u24 v13, 10, v12')
        a('v_sub_u32 v13, v0, v13')
        a('s_mul_i32 s%d, s%d, %d' % (ST, S_Q, 64 * 1280))
        a('s_mul_i32 s%d, s%d, 160' % (ST + 1, S_J))
        a('s_add_u32 s%d, s%d, s%d' % (ST, ST, ST + 1))
        a('v_mul_u32_u24 v4, 5120, v12')
        a('v_lshl_add_u32 v4, v13, 4, v4')
        a('v_add_u32 v4, s%d, v4' % ST)
        a('v_subrev_u32 v5, 3840, v4')
        a('s_mul_i32 s%d, s%d, 640' % (ST + 1, S_J))
        a('v_lshlrev_b32 v6, 6, v13')
        a('v_add_u32 v6, s%d, v6' % (ST + 1))
        a('v_cmp_gt_u32 vcc, 160, v0')
        a('s_and_saveexec_b64 s[%d:%d], vcc' % (ST + 2, ST + 3))
        for r in range(4):
            a('buffer_load_dwordx4 %s, v4, s[%d:%d], 0 offen offset:%d%s' % (vr(KR + 12 + 4 * r, 4), R_K, R_K + 3, 1280 * r, NT()))
        for r in range(4):
            a('buffer_load_dwordx4 %s, v4, s[%d:%d], 0 offen offset:%d%s' % (vr(VR_ + 4 * r, 4), R_V, R_V + 3, 1280 * r, NT()))
        for r in range(4):
            a('buffer_load_dwordx4 %s, v4, s[%d:%d], 0 offen offset:%d%s' % (ar(4 * r, 4), R_W2, R_W2 + 3, 1280 * r, NT()))
        for i in range(4):
            a('global_load_dwordx4 %s, v6, s[%d:%d] offset:%d' % (vr(SKR + 4 * i, 4), P_SK, P_SK + 1, 16 * i))
        for r in range(3):
            a('buffer_load_dwordx4 %s, v5, s[%d:%d], 0 offen offset:%d%s' % (vr(KR + 4 * r, 4), R_K, R_K + 3, 1280 * r, NT()))
        a('s_mov_b64 exec, s[%d:%d]' % (ST + 2, ST + 3))
        a('s_branch %s' % L_join)
        endA = a.vm_issued
        a.label(L_gate)
        if self.mode == 'kv':
            a.label(L_join)
            a.vm_issued = self.c00
            self.m_all = self.c00
            return
        a('v_lshrrev_b32 v12, 3, v1')
        a('v_and_b32 v13, 7, v1')
        a('s_lshl_b32 s%d, s%d, 7' % (ST, S_R))
        a('s_lshl_b32 s%d, s%d, 3' % (ST + 1, S_CB))
        a('s_add_u32 s%d, s%d, s%d' % (ST, ST, ST + 1))
        a('v_add_u32 v12, s%d, v12' % ST)
        a('v_mul_u32_u24 v4, 1280, v12')
        a('v_lshlrev_b32 v5, 4, v13')
        a('v_add_u32 v4, v4, v5')
        for n in range(10):
            a('buffer_load_dwordx4 %s, v4, s[%d:%d], 0 offen offset:%d' % (vr(120 + 4 * n, 4), R_X, R_X + 3, 128 * n))
            a('global_load_dwordx4 %s, v5, s[%d:%d] offset:%d' % (ar(16 + 4 * n, 4), P_GW, P_GW + 1, 128 * n))
        a.label(L_join)
        a.vm_issued = endA
        self.m_all = endA

    def compute(self, a):
        L_gate = a.newlabel('L_gate'); L_join = a.newlabel('L_prepjoin')
        KR, VR_, SKR, T = self.KR, self.VR_, self.SKR, self.T
        LKV, LW2 = self.LKV, self.LW2
        a.wait_vm(self.m_all)
        a('s_cmp_eq_u32 s%d, 3' % S_W)
        a('s_cbranch_scc1 %s' % L_gate)
        a('v_mul_u32_u24 v8, 640, v12')
        a('v_lshlrev_b32 v9, 4, v13')
        a('v_sub_u32 v7, v9, v8')
        a('v_add_u32 v7, %d, v7' % (LKV + 60 * 160))
        a('v_add_u32 v8, v8, v9')
        a('v_add_u32 v8, %d, v8' % LW2)
        a('v_cmp_gt_u32 vcc, 160, v0')
        a('s_and_saveexec_b64 s[%d:%d], vcc' % (ST + 2, ST + 3))
        for r in range(4):
            a('ds_write_b128 v8, %s offset:%d' % (ar(4 * r, 4), r * 160))
        KF, SF, VF, AC = T, T + 14, T + 22, T + 30
        for d in range(4):
            for r in range(7):
                unpack(a, KF + 2 * r, KF + 2 * r + 1, KR + 4 * r + d)
            for h in range(2):
                unpack(a, SF + 0 + h, SF + 2 + h, SKR + 2 * (2 * d + h))
                unpack(a, SF + 4 + h, SF + 6 + h, SKR + 2 * (2 * d + h) + 1)
            for r in range(4):
                unpack(a, VF + 2 * r, VF + 2 * r + 1, VR_ + 4 * r + d)
            for j in range(4):
                for r in range(4):
                    acc = vr(AC + 2 * r, 2); kf = vr(KF + 2 * (r + 3 - j), 2); sf = vr(SF + 2 * j, 2)
                    if j == 0: a('v_pk_mul_f32 %s, %s, %s' % (acc, kf, sf))
                    else: a('v_pk_fma_f32 %s, %s, %s, %s' % (acc, kf, sf, acc))
            for r in range(4):
                a('v_pk_mul_f32 %s, %s, %s' % (vr(AC + 2 * r, 2), vr(AC + 2 * r, 2), vr(VF + 2 * r, 2)))
            for r in range(4):
                a('v_cvt_pk_bf16_f32 v%d, v%d, v%d' % (VR_ + 4 * r + d, AC + 2 * r, AC + 2 * r + 1))
        for r in range(4):
            a('ds_write_b128 v7, %s offset:%d' % (vr(VR_ + 4 * r, 4), (3 - r) * 160))
        a('s_mov_b64 exec, s[%d:%d]' % (ST + 2, ST + 3))
        a('s_branch %s' % L_join)
        cA = a.vm_issued
        a.label(L_gate)
        if self.mode == 'kv':
            a.label(L_join)
            return
        a('v_mov_b32 v10, 0')
        a('v_mov_b32 v11, 0')
        for n in range(40):
            a('v_accvgpr_read_b32 v%d, a%d' % (T + n, 16 + n))
        for n in range(40):
            acc = 10 + (n & 1)
            a('v_dot2_f32_bf16 v%d, v%d, v%d, v%d' % (acc, 120 + n, T + n, acc))
        a('s_nop 3')
        a('v_add_f32 v10, v10, v11')
        a('v_add_f32_dpp v10, v10, v10 quad_perm:[1,0,3,2] row_mask:0xf bank_mask:0xf')
        a('v_add_f32_dpp v10, v10, v10 quad_perm:[2,3,0,1] row_mask:0xf bank_mask:0xf')
        a('v_add_f32_dpp v10, v10, v10 row_half_mirror row_mask:0xf bank_mask:0xf')
        a('v_cvt_pk_bf16_f32 v10, v10, v10')
        a('v_lshlrev_b32 v10, 16, v10')
        a('v_mul_f32 v10, 0xbfb8aa3b, v10')
        a('v_exp_f32 v10, v10')
        a('v_add_f32 v10, 1.0, v10')
        a('v_rcp_f32 v10, v10')
        a('v_cvt_pk_bf16_f32 v10, v10, v10')
        a('v_lshlrev_b32 v10, 16, v10')
        a('v_lshlrev_b32 v4, 2, v12')
        a('v_add_u32 v4, 0x%x, v4' % LY.G)
        a('v_cmp_eq_u32 vcc, 0, v13')
        a('s_and_saveexec_b64 s[%d:%d], vcc' % (ST + 2, ST + 3))
        a('buffer_store_dword v10, v4, s[%d:%d], 0 offen%s' % (R_WS, R_WS + 3, SCS))
        a('s_mov_b64 exec, s[%d:%d]' % (ST + 2, ST + 3))
        a.label(L_join)
        a.vm_issued = cA

    def transpose(self, a):
        L_skip = a.newlabel('L_prepskip')
        LKV, LW2 = self.LKV, self.LW2
        O = self.T
        a('v_and_b32 v2, 15, v1')
        a('v_lshrrev_b32 v3, 4, v1')
        a('v_lshrrev_b32 v4, 2, v2')
        a('v_and_b32 v5, 3, v1')
        a('s_and_b32 s%d, s%d, 1' % (ST, S_W))
        a('s_cmp_ge_u32 s%d, 2' % S_W)
        a('s_cselect_b32 s%d, 2, 3' % (ST + 1))
        scsel(a, ST + 2, 2560, 640)
        scsel(a, ST + 3, LW2, LKV)
        scsel(a, ST + 4, 1024, 65536)
        a('s_mul_i32 s%d, s%d, %d' % (ST + 5, ST, 32 * 160))
        a('s_add_u32 s%d, s%d, s%d' % (ST + 3, ST + 3, ST + 5))
        a('v_lshlrev_b32 v6, s%d, v3' % (ST + 1))
        a('v_add_u32 v6, v6, v4')
        a('v_mul_u32_u24 v6, 160, v6')
        a('v_lshl_add_u32 v6, v5, 3, v6')
        a('v_add_u32 v6, s%d, v6' % (ST + 3))
        a('v_add_u32 v7, s%d, v6' % (ST + 2))
        for u in range(5):
            a('ds_read_b64_tr_b16 %s, v6 offset:%d' % (vr(O + 4 * u, 2), 32 * u))
            a('ds_read_b64_tr_b16 %s, v7 offset:%d' % (vr(O + 2 + 4 * u, 2), 32 * u))
        m = a.lgkm_mark()
        a('s_mul_i32 s%d, s%d, %d' % (ST + 5, S_J, 80 * 4096))
        a('s_lshl_b32 s%d, s%d, 7' % (ST + 6, S_Q))
        a('s_sub_u32 s%d, s%d, s%d' % (ST + 5, ST + 5, ST + 6))
        a('s_lshl_b32 s%d, s%d, 6' % (ST + 6, ST))
        a('s_add_u32 s%d, s%d, s%d' % (ST + 5, ST + 5, ST + 6))
        a('s_add_u32 s%d, s%d, %d' % (ST + 5, ST + 5, LY.KVT + 2 * 1984))
        a('v_lshlrev_b32 v8, 12, v2')
        a('v_lshl_add_u32 v8, v3, 4, v8')
        a('s_mul_i32 s%d, s%d, 48' % (ST + 6, S_J))
        a('s_lshl_b32 s%d, s%d, 1' % (ST + 7, S_Q))
        a('s_add_u32 s%d, s%d, s%d' % (ST + 6, ST + 6, ST + 7))
        a('s_add_u32 s%d, s%d, s%d' % (ST + 6, ST + 6, ST))
        a('s_mul_i32 s%d, s%d, 5120' % (ST + 6, ST + 6))
        a('s_add_u32 s%d, s%d, 0x%x' % (ST + 6, ST + 6, LY.W2T))
        a('v_lshlrev_b32 v9, 4, v1')
        a('s_cmp_ge_u32 s%d, 2' % S_W)
        a('s_cselect_b32 s%d, s%d, s%d' % (ST + 5, ST + 6, ST + 5))
        a('s_cselect_b64 vcc, -1, 0')
        a('v_cndmask_b32 v8, v8, v9, vcc')
        a('s_cselect_b32 s%d, s%d, 0' % (ST + 7, S_Q))
        a('s_cmp_ge_u32 s%d, 24' % (ST + 7))
        a.wait_lgkm(m)
        a('s_cbranch_scc1 %s' % L_skip)
        cB = a.vm_issued
        for u in range(5):
            a('buffer_store_dwordx4 %s, v8, s[%d:%d], s%d offen%s' % (vr(O + 4 * u, 4), R_WS, R_WS + 3, ST + 5, SCS))
            if u < 4:
                a('s_add_u32 s%d, s%d, s%d' % (ST + 5, ST + 5, ST + 4))
        a.label(L_skip)
        a('s_nop 1')
        a.vm_issued = cB
        self.m_st = cB

RB = 20480
SLOT = 28672
NSLOT = 5
class G1:
    VX, VW, VB = 16, 20, 24
    ACC, BIAS, BRAW = 36, 84, 108
    AF, BF = 192, 240
    SX, SWO = 96, 97

    def setup(self, a):
        a('v_lshrrev_b32 v2, 3, v1')
        a('v_and_b32 v3, 7, v1')
        a('s_lshl_b32 s%d, s%d, 7' % (ST, S_R))
        a('s_lshl_b32 s%d, s%d, 5' % (ST + 1, S_W))
        a('s_add_u32 s%d, s%d, s%d' % (ST, ST, ST + 1))
        a('s_mul_i32 s%d, s%d, 1280' % (ST, ST))
        for i in range(2):
            a('v_add_u32 v4, %d, v2' % (8 * i))
            a('v_bfe_u32 v5, v4, 1, 3')
            a('v_xor_b32 v5, v5, v3')
            a('v_mul_u32_u24 v4, 1280, v4')
            a('v_lshl_add_u32 v4, v5, 4, v4')
            a('v_add_u32 v4, s%d, v4' % ST)
            if i == 0: a('v_mov_b32 v%d, v4' % (self.VX))
            else: a('v_subrev_u32 v%d, %d, v4' % (self.VX + i, 1024 * i))
            a('v_add_u32 v%d, %d, v4' % (self.VX + i + 2, 16 * 1280 - 1024 * (i + 2)))
        a('s_mul_i32 s%d, s%d, %d' % (ST, S_W, 16 * 3072))
        a('s_mul_i32 s%d, s%d, 192' % (ST + 1, S_CB))
        a('s_add_u32 s%d, s%d, s%d' % (ST, ST, ST + 1))
        for i in range(3):
            a('v_add_u32 v4, %d, v1' % (64 * i))
            a('v_mul_u32_u24 v5, 5462, v4')
            a('v_lshrrev_b32 v5, 16, v5')
            a('v_mul_u32_u24 v6, 12, v5')
            a('v_sub_u32 v6, v4, v6')
            a('v_bfe_u32 v7, v5, 3, 1')
            a('v_lshlrev_b32 v7, 1, v7')
            a('v_sub_u32 v6, v6, v7')
            a('v_add_u32 v7, 12, v6')
            a('v_min_u32 v6, v6, v7')
            a('v_mul_u32_u24 v5, 3072, v5')
            a('v_lshl_add_u32 v5, v6, 4, v5')
            a('v_add_u32 v5, s%d, v5' % ST)
            a('v_subrev_u32 v%d, %d, v5' % (self.VW + i, 1024 * i))
        a('s_lshl_b32 s%d, s15, 7' % self.SX)
        a('s_mul_i32 s%d, s15, %d' % (self.SWO, 64 * 3072))
        a('s_lshl_b32 s98, s%d, 12' % S_W)
        a('s_mul_i32 s99, s%d, 3072' % S_W)
        a('s_add_u32 s99, s99, 16384')
        self.marks = {}

    def dma_items(self, stage):
        slot = RB + SLOT * (stage % NSLOT)
        L = []
        def first(a):
            a('s_add_u32 m0, s98, %d' % slot)
            a('buffer_load_dwordx4 v%d, s[%d:%d], s%d offen lds' % (self.VX, R_X, R_X + 3, self.SX))
        L.append(first)
        for i in range(1, 4):
            L.append('buffer_load_dwordx4 v%d, s[%d:%d], s%d offen offset:%d lds' % (self.VX + i, R_X, R_X + 3, self.SX, 1024 * i))
        def mid(a):
            a('s_add_u32 m0, s99, %d' % slot)
            a('s_add_u32 s%d, s%d, 128' % (self.SX, self.SX))
            a('buffer_load_dwordx4 v%d, s[%d:%d], s%d offen lds' % (self.VW, R_W1, R_W1 + 3, self.SWO))
        L.append(mid)
        L.append('buffer_load_dwordx4 v%d, s[%d:%d], s%d offen offset:1024 lds' % (self.VW + 1, R_W1, R_W1 + 3, self.SWO))
        def last(a):
            a('buffer_load_dwordx4 v%d, s[%d:%d], s%d offen offset:2048 lds' % (self.VW + 2, R_W1, R_W1 + 3, self.SWO))
            self.marks[stage] = a.vm_mark()
            a('s_add_u32 s%d, s%d, %d' % (self.SWO, self.SWO, 64 * 3072))
            a('s_cmp_eq_u32 s%d, 1280' % self.SX)
            a('s_cmov_b32 s%d, 0' % self.SX)
            a('s_cmov_b32 s%d, 0' % self.SWO)
        L.append(last)
        return L

    def dma(self, a, stage):
        for x in self.dma_items(stage):
            do(a, x)

    def bias_load(self, a):
        a('v_lshrrev_b32 v3, 4, v1')
        a('s_mul_i32 s%d, s%d, 192' % (ST, S_CB))
        a('v_lshlrev_b32 v4, 3, v3')
        a('v_add_u32 v4, s%d, v4' % ST)
        for ft in range(6):
            a('global_load_dwordx2 %s, v4, s[%d:%d] offset:%d' % (vr(self.BRAW + 2 * ft, 2), P_B1, P_B1 + 1, 32 * ft))
        self.m_bias = a.vm_mark()

    def setup2(self, a):
        a('v_lshrrev_b32 v3, 4, v1')
        a('v_and_b32 v2, 15, v1')
        a('v_lshrrev_b32 v4, 1, v2')
        a('v_xor_b32 v4, v4, v3')
        a('v_lshlrev_b32 v4, 4, v4')
        a('v_lshl_add_u32 v4, v2, 7, v4')
        a('v_add_u32 v4, s98, v4')
        a('v_xor_b32 v5, 64, v4')
        a('v_lshrrev_b32 v6, 2, v2')
        a('v_lshl_add_u32 v6, v3, 3, v6')
        a('v_mul_u32_u24 v6, 192, v6')
        a('v_and_b32 v7, 3, v1')
        a('v_lshl_add_u32 v6, v7, 3, v6')
        a('v_and_b32 v7, 1, v3')
        a('v_lshl_add_u32 v6, v7, 5, v6')
        a('v_mul_u32_u24 v7, 192, v7')
        a('v_sub_u32 v7, v6, v7')
        for grp in range(3):
            off = RB + 2 * SLOT * grp
            a('v_add_u32 v%d, %d, v4' % (self.VB + 4 * grp, off))
            a('v_add_u32 v%d, %d, v5' % (self.VB + 4 * grp + 1, off))
            a('v_add_u32 v%d, %d, v6' % (self.VB + 4 * grp + 2, off + 16384))
            a('v_add_u32 v%d, %d, v7' % (self.VB + 4 * grp + 3, off + 16384))

    def unpack_bias(self, a):
        a.wait_vm(self.m_bias)
        for ft in range(6):
            for d in range(2):
                unpack(a, self.BIAS + 4 * ft + 2 * d, self.BIAS + 4 * ft + 2 * d + 1, self.BRAW + 2 * ft + d)

    def reads(self, stage, kk):
        slot = stage % NSLOT
        grp, so = slot // 2, (slot % 2) * SLOT
        L = []
        for st in range(2):
            L.append('ds_read_b128 %s, v%d offset:%d' % (ar(self.BF + 8 * kk + 4 * st, 4), self.VB + 4 * grp + kk, so + 2048 * st))
        for ft in range(6):
            base = self.VB + 4 * grp + (3 if ft == 5 else 2)
            for h in range(2):
                L.append('ds_read_b64_tr_b16 %s, v%d offset:%d' % (ar(self.AF + 24 * kk + 4 * ft + 2 * h, 2), base, so + 6144 * kk + 768 * h + 32 * ft))
        return L

    def mfma(self, kk, ft, st, first):
        acc = vr(self.ACC + 8 * ft + 4 * st, 4)
        c = vr(self.BIAS + 4 * ft, 4) if first else acc
        return 'v_mfma_f32_16x16x32_bf16 %s, %s, %s, %s' % (acc, ar(self.AF + 24 * kk + 4 * ft, 4), ar(self.BF + 8 * kk + 4 * st, 4), c)

    def block(self, a, kk, first, rmarks, nxt, bg):
        newmarks = []
        ni = 0
        for ft in range(6):
            if rmarks is not None:
                a.wait_lgkm(rmarks[2 + 2 * ft + 1])
            for st in range(2):
                a(self.mfma(kk, ft, st, first))
                if ni < len(nxt):
                    for _ in range(2):
                        a(nxt[ni]); newmarks.append(a.lgkm_mark()); ni += 1
                elif bg is not None:
                    bg.emit(a, 1)
        return newmarks

    def main(self, a, pre, post, mid, bgs):
        lead = OPT['lead']
        pm = None
        for i in range(10):
            if pm is not None:
                a('s_waitcnt lgkmcnt(0)')
            a.wait_vm(max(self.marks[i], pre[i]() if i in pre else 0))
            a('s_barrier')
            bg = BG()
            if i + lead <= 9 and (i + lead) not in self.marks:
                bg.add(self.dma_items(i + lead))
            if i in bgs:
                bg.add(bgs[i])
            rd = self.reads(i, 0)
            if pm is None:
                m0 = []
                for x in rd:
                    a(x); m0.append(a.lgkm_mark())
                bg.emit(a, 4)
            else:
                m0 = self.block(a, 1, False, None, rd, bg)
            if i in post:
                post[i](a)
            pm = self.block(a, 0, i == 0, m0, self.reads(i, 1), bg)
            bg.drain(a)
            if i in mid:
                mid[i](a)
        self.block(a, 1, False, pm, [], bgs.get(10))

    def epilogue(self, a, bg, per):
        C1, C2, ONE, T, O = 84, 86, 88, 184, (90 if OPT.get('late_p') else 216)
        c1 = -2.0 * 1.4426950408889634 * 0.7978845608028654
        for r, val in ((C1, c1), (C2, c1 * 0.044715), (ONE, 1.0)):
            a('v_mov_b32 v%d, %s' % (r, f32hex(val)))
            a('v_mov_b32 v%d, %s' % (r + 1, f32hex(val)))
        a('s_lshl_b32 s%d, s%d, 3' % (ST, S_R))
        a('s_lshl_b32 s%d, s%d, 1' % (ST + 1, S_W))
        a('s_add_u32 s%d, s%d, s%d' % (ST, ST, ST + 1))
        a('s_mul_i32 s%d, s%d, 48' % (ST, ST))
        a('s_mul_i32 s%d, s%d, 3' % (ST + 1, S_CB))
        a('s_add_u32 s%d, s%d, s%d' % (ST, ST, ST + 1))
        a('s_lshl_b32 s%d, s%d, 10' % (ST, ST))
        a('s_add_u32 s%d, s%d, 0x%x' % (ST, ST, LY.HF))
        a('s_add_u32 s%d, s%d, %d' % (ST + 1, ST, 48 * 1024))
        a('v_lshlrev_b32 v2, 4, v1')
        k = 0
        for st in range(2):
            for J in range(3):
                o = O + 4 * (k % 4); t0 = T + 16 * (k % 2); k += 1
                prs = [self.ACC + 8 * (2 * J + h) + 4 * st + 2 * p for h in range(2) for p in range(2)]
                for n, x in enumerate(prs):
                    a('v_pk_mul_f32 %s, %s, %s' % (vr(t0 + 2 * n, 2), vr(x, 2), vr(x, 2)))
                for n, x in enumerate(prs):
                    a('v_pk_fma_f32 %s, %s, %s, %s' % (vr(t0 + 2 * n, 2), vr(t0 + 2 * n, 2), vr(C2, 2), vr(C1, 2)))
                for n, x in enumerate(prs):
                    a('v_pk_mul_f32 %s, %s, %s' % (vr(t0 + 2 * n, 2), vr(t0 + 2 * n, 2), vr(x, 2)))
                bg.emit(a, (per + 2) // 3)
                for n in range(8):
                    a('v_exp_f32 v%d, v%d' % (t0 + n, t0 + n))
                for n, x in enumerate(prs):
                    a('v_pk_add_f32 %s, %s, %s' % (vr(t0 + 2 * n, 2), vr(t0 + 2 * n, 2), vr(ONE, 2)))
                bg.emit(a, (per + 1) // 3)
                for n in range(8):
                    a('v_rcp_f32 v%d, v%d' % (t0 + n, t0 + n))
                for n, x in enumerate(prs):
                    a('v_pk_mul_f32 %s, %s, %s' % (vr(t0 + 2 * n, 2), vr(t0 + 2 * n, 2), vr(x, 2)))
                bg.emit(a, per // 3)
                for n in range(4):
                    a('v_cvt_pk_bf16_f32 v%d, v%d, v%d' % (o + n, t0 + 2 * n, t0 + 2 * n + 1))
                a('buffer_store_dwordx4 %s, v2, s[%d:%d], s%d offen offset:%d%s' % (vr(o, 4), R_WS, R_WS + 3, ST + st, 1024 * J, SCS))

PP = 4160
QO0 = 16656
QO1 = QO0 + 4640
CS = 25856
CB = 0
TOP = [7, 6, 5, 2]
BOT = [4, 3, 1, 0]

class Conv:
    VADR = 16
    FR, ACC = 32, 112
    PRAW, QRAW, PT = 220, 140, 180
    SCH = 90
    S_D = 93

    def channels(self, a):
        a('s_mul_i32 s%d, s%d, 80' % (ST, S_J))
        a('s_lshr_b32 s%d, s%d, 1' % (ST + 1, S_Q))
        a('s_mul_i32 s%d, s%d, 5' % (ST + 1, ST + 1))
        a('s_add_u32 s%d, s%d, s%d' % (ST, ST, ST + 1))
        a('s_and_b32 s%d, s%d, 1' % (ST + 1, S_Q))
        a('s_mul_i32 s%d, s%d, 3' % (ST + 1, ST + 1))
        a('s_add_u32 s%d, s%d, s%d' % (self.SCH, ST, ST + 1))
        a('s_add_u32 s%d, s%d, 1' % (self.SCH + 1, self.SCH))
        a('s_add_u32 s%d, s%d, 2' % (self.SCH + 2, ST))
        if OPT.get('d_early'):
            a('s_cmp_eq_u32 s%d, 1' % S_W)
            a('s_cselect_b32 s%d, s%d, s%d' % (ST + 3, self.SCH + 1, self.SCH))
            a('s_cmp_eq_u32 s%d, 2' % S_W)
            a('s_cselect_b32 s%d, s%d, s%d' % (ST + 3, self.SCH + 2, ST + 3))
            for k, ch in enumerate((ST + 3, self.SCH + 1)):
                a('s_lshr_b32 s%d, s%d, 1' % (ST, ch))
                a('s_lshl_b32 s%d, s%d, 2' % (ST, ST))
                a('s_load_dword s%d, s[%d:%d], s%d' % (self.S_D + k, P_D, P_D + 1, ST))

    def load_p(self, a):
        a('v_lshlrev_b32 v2, 4, v0')
        a('v_subrev_u32 v3, 8, v2')
        a('s_mov_b32 s%d, 4096' % (R_HK + 2))
        a('s_mov_b32 s%d, 0x20000' % (R_HK + 3))
        for sl in range(3):
            a('s_lshl_b32 s%d, s%d, 12' % (ST, self.SCH + sl))
            a('s_add_u32 s%d, s%d, s%d' % (R_HK, P_HK, ST))
            a('s_addc_u32 s%d, s%d, 0' % (R_HK + 1, P_HK + 1))
            a('s_and_b32 s%d, s%d, 0xffff' % (R_HK + 1, R_HK + 1))
            a('buffer_load_dwordx4 %s, v2, s[%d:%d], 0 offen%s' % (vr(self.PRAW + 6 * sl + 2, 4), R_HK, R_HK + 3, NT()))
            a('buffer_load_dwordx2 %s, v3, s[%d:%d], 0 offen%s' % (vr(self.PRAW + 6 * sl, 2), R_HK, R_HK + 3, NT()))
        self.m_p = a.vm_mark()

    def load_q(self, a):
        a('v_lshlrev_b32 v2, 4, v0')
        for sl in range(3):
            a('s_lshl_b32 s%d, s%d, 12' % (ST + sl, self.SCH + sl))
            if LY.KVT:
                a('s_add_u32 s%d, s%d, 0x%x' % (ST + sl, ST + sl, LY.KVT))
            a('buffer_load_dwordx4 %s, v2, s[%d:%d], s%d offen%s' % (vr(self.QRAW + 4 * sl, 4), R_WS, R_WS + 3, ST + sl, SCL()))
        self.m_q = a.vm_mark()

    def zero_fill(self, a):
        L = a.newlabel('L_zf')
        a('s_cmp_ge_u32 s%d, 3' % S_W)
        a('s_cbranch_scc1 %s' % L)
        c = a.lgkm_issued
        for i in range(4):
            a('v_mov_b32 v%d, 0' % (8 + i))
        a('s_mul_i32 s%d, s%d, %d' % (ST, S_W, CS))
        a('v_lshlrev_b32 v2, 4, v1')
        a('v_add_u32 v2, s%d, v2' % ST)
        a('v_bfe_u32 v3, v1, 2, 2')
        a('v_mul_u32_u24 v3, %d, v3' % PP)
        a('v_and_b32 v4, 3, v1')
        a('v_lshl_add_u32 v3, v4, 4, v3')
        a('v_add_u32 v3, s%d, v3' % ST)
        a('v_cmp_gt_u32 vcc, 29, v1')
        a('s_and_saveexec_b64 s[%d:%d], vcc' % (ST + 2, ST + 3))
        a('ds_write_b128 v2, v[8:11] offset:%d' % (CB + QO0 + 4080))
        a('ds_write_b128 v2, v[8:11] offset:%d' % (CB + QO1 + 4096))
        a('ds_write_b128 v3, v[8:11] offset:%d' % CB)
        a('v_and_b32 v4, 3, v1')
        a('v_lshlrev_b32 v4, 4, v4')
        a('v_add_u32 v4, %d, v4' % (3 * CS))
        a('ds_write_b128 v4, v[8:11]')
        a('s_mov_b64 exec, s[%d:%d]' % (ST + 2, ST + 3))
        a.lgkm_issued = c
        a.label(L)

    def build_p(self, a):
        a('v_lshlrev_b32 v2, 4, v0')
        a.wait_vm(self.m_p)
        for sl in range(3):
            D = self.PRAW + 6 * sl
            T = self.PT + 12 * sl
            base = CB + CS * sl + 48
            assert base + 3 * PP <= 65535
            for k in range(4):
                a('v_alignbit_b32 v%d, v%d, v%d, 16' % (T + k, D + k + 1, D + k))
            a('ds_write_b128 v2, %s offset:%d' % (vr(D + 2, 4), base + 3 * PP))
            for k in range(4):
                a('v_mov_b32 v%d, v%d' % (T + 4 + k, D + 1 + k))
            a('ds_write_b128 v2, %s offset:%d' % (vr(T, 4), base))
            for k in range(3):
                a('v_mov_b32 v%d, v%d' % (T + 8 + k, T + 1 + k))
            a('v_alignbit_b32 v%d, v%d, v%d, 16' % (T + 11, D + 5, D + 4))
            a('ds_write_b128 v2, %s offset:%d' % (vr(T + 4, 4), base + PP))
            a('ds_write_b128 v2, %s offset:%d' % (vr(T + 8, 4), base + 2 * PP))

    def build_q(self, a):
        a('v_lshlrev_b32 v2, 4, v0')
        for sl in range(3):
            a('v_add_u32 v%d, %d, v2' % (4 + sl, CB + CS * sl + QO0 - 8))
        a.wait_vm(self.m_q)
        for sl in range(3):
            Q = self.QRAW + 4 * sl
            a('ds_write_b128 v%d, %s offset:%d' % (4 + sl, vr(Q, 4), QO1 - QO0 + 8))
            a('ds_write2_b64 v%d, %s, %s offset0:0 offset1:1' % (4 + sl, vr(Q, 2), vr(Q + 2, 2)))

    def task_setup(self, a):
        a('v_and_b32 v2, 15, v1')
        a('v_lshrrev_b32 v3, 4, v1')
        a('v_and_b32 v4, 3, v1')
        a('v_lshrrev_b32 v5, 2, v2')
        a('v_add_u32 v5, v5, v3')
        a('v_mul_u32_u24 v4, %d, v4' % PP)
        a('v_lshl_add_u32 v28, v5, 4, v4')
        a('v_and_b32 v4, 1, v1')
        a('v_lshrrev_b32 v5, 1, v2')
        a('v_lshlrev_b32 v5, 6, v5')
        a('v_lshlrev_b32 v6, 4, v3')
        a('v_mul_u32_u24 v7, 4640, v4')
        a('v_add_u32 v7, v7, v6')
        a('v_sub_u32 v7, v7, v5')
        a('v_add_u32 v29, %d, v7' % (QO0 + 448))
        a('v_add_u32 v5, v5, v6')
        a('v_lshl_add_u32 v31, v4, 3, v5')
        a('v_sub_u32 v30, %d, v31' % (QO1 + 504))
        a('s_cmp_eq_u32 s%d, 3' % S_W)
        a('s_cselect_b32 s%d, 0, s%d' % (ST + 2, S_W))
        a('s_cmp_eq_u32 s%d, 1' % (ST + 2))
        a('s_cselect_b32 s%d, s%d, s%d' % (ST + 3, self.SCH + 1, self.SCH))
        a('s_cmp_eq_u32 s%d, 2' % (ST + 2))
        a('s_cselect_b32 s%d, s%d, s%d' % (ST + 3, self.SCH + 2, ST + 3))
        a('s_mov_b32 s%d, s%d' % (ST + 4, self.SCH + 1))
        for k in range(2):
            ch = ST + 3 + k
            if not OPT.get('d_early'):
                a('s_lshr_b32 s%d, s%d, 1' % (ST, ch))
                a('s_lshl_b32 s%d, s%d, 2' % (ST, ST))
                a('s_load_dword s%d, s[%d:%d], s%d' % (self.S_D + k, P_D, P_D + 1, ST))
            if k == 0:
                a('s_mul_i32 s%d, s%d, %d' % (ST, ST + 2, CS))
                if CB: a('s_add_u32 s%d, s%d, %d' % (ST, ST, CB))
            else:
                a('s_mov_b32 s%d, %d' % (ST, CB + CS))
            for n in range(3):
                a('v_add_u32 v%d, s%d, v%d' % (self.VADR + 4 * k + n, ST, 28 + n))
            a('s_lshl_b32 s%d, s%d, 12' % (ST + 1, ch))
            a('s_add_u32 s%d, s%d, 0x%x' % (ST + 1, ST + 1, LY.Y2T))
            a('v_add_u32 v%d, s%d, v31' % (self.VADR + 4 * k + 3, ST + 1))
        if not OPT.get('d_early'):
            a('s_waitcnt lgkmcnt(0)')
        for k in range(2):
            a('s_lshl_b32 s%d, s%d, 16' % (ST, self.S_D + k))
            a('s_and_b32 s%d, s%d, 0xffff0000' % (self.S_D + k, self.S_D + k))
            a('s_bitcmp0_b32 s%d, 0' % (ST + 3 + k))
            a('s_cselect_b32 s%d, s%d, s%d' % (self.S_D + k, ST, self.S_D + k))

    def task(self, a, subs, hooks, bg, bg_every):
        freg = {}
        nr = self.FR
        for k, tiles in subs:
            n = max(tiles) + 1
            for p in range(n):
                freg[(k, 'A', p)] = nr; nr += 4
            for p in range(n):
                freg[(k, 'B', p)] = nr; nr += 4
        assert nr <= self.ACC
        areg = {}
        na = self.ACC
        for k, tiles in subs:
            for t in tiles:
                areg[(k, t)] = na; na += 4
        order = []
        maxp = max(max(t) for _, t in subs)
        for p in range(maxp + 1):
            for k, tiles in subs:
                for t in tiles:
                    if t >= p:
                        order.append((k, t, p))
        def rd(key, r):
            k, ab, p = key
            if ab == 'A':
                return 'ds_read_b128 %s, v%d offset:%d' % (vr(freg[key], 4), self.VADR + 4 * k, 512 * p + 64 * r)
            return 'ds_read_b128 %s, v%d offset:%d' % (vr(freg[key], 4), self.VADR + 4 * k + 1, 512 * (7 - p) + 64 * r)
        uses = [((k, 'A', p), (k, 'B', t - p)) for k, t, p in order]
        last = {}; first = {}
        for i, us in enumerate(uses):
            for u in us:
                last[u] = i; first.setdefault(u, i)
        mark = {}
        for key in sorted(first, key=lambda u: first[u]):
            a(rd(key, 0)); mark[key] = a.lgkm_mark()
        cnt = 0
        umark = {}
        UT = 144 - 0
        for r in range(8):
            if r in hooks:
                hooks[r](a)
            waited = -1
            seen = set()
            for i, (k, t, p) in enumerate(order):
                need = max(mark[u] for u in uses[i])
                if need > waited:
                    a.wait_lgkm(need); waited = need
                acc = vr(areg[(k, t)], 4)
                c = acc if (r > 0 or (k, t) in seen) else '0'
                seen.add((k, t))
                a('v_mfma_f32_16x16x32_bf16 %s, %s, %s, %s' % (acc, vr(freg[uses[i][0]], 4), vr(freg[uses[i][1]], 4), c))
                newm = {}
                for u in uses[i]:
                    if last[u] == i and r < 7:
                        a(rd(u, r + 1)); newm[u] = a.lgkm_mark()
                    elif last[u] == i and r == 7 and u[1] == 'A' and u[2] < len(dict(subs)[u[0]]):
                        tt = dict(subs)[u[0]][u[2]]
                        a('ds_read_b64 %s, v%d offset:%d' % (vr(freg[u], 2), self.VADR + 4 * u[0] + 2, 512 * (7 - tt)))
                        umark[(u[0], tt)] = (freg[u], a.lgkm_mark())
                for u, m in newm.items():
                    mark[(u, 'next')] = m
                cnt += 1
                if cnt % bg_every == 0:
                    bg.emit(a, 1)
            for u in list(first):
                if (u, 'next') in mark:
                    mark[u] = mark.pop((u, 'next'))
        X = 2
        for k, tiles in subs:
            for t in sorted(tiles):
                U, m = umark[(k, t)]
                A = areg[(k, t)]
                a.wait_lgkm(m)
                X = 4 if X == 8 else 8
                unpack(a, X + 3, X + 2, U)
                unpack(a, X + 1, X + 0, U + 1)
                for n in range(4):
                    a('v_fma_f32 v%d, v%d, s%d, v%d' % (X + n, X + n, self.S_D + k, A + n))
                a('v_cvt_pk_bf16_f32 v%d, v%d, v%d' % (U, X, X + 1))
                a('v_cvt_pk_bf16_f32 v%d, v%d, v%d' % (U + 1, X + 2, X + 3))
                a('buffer_store_dwordx2 %s, v%d, s[%d:%d], 0 offen offset:%d%s' % (vr(U, 2), self.VADR + 4 * k + 3, R_WS, R_WS + 3, 512 * t, SCS))

    def run(self, a, hooks, bg, bg_every):
        L_b1 = a.newlabel('L_bot1'); L_b2 = a.newlabel('L_bot2'); L_done = a.newlabel('L_cdone')
        a('s_cmp_eq_u32 s%d, 3' % S_W)
        a('s_cbranch_scc1 %s' % L_b2)
        a('s_and_b32 s%d, s%d, 1' % (ST + 4, S_Q))
        a('s_add_u32 s%d, s%d, s%d' % (ST + 4, ST + 4, S_W))
        a('s_cmp_ge_u32 s%d, 3' % (ST + 4))
        a('s_cbranch_scc1 %s' % L_b1)
        c0 = a.vm_issued; b0 = bg.save(); n0 = len(bg.items)
        ends = []; bgi = []
        for lab, subs, every in ((None, [(0, TOP)], bg_every), (L_b1, [(0, BOT)], max(1, bg_every // 2)), (L_b2, [(0, BOT), (1, BOT)], bg_every)):
            a.vm_issued = c0; bg.restore(b0); del bg.items[n0:]
            if lab:
                a.label(lab)
                a('s_nop 1')
            self._bgdrain = True
            self.task_wrapper(a, subs, hooks, bg, every)
            ends.append(a.vm_issued)
            bgi.append((bg.i, len(bg.items)))
            if lab != L_b2:
                a('s_branch %s' % L_done)
        a.label(L_done)
        assert len(set(bgi)) == 1, bgi
        assert ends[0] == ends[1] == ends[2] - 4, ends
        a.vm_issued = min(ends)

    def task_wrapper(self, a, subs, hooks, bg, every):
        self.task(a, subs, hooks, bg, every)

RED = 81920
YL = 143360
class G2:
    ACC, VL = 16, 60
    HB = [144, 192, 64, 144]
    QR, B2R, GR = 112, 122, 132
    B2F, Y, YT = 192, 212, 224
    VLW = 242

    def w2_items(self):
        L = []
        def init(a):
            a('v_lshlrev_b32 v%d, 4, v1' % self.VLW)
            a('s_mul_i32 s101, s%d, 48' % S_J)
            a('s_mul_i32 s100, s%d, 12' % S_W)
            a('s_add_u32 s101, s101, s100')
            a('s_mul_i32 s101, s101, 5120')
            a('s_add_u32 s101, s101, 0x%x' % LY.W2T)
        for n in range(60):
            def f(a, n=n):
                if n == 0: init(a)
                a('buffer_load_dwordx4 %s, v%d, s[%d:%d], s101 offen offset:%d%s' % (ar(4 * n, 4), self.VLW, R_WS, R_WS + 3, 1024 * (n % 4), SCL()))
                if n % 4 == 3:
                    a('s_add_u32 s101, s101, 4096')
                self.m_w2 = a.vm_mark()
            L.append(f)
        return L

    def h_items(self, it):
        L = []
        for ks in range(12):
            def f(a, ks=ks):
                if ks == 0:
                    a('s_add_u32 s100, s%d, %d' % (S_W, 1 + it))
                    a('s_and_b32 s100, s100, 3')
                    a('s_lshl_b32 s95, s%d, 2' % S_Q)
                    a('s_add_u32 s95, s95, s100')
                    a('s_mul_i32 s95, s95, 48')
                    a('s_mul_i32 s100, s%d, 12' % S_W)
                    a('s_add_u32 s95, s95, s100')
                    a('s_lshl_b32 s95, s95, 10')
                    a('s_add_u32 s95, s95, 0x%x' % LY.HF)
                a('buffer_load_dwordx4 %s, v%d, s[%d:%d], s95 offen offset:%d%s' % (vr(self.HB[it] + 4 * ks, 4), self.VLW, R_WS, R_WS + 3, 1024 * (ks % 4), SCL()))
                self.m_h[(it, ks)] = a.vm_mark()
                if ks % 4 == 3 and ks < 11:
                    a('s_add_u32 s95, s95, 4096')
            L.append(f)
        return L

    def epi_addr(self, a):
        a('v_lshlrev_b32 v%d, 4, v1' % self.VL)
        a('v_and_b32 v10, 15, v1')
        a('v_lshrrev_b32 v11, 4, v1')
        a('s_lshl_b32 s%d, s%d, 6' % (ST, S_Q))
        a('s_lshl_b32 s%d, s%d, 4' % (ST + 1, S_W))
        a('s_add_u32 s%d, s%d, s%d' % (ST, ST, ST + 1))
        a('s_mul_i32 s%d, s%d, 160' % (ST + 1, S_J))
        a('v_add_u32 v10, s%d, v10' % ST)
        a('v_lshlrev_b32 v4, 3, v11')
        a('v_add_u32 v4, s%d, v4' % (ST + 1))
        a('v_mul_u32_u24 v3, 1280, v10')
        a('v_add_u32 v3, v3, v4')
        a('v_lshlrev_b32 v5, 2, v10')
        a('v_add_u32 v5, 0x%x, v5' % LY.G)
        a('s_mul_i32 s%d, s%d, %d' % (ST + 1, S_J, 80 * 4096))
        a('s_lshl_b32 s%d, s%d, 1' % (ST, ST))
        a('s_add_u32 s%d, s%d, s%d' % (ST, ST, ST + 1))
        a('s_add_u32 s%d, s%d, 0x%x' % (ST, ST, LY.Y2T))
        a('v_lshrrev_b32 v6, 1, v1')
        a('v_lshlrev_b32 v6, 12, v6')
        a('v_and_b32 v10, 1, v1')
        a('v_lshl_add_u32 v6, v10, 4, v6')
        a('v_add_u32 v6, s%d, v6' % ST)
        a('s_mul_i32 s%d, s%d, 2560' % (ST, S_W))
        a('s_add_u32 s%d, s%d, %d' % (ST, ST, YL))
        a('v_add_u32 v7, s%d, v%d' % (ST, self.VL))
        a('v_lshlrev_b32 v8, 3, v1')
        a('v_add_u32 v8, s%d, v8' % ST)
        for it in range(3):
            a('s_add_u32 s%d, s%d, %d' % (ST, S_W, 1 + it))
            a('s_and_b32 s%d, s%d, 3' % (ST, ST))
            a('s_mul_i32 s%d, s%d, 15360' % (ST, ST))
            a('s_add_u32 s%d, s%d, %d' % (ST, ST, RED + 5120 * it))
            a('v_add_u32 v%d, s%d, v%d' % (12 + it, ST, self.VL))
        a('s_mul_i32 s%d, s%d, 15360' % (ST, S_W))
        a('s_add_u32 s%d, s%d, %d' % (ST, ST, RED))
        a('v_add_u32 v15, s%d, v%d' % (ST, self.VL))

    def epi_input_items(self):
        L = []
        for dt in range(5):
            L.append('global_load_dwordx2 %s, v4, s[%d:%d] offset:%d' % (vr(self.B2R + 2 * dt, 2), P_B2, P_B2 + 1, 32 * dt))
        for dt in range(5):
            L.append('buffer_load_dwordx2 %s, v3, s[%d:%d], 0 offen offset:%d' % (vr(self.QR + 2 * dt, 2), R_X, R_X + 3, 32 * dt))
        def f(a):
            a('buffer_load_dword v%d, v5, s[%d:%d], 0 offen%s' % (self.GR, R_WS, R_WS + 3, SCL()))
            self.m_in = a.vm_mark()
        L.append(f)
        return L

    def y_loads(self, a):
        Y = self.Y
        a('s_mov_b32 s%d, %d' % (ST, 32 * 4096))
        a('s_mov_b32 s%d, %d' % (ST + 1, 64 * 4096))
        a('buffer_load_dwordx4 %s, v6, s[%d:%d], 0 offen%s' % (vr(Y, 4), R_WS, R_WS + 3, SCL()))
        a('buffer_load_dwordx4 %s, v6, s[%d:%d], s%d offen%s' % (vr(Y + 4, 4), R_WS, R_WS + 3, ST, SCL()))
        a('s_mov_b64 exec, 0xffffffff')
        a('buffer_load_dwordx4 %s, v6, s[%d:%d], s%d offen%s' % (vr(Y + 8, 4), R_WS, R_WS + 3, ST + 1, SCL()))
        a('s_mov_b64 exec, -1')
        self.m_y = a.vm_mark()

    def y_stage(self, a):
        Y = self.Y
        a.wait_vm(self.m_y)
        a('ds_write_b128 v7, %s' % vr(Y, 4))
        a('ds_write_b128 v7, %s offset:1024' % vr(Y + 4, 4))
        a('s_mov_b64 exec, 0xffffffff')
        a('ds_write_b128 v7, %s offset:2048' % vr(Y + 8, 4))
        a('s_mov_b64 exec, -1')
        for dt in range(5):
            a('ds_read_b64_tr_b16 %s, v8 offset:%d' % (vr(self.YT + 2 * dt, 2), 512 * dt))

    def iteration(self, a, it, fill, bg=None, bg_every=4):
        acc0 = self.ACC + 20 * (it % 2)
        fi = 0; cnt = 0
        for ks in range(12):
            while (it, ks) not in self.m_h:
                bg.emit(a, 1)
            a.wait_vm(max(self.m_h[(it, ks)], self.m_w2 if (it == 0 and ks == 0) else 0))
            for dt in range(5):
                acc = vr(acc0 + 4 * dt, 4)
                c = acc if ks > 0 else (vr(self.B2F + 4 * dt, 4) if it == 3 else '0')
                a('v_mfma_f32_16x16x32_bf16 %s, %s, %s, %s' % (acc, ar(4 * (5 * ks + dt), 4), vr(self.HB[it] + 4 * ks, 4), c))
                cnt += 1
                if bg is not None and cnt % bg_every == 0 and bg.left():
                    bg.emit(a, 1)
                elif ks >= 2 and fi < len(fill):
                    a(fill[fi]); fi += 1
        while fi < len(fill):
            a(fill[fi]); fi += 1

    def red_writes(self, it):
        acc0 = self.ACC + 20 * (it % 2)
        return ['ds_write_b128 v%d, %s offset:%d' % (12 + it, vr(acc0 + 4 * dt, 4), 1024 * dt) for dt in range(5)]

    def main(self, a, bg, after0, after1, after2):
        self.epi_addr(a)
        bg.add(self.h_items(2))
        bg.add(self.epi_input_items())
        self.iteration(a, 0, [], bg, 3)
        ts(a, 19)
        after0(a)
        bg.add(self.h_items(3))
        self.iteration(a, 1, self.red_writes(0), bg, 3)
        bg.drain(a)
        ts(a, 20)
        after1(a)
        self.iteration(a, 2, self.red_writes(1), bg)
        ts(a, 21)
        a.wait_vm(self.m_in)
        for dt in range(5):
            for d in range(2):
                unpack(a, self.B2F + 4 * dt + 2 * d, self.B2F + 4 * dt + 2 * d + 1, self.B2R + 2 * dt + d)
        after2(a)
        self.y_loads(a)
        G_, OM = 56, 58
        QF, YF, R = 64, 84, 144
        fl = self.red_writes(2)
        fl.append('v_sub_f32 v%d, 1.0, v%d' % (OM, self.GR))
        fl.append('v_mov_b32 v%d, v%d' % (G_, self.GR))
        fl.append('v_cvt_pk_bf16_f32 v%d, v%d, v%d' % (OM, OM, OM))
        fl.append('v_mov_b32 v%d, v%d' % (G_ + 1, self.GR))
        fl.append('v_lshlrev_b32 v%d, 16, v%d' % (OM, OM))
        for n in range(10):
            fl.append('v_lshlrev_b32 v%d, 16, v%d' % (QF + 2 * n, self.QR + n))
            fl.append('v_and_b32 v%d, 0xffff0000, v%d' % (QF + 2 * n + 1, self.QR + n))
        fl.append('v_mov_b32 v%d, v%d' % (OM + 1, OM))
        for n in range(20):
            fl.append('v_mul_f32 v%d, v%d, v%d' % (QF + n, QF + n, G_))
        self.iteration(a, 3, fl, bg)
        ts(a, 22)
        a('s_waitcnt lgkmcnt(0)')
        a('s_barrier')
        ts(a, 23)
        for n in range(15):
            a('ds_read_b128 %s, v15 offset:%d' % (vr(R + 4 * n, 4), 1024 * n))
        m0 = a.lgkm_mark()
        self.y_stage(a)
        my = a.lgkm_mark()
        acc0 = self.ACC + 20
        for sl in range(3):
            a.wait_lgkm(m0 - 10 + 5 * sl)
            for n in range(10):
                a('v_pk_add_f32 %s, %s, %s' % (vr(acc0 + 2 * n, 2), vr(acc0 + 2 * n, 2), vr(R + 20 * sl + 2 * n, 2)))
        for n in range(10):
            a('v_pk_mul_f32 %s, %s, %s' % (vr(acc0 + 2 * n, 2), vr(acc0 + 2 * n, 2), vr(OM, 2)))
        a.wait_lgkm(my)
        for dt in range(5):
            for d in range(2):
                n = 2 * dt + d
                unpack(a, YF + 2 * n, YF + 2 * n + 1, self.YT + n)
            for d in range(2):
                n = 2 * dt + d
                a('v_pk_fma_f32 %s, %s, %s, %s' % (vr(QF + 2 * n, 2), vr(QF + 2 * n, 2), vr(YF + 2 * n, 2), vr(acc0 + 2 * n, 2)))
            for d in range(2):
                n = 2 * dt + d
                a('v_cvt_pk_bf16_f32 v%d, v%d, v%d' % (self.QR + n, QF + 2 * n, QF + 2 * n + 1))
            a('buffer_store_dwordx2 %s, v3, s[%d:%d], 0 offen offset:%d' % (vr(self.QR + 2 * dt, 2), R_OUT, R_OUT + 3, 32 * dt))

LITE = False
def ts(a, idx, real=False):
    if not PROF or (LITE and not real):
        return
    a('%s s[12:13]' % ('s_memrealtime' if real else 's_memtime'))
    a('s_waitcnt lgkmcnt(0)')
    a('v_writelane_b32 v%d, s12, %d' % (V_TS, idx))
def ts_flush(a):
    if not PROF:
        return
    a('s_lshl_b32 s12, s2, 2')
    a('s_add_u32 s12, s12, s%d' % S_W)
    a('s_lshl_b32 s12, s12, 7')
    a('s_add_u32 s12, s12, 0x%x' % LY.TS)
    a('v_lshlrev_b32 v2, 2, v1')
    a('s_mov_b64 exec, 0xffffffff')
    a('buffer_store_dword v%d, v2, s[%d:%d], s12 offen' % (V_TS, R_WS, R_WS + 3))
    a('s_mov_b64 exec, -1')

SPIN_MAX = 20000
def token_publish(a):
    L = a.newlabel('L_tokp')
    if OPT.get('cas'):
        a('s_cmp_ge_u32 s2, 8')
        a('s_cbranch_scc1 %s' % L)
        a('s_cmp_lg_u32 s%d, 3' % S_W)
        a('s_cbranch_scc1 %s' % L)
        a('s_memrealtime s[12:13]')
        a('s_waitcnt lgkmcnt(0)')
        a('s_or_b32 s12, s12, 1')
        a('v_mov_b32 v4, s12')
        a('v_mov_b32 v5, s13')
        a('v_mov_b32 v6, 0')
        a('v_mov_b32 v7, 0')
        c = a.vm_issued
        a('s_mov_b64 exec, 1')
        a('global_atomic_cmpswap_x2 v6, v[4:7], s[%d:%d] sc1' % (P_DBG, P_DBG + 1))
        a('s_mov_b64 exec, -1')
        a('s_nop 1')
        a.vm_issued = c
        a.label(L)
        return
    a('s_add_u32 s12, s2, s%d' % S_W)
    a('s_cmp_lg_u32 s12, 0')
    a('s_cbranch_scc1 %s' % L)
    a('s_memrealtime s[12:13]')
    a('s_waitcnt lgkmcnt(0)')
    a('s_or_b32 s12, s12, 1')
    a('v_mov_b32 v2, s12')
    a('v_mov_b32 v3, s13')
    a('v_mov_b32 v4, 0')
    c = a.vm_issued
    a('s_mov_b64 exec, 1')
    a(('global_store_dwordx2 v4, v[2:3], s[%d:%d]%%s' % (P_DBG, P_DBG + 1)) % OPT['psc'])
    a('s_mov_b64 exec, -1')
    a.vm_issued = c
    a.label(L)
def token_load(a):
    a('v_mov_b32 v%d, 0' % V_PA)
    a(('global_load_dwordx2 %s, v%d, s[%d:%d]%%s' % (vr(V_TOK, 2), V_PA, P_DBG, P_DBG + 1)) % OPT['psc'])
    return a.vm_mark()
def token_check(a, mark):
    L = a.newlabel('L_tok'); Lok = a.newlabel('L_tokok')
    a.wait_vm(mark)
    a('s_mov_b32 s14, %d' % SPIN_MAX)
    a.label(L)
    a('v_readfirstlane_b32 s%d, v%d' % (TOK, V_TOK))
    a('v_readfirstlane_b32 s%d, v%d' % (TOK + 1, V_TOK + 1))
    a('s_cmp_lg_u32 s%d, 0' % TOK)
    a('s_cbranch_scc1 %s' % Lok)
    a('s_sub_u32 s14, s14, 1')
    a('s_cmp_eq_u32 s14, 0')
    a('s_cbranch_scc1 %s' % Lok)
    a('s_sleep 2')
    c = a.vm_issued
    a(('global_load_dwordx2 %s, v%d, s[%d:%d]%%s' % (vr(V_TOK, 2), V_PA, P_DBG, P_DBG + 1)) % OPT['psc'])
    a('s_waitcnt vmcnt(0)')
    a.vm_issued = c
    a('s_branch %s' % L)
    a.label(Lok)
CNT = 3 * CS
def publish_cnt(a, mark, cnt, s_idx_expr):
    a.wait_vm(mark)
    a('v_mov_b32 v%d, %d' % (V_FA, CNT + 16 * cnt))
    a('v_mov_b32 v%d, 1' % V_TOK)
    a('s_mov_b64 exec, 1')
    a('ds_add_rtn_u32 v%d, v%d, v%d' % (V_TOK + 1, V_FA, V_TOK))
    a('s_mov_b64 exec, -1')
    a('s_waitcnt lgkmcnt(0)')
    a('v_readfirstlane_b32 s12, v%d' % (V_TOK + 1))
    flag_store(a, s_idx_expr, 12, 3)
def flag_store(a, s_idx_expr, sreg=S_W, val=0):
    L = a.newlabel('L_fs')
    a('s_cmp_lg_u32 s%d, %d' % (sreg, val))
    a('s_cbranch_scc1 %s' % L)
    s_idx_expr(a)
    a('v_mov_b32 v%d, s%d' % (V_TOK, TOK))
    a('v_mov_b32 v%d, s%d' % (V_TOK + 1, TOK + 1))
    a('v_mov_b32 v%d, s12' % V_FA)
    c = a.vm_issued
    a('s_mov_b64 exec, 1')
    a(('buffer_store_dwordx2 %s, v%d, s[%d:%d], 0 offen%%s' % (vr(V_TOK, 2), V_FA, R_WS, R_WS + 3)) % OPT['psc'])
    a('s_mov_b64 exec, -1')
    a.vm_issued = c
    a.label(L)
def poll_issue(a, base_expr, n):
    base_expr(a)
    a('v_and_b32 v%d, %d, v1' % (V_PA, n - 1))
    a('v_lshlrev_b32 v%d, %d, v%d' % (V_PA, FS(), V_PA))
    a('v_add_u32 v%d, s12, v%d' % (V_PA, V_PA))
    a(('buffer_load_dwordx2 %s, v%d, s[%d:%d], 0 offen%%s' % (vr(V_POLL, 2), V_PA, R_WS, R_WS + 3)) % OPT['psc'])
    return a.vm_mark()
def poll_check(a, mark):
    if OPT.get('nopoll'): return
    L = a.newlabel('L_poll'); Lok = a.newlabel('L_pollok')
    a.wait_vm(mark)
    a('s_mov_b32 s14, %d' % SPIN_MAX)
    a.label(L)
    a('v_cmp_eq_u64 vcc, s[%d:%d], %s' % (TOK, TOK + 1, vr(V_POLL, 2)))
    a('s_nop 0')
    a('s_cmp_eq_u64 vcc, -1')
    a('s_cbranch_scc1 %s' % Lok)
    a('s_sub_u32 s14, s14, 1')
    a('s_cmp_eq_u32 s14, 0')
    a('s_cbranch_scc1 %s' % Lok)
    a('s_sleep %d' % OPT.get('psleep', 1))
    c = a.vm_issued
    a(('buffer_load_dwordx2 %s, v%d, s[%d:%d], 0 offen%%s' % (vr(V_POLL, 2), V_PA, R_WS, R_WS + 3)) % OPT['psc'])
    a('s_waitcnt vmcnt(0)')
    a.vm_issued = c
    a('s_branch %s' % L)
    a.label(Lok)

FB = 0xF00000
F1, F2, F3 = FB, FB + 0x10000, FB + 0x20000
def FS(): return OPT.get('fs', 7)
def fbase_j(F):
    def f(a):
        a('s_lshl_b32 s12, s%d, %d' % (S_J, FS() + 5))
        a('s_add_u32 s12, s12, 0x%x' % F)
    return f
def fown_jq(F):
    def f(a):
        fbase_j(F)(a)
        a('s_lshl_b32 s13, s%d, %d' % (S_Q, FS()))
        a('s_add_u32 s12, s12, s13')
    return f
def fown_g1(a):
    a('s_lshl_b32 s12, s%d, %d' % (S_R, FS() + 4))
    a('s_lshl_b32 s13, s%d, %d' % (S_CB, FS()))
    a('s_add_u32 s12, s12, s13')
    a('s_add_u32 s12, s12, 0x%x' % F2)
def fbase_g2(a):
    a('s_lshr_b32 s12, s%d, 1' % S_Q)
    a('s_lshl_b32 s12, s12, %d' % (FS() + 4))
    a('s_add_u32 s12, s12, 0x%x' % F2)

def fused_body(a):
    p = Prep(); g = G1(); c = Conv(); h = G2()
    h.m_h = {}
    if OPT.get('diag'):
        a('s_memrealtime s[46:47]')
    if OPT.get('gate_late', 0): p.mode = 'kv'
    spr = OPT.get('spr', 0)
    nd = OPT.get('dma_first', 0)
    def stamp(a):
        if PROF:
            a('v_mov_b32 v%d, 0' % V_TS)
            a('v_writelane_b32 v%d, s46, 30' % V_TS)
        ts(a, 0)
    if OPT.get('fast_start', 0):
        a('s_waitcnt lgkmcnt(0)')
        srd(a, R_K, P_K, NB_SD)
        srd(a, R_V, P_V, NB_SD)
        srd(a, R_W2, P_W2, 1536 * 1280)
        p.loads(a)
        stamp(a)
        token_publish(a)
        g.setup(a)
        srd(a, R_X, P_Q, NB_SD)
        srd(a, R_W1, P_W1, 640 * 3072)
        srd(a, R_WS, P_WS, 0x10000000)
        srd(a, R_OUT, P_OUT, NB_SD)
    else:
        g.setup(a)
        srds(a)
        stamp(a)
        for s_ in range(nd):
            g.dma(a, s_)
        srds2(a)
        token_publish(a)
        if spr:
            p.addr(a)
        else:
            p.loads(a)
    g.bias_load(a)
    if OPT['prep_stage'] < 0:
        for s_ in range(nd, OPT.get('e_dma', 1)):
            g.dma(a, s_)
        g.setup2(a)
        p.compute(a)
        for s_ in range(OPT.get('e_dma', 1), OPT.get('e_dma2', 2)):
            g.dma(a, s_)
        a('s_waitcnt lgkmcnt(0)')
        a('s_barrier')
        p.transpose(a)
        for s_ in range(OPT.get('e_dma2', 2), OPT['lead']):
            g.dma(a, s_)
    else:
        for s_ in range(nd, OPT['lead']):
            g.dma(a, s_)
        g.setup2(a)
    m_tok = token_load(a)
    c.channels(a)
    g.unpack_bias(a)
    a('s_waitcnt lgkmcnt(0)')
    ts(a, 1)
    st = {}
    w2bg = BG(h.w2_items())
    ps = OPT['prep_stage']
    pre, post, mid, bgs = {}, {}, {}, {}
    def addhook(d, i, f):
        old = d.get(i)
        d[i] = (lambda a, old=old, f=f: ((old(a) if old else None), f(a)))
    if spr:
        items = p.load_items()
        npre = OPT.get('spr_pre', 0)
        for x in items[:npre]:
            do(a, x)
        items = items[npre:]
        i_ = OPT.get('spr0', 0)
        while items:
            bgs[i_] = items[:spr]; items = items[spr:]; i_ += 1
        assert i_ <= ps + 1, (i_, ps)
    if ps >= 0:
        addhook(mid, ps, p.compute)
        addhook(mid if OPT.get('tr_stage') else post, OPT.get('tr_stage', ps + 1), p.transpose)
    addhook(mid, OPT.get('p_ld', 1), c.load_p)
    if OPT.get('gate_late', 0):
        addhook(mid, OPT['gate_late'], p.gate_loads)
        addhook(mid, OPT.get('gate_cp', 7), p.gate_compute)
    pre[OPT['f1_pub']] = lambda: p.m_st
    def pub_f1(a):
        token_check(a, m_tok)
        flag_store(a, fown_jq(F1))
    addhook(post, OPT['f1_pub'], pub_f1)
    if OPT['f1_issue'] < 10:
        addhook(mid, OPT['f1_issue'], lambda a: st.__setitem__('f1', poll_issue(a, fbase_j(F1), 32)))
    if not OPT.get('late_p', 0):
        addhook(post, 7, c.zero_fill)
        addhook(post, 8, c.build_p)
    else:
        addhook(post, 8, c.zero_fill)
    def chk_f1(a):
        poll_check(a, st['f1'])
        ts(a, 14)
        c.load_q(a)
    if OPT['f1_chk'] < 10:
        addhook(mid, OPT['f1_chk'], chk_f1)
    n1 = OPT['w2_g1']
    if OPT['f1_chk'] < 9:
        items = [(lambda a: w2bg.emit(a, 1))] * n1
        bgs[9] = items
    bgs[10] = w2bg if OPT.get('w2_tail', 1) else None
    if PROF:
        for i in range(10):
            addhook(mid, i, lambda a, i=i: ts(a, 3 + i))
    tail = BG([(lambda a: w2bg.emit(a, 1)) if k % 4 == 3 else (lambda a: None) for k in range(12)])
    bgs[10] = tail if OPT['f1_chk'] < 10 else None
    g.main(a, pre, post, mid, bgs)
    if OPT.get('diag') == 3:
        a('s_memrealtime s[12:13]')
        a('s_waitcnt lgkmcnt(0)')
        a('s_mov_b32 s47, s12')
    ts(a, 13)
    g.epilogue(a, w2bg, OPT['w2_gelu'] // 6 if OPT['f1_chk'] < 10 else 0)
    m_hst = a.vm_mark()
    ts(a, 15)
    if OPT['f1_issue'] >= 10:
        st['f1'] = poll_issue(a, fbase_j(F1), 32)
    if OPT.get('late_p', 0):
        c.PT = 36
        c.build_p(a)
    if OPT['f1_chk'] >= 10:
        a.wait_vm(m_hst)
        a('s_barrier')
        flag_store(a, fown_g1)
        chk_f1(a)
        w2bg.emit(a, OPT.get('w2_gap', 8))
    c.build_q(a)
    c.task_setup(a)
    w2bg.emit(a, 2)
    a('s_waitcnt lgkmcnt(0)')
    if not OPT.get('cnt2'):
        a.wait_vm(m_hst)
    a('s_barrier')
    if not OPT.get('cnt2') and OPT['f1_chk'] < 10:
        flag_store(a, fown_g1)
    ts(a, 16)
    hooks = {}
    if OPT.get('cnt2'):
        hooks[OPT['f2_pub']] = lambda a: publish_cnt(a, m_hst, 0, fown_g1)
    hooks[OPT['f2_issue']] = lambda a: st.__setitem__('f2', poll_issue(a, fbase_g2, 16))
    def chk_f2(a):
        w2bg.drain(a)
        poll_check(a, st['f2'])
        w2bg.add(h.h_items(0) + h.h_items(1))
    if OPT['f2_chk'] < 8:
        hooks[OPT['f2_chk']] = chk_f2
    def tw(a, subs, hooks_, bg, every):
        h.m_h.clear()
        c.task(a, subs, hooks_, bg, every)
    c.task_wrapper = tw
    c.run(a, hooks, w2bg, OPT.get('conv_every', 4))
    m_yst = a.vm_mark()
    ts(a, 17)
    if OPT['f2_chk'] >= 8:
        chk_f2(a)
    def pub_f3(a):
        if OPT.get('cnt3'):
            publish_cnt(a, m_yst, 1, fown_jq(F3))
            return
        a.wait_vm(m_yst)
        a('s_barrier')
        flag_store(a, fown_jq(F3))
    nop = lambda a: None
    iss = lambda a: st.__setitem__('f3', poll_issue(a, fbase_j(F3), 32))
    chk = lambda a: poll_check(a, st['f3'])
    if OPT.get('f3_late', 0):
        h.main(a, w2bg, nop, pub_f3, lambda a: (iss(a), chk(a)))
    else:
        h.main(a, w2bg, pub_f3, iss, chk)
    if OPT.get('diag') == 1:
        L = a.newlabel('L_dg')
        a('s_memrealtime s[12:13]')
        a('s_waitcnt lgkmcnt(0)')
        a('s_sub_u32 s14, s12, s46')
        a('s_add_u32 s14, s14, s12')
        a.label(L)
        a('s_memrealtime s[12:13]')
        a('s_waitcnt lgkmcnt(0)')
        a('s_sub_u32 s13, s14, s12')
        a('s_cmp_gt_i32 s13, 0')
        a('s_cbranch_scc1 %s' % L)
    if OPT.get('diag') == 2:
        L = a.newlabel('L_dg')
        a('s_memtime s[12:13]')
        a('s_waitcnt lgkmcnt(0)')
        a('s_add_u32 s14, s12, 20000')
        a.label(L)
        a('s_memtime s[12:13]')
        a('s_waitcnt lgkmcnt(0)')
        a('s_sub_u32 s13, s14, s12')
        a('s_cmp_gt_i32 s13, 0')
        a('s_cbranch_scc1 %s' % L)
    if OPT.get('diag') == 3:
        L = a.newlabel('L_dg')
        a('s_memrealtime s[12:13]')
        a('s_waitcnt lgkmcnt(0)')
        a('s_sub_u32 s14, s47, s46')
        a('s_add_u32 s14, s14, s12')
        a.label(L)
        a('s_memrealtime s[12:13]')
        a('s_waitcnt lgkmcnt(0)')
        a('s_sub_u32 s13, s14, s12')
        a('s_cmp_gt_i32 s13, 0')
        a('s_cbranch_scc1 %s' % L)
    ts(a, 24)
    ts(a, 31, True)
    ts_flush(a)

def build_fused(path):
    name = NAME + '_kernel'
    a = Asm()
    end = 'END_' + name
    prologue(a, end)
    fused_body(a)
    abl = OPT.get('abl', '')
    if abl:
        def kill(t):
            if 'k' in abl and (('s[%d:%d]' % (R_K, R_K + 3)) in t or ('s[%d:%d]' % (R_V, R_V + 3)) in t or ('s[%d:%d]' % (R_W2, R_W2 + 3)) in t): return True
            if 's' in abl and t.startswith('buffer_store_dwordx4 v[18') or ('s' in abl and t.startswith('buffer_store_dwordx4 v[19')): return True
            if 'h' in abl and t.startswith('buffer_store_dwordx4 v[9') or ('h' in abl and t.startswith('buffer_store_dwordx4 v[10')): return True
            if 'c' in abl and t.startswith('v_mfma') and ' a[' not in t: return True
            if 'C' in abl and (t.startswith('v_mfma') and ' a[' not in t or (t.startswith('ds_read_b128 v') and ('v16 ' in t or 'v17 ' in t or 'v20 ' in t or 'v21 ' in t))): return True
            if 'e' in abl and (t.startswith('v_exp') or t.startswith('v_rcp') or t.startswith('v_pk')): return True
            if 'w' in abl and 's101 offen' in t: return True
            if 'H' in abl and 's95 offen' in t: return True
            if 'g' in abl and t.startswith('v_mfma') and ', a[' in t and ', v[' in t.split(', a[')[1][:20] and 'a[19' not in t and 'a[2' not in t: return False
            if 'D' in abl and t.endswith(' lds'): return True
            return False
        a.items = [it for it in a.items if not (isinstance(it, Ins) and kill(it.text))]
    a.label(end)
    a('s_endpgm')
    a.raw('.p2align 12\n.fill %d, 4, 0xbf800000' % (1024 if not OPT.get('abl') else 5120))
    s = HEADER
    s += '; @launch grid=(256,1,1) block=(256,1,1) lds=163840\n'
    s += '.amdgcn_target "amdgcn-amd-amdhsa--gfx950"\n'
    s += '.text\n.globl %s\n.p2align 8\n.type %s,@function\n%s:\n' % (name, name, name) + a.text()
    s += '.section .rodata,"a"\n.p2align 6\n.amdhsa_kernel %s\n' % name
    s += '  .amdhsa_next_free_vgpr 512\n  .amdhsa_next_free_sgpr 102\n  .amdhsa_accum_offset 256\n'
    s += '  .amdhsa_group_segment_fixed_size 0\n  .amdhsa_kernarg_size 120\n  .amdhsa_user_sgpr_count 2\n'
    s += '  .amdhsa_user_sgpr_kernarg_segment_ptr 1\n  .amdhsa_system_sgpr_workgroup_id_x 1\n.end_amdhsa_kernel\n'
    open(path, 'w').write(s)

if __name__ == '__main__':
    for kv in sys.argv[1:]:
        k_, v_ = kv.split('=')
        OPT[k_] = int(v_) if v_.lstrip('-').isdigit() else v_.replace('_', ' ')
    build_fused('k_fused.s')
    PROF = True
    build_fused('k_fused_prof.s')
```

```python
import sys, struct
from asmlib import *
import layout as LY

NAME = 'gated_mix__ssm_conv_h3__dense_activation_gelu__prompt'
HEADER = open('cdna_kernels/%s.s.ref' % NAME).read().split('; Override launch')[0]
OPT = dict(nt=1, scl=' sc1', lead=3, prep_stage=0, f1_pub=3, f1_issue=6, f1_chk=8, late_p=1, gate_late=5, p_ld=3, d_early=1, gate4=1, fast_start=1, psc=' sc1', cas=1, cnt2=0, cnt3=0, f2_pub=2, rot=1, arr=1, f2_issue=4, f2_chk=6, w2_g1=8, w2_gelu=18)

S_XCD, S_IDX, S_Q, S_J, S_R, S_CB, S_W = 3, 4, 5, 6, 7, 8, 9
TOK = 10
P_Q, P_K, P_V, P_SK, P_HK, P_D, P_BX, P_W1, P_B1, P_W2, P_B2, P_GW, P_OUT, P_DBG, P_WS = range(16, 46, 2)
R_X, R_K, R_V, R_W1, R_W2, R_WS, R_OUT, R_HK = range(48, 80, 4)
ST = 80
NB_SD = 2048 * 1280
SCS = ' sc1'
def NT():
    return ' nt' if OPT.get('nt', 0) else ''
def SCL():
    return OPT.get('scl', '')
V_FA, V_TOK, V_POLL, V_PA, V_TS = 243, 244, 246, 248, 251
PROF = False

def f32hex(x):
    return '0x%08x' % struct.unpack('<I', struct.pack('<f', x))[0]
def srd(a, r, p, nbytes):
    a('s_mov_b32 s%d, s%d' % (r, p))
    a('s_and_b32 s%d, s%d, 0xffff' % (r + 1, p + 1))
    a('s_mov_b32 s%d, 0x%x' % (r + 2, nbytes))
    a('s_mov_b32 s%d, 0x20000' % (r + 3))
def scsel(a, dst, vt, vf):
    a('s_mov_b32 s%d, %d' % (dst, vf))
    a('s_cmov_b32 s%d, %d' % (dst, vt))
def unpack(a, dst_lo, dst_hi, src):
    a('v_lshlrev_b32 v%d, 16, v%d' % (dst_lo, src))
    a('v_and_b32 v%d, 0xffff0000, v%d' % (dst_hi, src))
def do(a, x):
    if callable(x): x(a)
    else: a(x)

class BG:
    def __init__(self, items=None):
        self.items = list(items or []); self.i = 0
    def add(self, items): self.items += items
    def left(self): return len(self.items) - self.i
    def emit(self, a, n=1):
        for _ in range(n):
            if self.i < len(self.items):
                do(a, self.items[self.i]); self.i += 1
    def drain(self, a): self.emit(a, self.left())
    def save(self): return self.i
    def restore(self, i): self.i = i

CODE_PIECES = 7
def prologue(a, end_label):
    if PROF or OPT.get('diag'): a('s_memrealtime s[46:47]')
    a('s_cmp_ge_u32 s2, 256')
    a('s_cbranch_scc1 %s' % end_label)
    a('s_load_dwordx16 s[16:31], s[0:1], 0')
    a('s_load_dwordx8 s[32:39], s[0:1], 64')
    a('s_load_dwordx4 s[40:43], s[0:1], 96')
    a('s_load_dwordx2 s[44:45], s[0:1], 112')
    a('s_and_b32 s%d, s2, 7' % S_XCD)
    a('s_lshr_b32 s%d, s2, 3' % S_IDX)
    a('s_getpc_b64 s[12:13]')
    a('s_and_b32 s14, s%d, 7' % S_IDX)
    a('s_min_u32 s14, s14, %d' % (CODE_PIECES - 1))
    a('s_lshl_b32 s14, s14, 12')
    a('s_add_u32 s12, s12, s14')
    a('s_addc_u32 s13, s13, 0')
    a('v_lshlrev_b32 v2, 4, v0')
    a('v_mov_b32 v3, s13')
    a('v_add_co_u32 v2, vcc, s12, v2')
    a('v_addc_co_u32 v3, vcc, 0, v3, vcc')
    a('global_load_dwordx4 v[252:255], v[2:3], off')
    a('v_lshrrev_b32 v2, 6, v0')
    a('v_and_b32 v1, 63, v0')
    a('s_and_b32 s%d, s%d, 3' % (S_Q, S_IDX))
    a('v_readfirstlane_b32 s%d, v2' % S_W)
    a('s_lshl_b32 s%d, s%d, 2' % (ST, S_XCD))
    a('s_lshr_b32 s%d, s%d, 2' % (S_J, S_IDX))
    if OPT['arr']:
        a('s_lshr_b32 s%d, s%d, 1' % (S_R, S_XCD))
        a('s_lshl_b32 s%d, s%d, 2' % (S_R, S_R))
        a('s_add_u32 s%d, s%d, s%d' % (S_R, S_R, S_Q))
        a('s_and_b32 s%d, s%d, 1' % (S_CB, S_XCD))
        a('s_lshl_b32 s%d, s%d, 3' % (S_CB, S_CB))
        a('s_add_u32 s%d, s%d, s%d' % (S_CB, S_CB, S_J))
    else:
        a('s_and_b32 s%d, s%d, 1' % (S_R, S_IDX))
        a('s_lshl_b32 s%d, s%d, 1' % (ST + 1, S_XCD))
        a('s_add_u32 s%d, s%d, s%d' % (S_R, S_R, ST + 1))
        a('s_lshr_b32 s%d, s%d, 1' % (S_CB, S_IDX))
    a('s_mul_i32 s15, s%d, 3' % S_Q)
    a('s_add_u32 s15, s15, s%d' % S_J)
    a('s_sub_u32 s14, s15, 10')
    a('s_cmp_ge_u32 s15, 10')
    a('s_cselect_b32 s15, s14, s15')
    if not OPT['rot']:
        a('s_mov_b32 s15, 0')
    a('s_add_u32 s%d, s%d, s%d' % (S_Q, S_Q, ST))

def srds(a):
    a('s_waitcnt lgkmcnt(0)')
    srd(a, R_X, P_Q, NB_SD)
    srd(a, R_W1, P_W1, 640 * 3072)
def srds2(a):
    srd(a, R_K, P_K, NB_SD)
    srd(a, R_V, P_V, NB_SD)
    srd(a, R_W2, P_W2, 1536 * 1280)
    srd(a, R_WS, P_WS, 0x10000000)
    srd(a, R_OUT, P_OUT, NB_SD)

class Prep:
    LKV, LW2 = 0, 10240
    KR, VR_, SKR, T = 120, 148, 164, 180

    def addr(self, a):
        L_gate = a.newlabel('L_gate'); L_join = a.newlabel('L_pl')
        a('s_cmp_eq_u32 s%d, 3' % S_W)
        a('s_cbranch_scc1 %s' % L_gate)
        a('v_min_u32 v14, 159, v0')
        a('v_mul_u32_u24 v12, 6554, v14')
        a('v_lshrrev_b32 v12, 16, v12')
        a('v_mul_u32_u24 v13, 10, v12')
        a('v_sub_u32 v13, v14, v13')
        a('s_mul_i32 s%d, s%d, %d' % (ST, S_Q, 64 * 1280))
        a('s_mul_i32 s%d, s%d, 160' % (ST + 1, S_J))
        a('s_add_u32 s%d, s%d, s%d' % (ST, ST, ST + 1))
        a('v_mul_u32_u24 v238, 5120, v12')
        a('v_lshl_add_u32 v238, v13, 4, v238')
        a('v_add_u32 v238, s%d, v238' % ST)
        a('v_subrev_u32 v239, 3840, v238')
        a('s_mul_i32 s%d, s%d, 640' % (ST + 1, S_J))
        a('v_lshlrev_b32 v240, 6, v13')
        a('v_add_u32 v240, s%d, v240' % (ST + 1))
        a('s_branch %s' % L_join)
        a.label(L_gate)
        a('v_lshrrev_b32 v12, 3, v1')
        a('v_and_b32 v13, 7, v1')
        a('s_lshl_b32 s%d, s%d, 7' % (ST, S_R))
        a('s_lshl_b32 s%d, s%d, 3' % (ST + 1, S_CB))
        a('s_add_u32 s%d, s%d, s%d' % (ST, ST, ST + 1))
        a('v_add_u32 v12, s%d, v12' % ST)
        a('v_mul_u32_u24 v238, 1280, v12')
        a('v_lshlrev_b32 v239, 4, v13')
        a('v_add_u32 v238, v238, v239')
        a('v_mov_b32 v240, 0')
        a.label(L_join)

    def load_items(self):
        KR, VR_, SKR = self.KR, self.VR_, self.SKR
        kv = []
        for r in range(4):
            kv.append('buffer_load_dwordx4 %s, v238, s[%d:%d], 0 offen offset:%d%s' % (vr(KR + 12 + 4 * r, 4), R_K, R_K + 3, 1280 * r, NT()))
        for r in range(3):
            kv.append('buffer_load_dwordx4 %s, v239, s[%d:%d], 0 offen offset:%d%s' % (vr(KR + 4 * r, 4), R_K, R_K + 3, 1280 * r, NT()))
        for r in range(4):
            kv.append('buffer_load_dwordx4 %s, v238, s[%d:%d], 0 offen offset:%d%s' % (vr(VR_ + 4 * r, 4), R_V, R_V + 3, 1280 * r, NT()))
        for r in range(4):
            kv.append('buffer_load_dwordx4 %s, v238, s[%d:%d], 0 offen offset:%d%s' % (ar(4 * r, 4), R_W2, R_W2 + 3, 1280 * r, NT()))
        for i in range(4):
            kv.append('global_load_dwordx4 %s, v240, s[%d:%d] offset:%d' % (vr(SKR + 4 * i, 4), P_SK, P_SK + 1, 16 * i))
        kv.append(kv[-1])
        gt = []
        for n in range(10):
            gt.append('buffer_load_dwordx4 %s, v238, s[%d:%d], 0 offen offset:%d' % (vr(120 + 4 * n, 4), R_X, R_X + 3, 128 * n))
            gt.append('global_load_dwordx4 %s, v239, s[%d:%d] offset:%d' % (ar(16 + 4 * n, 4), P_GW, P_GW + 1, 128 * n))
        L = []
        for k in range(20):
            def f(a, k=k):
                Lg = a.newlabel('L_ig'); Lj = a.newlabel('L_ij')
                a('s_cmp_eq_u32 s%d, 3' % S_W)
                a('s_cbranch_scc1 %s' % Lg)
                a(kv[k])
                c = a.vm_issued
                a('s_branch %s' % Lj)
                a.label(Lg)
                a(gt[k])
                a.vm_issued = c
                a.label(Lj)
                self.m_all = c
            L.append(f)
        return L

    mode = 'both'
    def gate_loads1(self, a):
        L = a.newlabel('L_gl')
        c = a.vm_issued
        a('s_cmp_lg_u32 s%d, 3' % S_W)
        a('s_cbranch_scc1 %s' % L)
        a('v_lshrrev_b32 v14, 3, v1')
        a('v_and_b32 v15, 7, v1')
        a('s_lshl_b32 s%d, s%d, 7' % (ST, S_R))
        a('s_lshl_b32 s%d, s%d, 3' % (ST + 1, S_CB))
        a('s_add_u32 s%d, s%d, s%d' % (ST, ST, ST + 1))
        a('v_add_u32 v14, s%d, v14' % ST)
        a('v_mul_u32_u24 v4, 1280, v14')
        a('v_lshlrev_b32 v5, 4, v15')
        a('v_add_u32 v4, v4, v5')
        for n in range(10):
            a('buffer_load_dwordx4 %s, v4, s[%d:%d], 0 offen offset:%d' % (vr(100 + 4 * n, 4), R_X, R_X + 3, 128 * n))
            a('global_load_dwordx4 %s, v5, s[%d:%d] offset:%d' % (vr(160 + 4 * n, 4), P_GW, P_GW + 1, 128 * n))
        a.label(L)
        a.vm_issued = c
        self.m_gate = c
    def gate_compute1(self, a):
        L = a.newlabel('L_gc')
        c = a.vm_issued
        a('s_cmp_lg_u32 s%d, 3' % S_W)
        a('s_cbranch_scc1 %s' % L)
        a.wait_vm(self.m_gate)
        a('v_mov_b32 v10, 0')
        a('v_mov_b32 v11, 0')
        for n in range(40):
            acc = 10 + (n & 1)
            a('v_dot2_f32_bf16 v%d, v%d, v%d, v%d' % (acc, 100 + n, 160 + n, acc))
        a('s_nop 3')
        a('v_add_f32 v10, v10, v11')
        a('v_add_f32_dpp v10, v10, v10 quad_perm:[1,0,3,2] row_mask:0xf bank_mask:0xf')
        a('v_add_f32_dpp v10, v10, v10 quad_perm:[2,3,0,1] row_mask:0xf bank_mask:0xf')
        a('v_add_f32_dpp v10, v10, v10 row_half_mirror row_mask:0xf bank_mask:0xf')
        a('v_cvt_pk_bf16_f32 v10, v10, v10')
        a('v_lshlrev_b32 v10, 16, v10')
        a('v_mul_f32 v10, 0xbfb8aa3b, v10')
        a('v_exp_f32 v10, v10')
        a('v_add_f32 v10, 1.0, v10')
        a('v_rcp_f32 v10, v10')
        a('v_cvt_pk_bf16_f32 v10, v10, v10')
        a('v_lshlrev_b32 v10, 16, v10')
        a('v_lshlrev_b32 v4, 2, v14')
        a('v_add_u32 v4, 0x%x, v4' % LY.G)
        a('v_cmp_eq_u32 vcc, 0, v15')
        a('s_and_saveexec_b64 s[%d:%d], vcc' % (ST + 2, ST + 3))
        a('buffer_store_dword v10, v4, s[%d:%d], 0 offen%s' % (R_WS, R_WS + 3, SCS))
        a('s_mov_b64 exec, s[%d:%d]' % (ST + 2, ST + 3))
        a.label(L)
        a.vm_issued = c

    def gate_loads(self, a):
        if not OPT.get('gate4'): return self.gate_loads1(a)
        a('v_lshrrev_b32 v14, 5, v1')
        a('v_and_b32 v15, 31, v1')
        a('s_lshl_b32 s%d, s%d, 7' % (ST, S_R))
        a('s_lshl_b32 s%d, s%d, 3' % (ST + 1, S_CB))
        a('s_add_u32 s%d, s%d, s%d' % (ST, ST, ST + 1))
        a('s_lshl_b32 s%d, s%d, 1' % (ST + 1, S_W))
        a('s_add_u32 s%d, s%d, s%d' % (ST, ST, ST + 1))
        a('v_add_u32 v14, s%d, v14' % ST)
        a('v_mul_u32_u24 v4, 1280, v14')
        a('v_lshlrev_b32 v5, 3, v15')
        a('v_add_u32 v4, v4, v5')
        for n in range(5):
            a('buffer_load_dwordx2 %s, v4, s[%d:%d], 0 offen offset:%d' % (vr(100 + 2 * n, 2), R_X, R_X + 3, 256 * n))
            a('global_load_dwordx2 %s, v5, s[%d:%d] offset:%d' % (vr(110 + 2 * n, 2), P_GW, P_GW + 1, 256 * n))
        self.m_gate = a.vm_mark()
    def gate_compute(self, a):
        if not OPT.get('gate4'): return self.gate_compute1(a)
        a.wait_vm(self.m_gate)
        a('v_mov_b32 v10, 0')
        a('v_mov_b32 v11, 0')
        for n in range(10):
            acc = 10 + (n & 1)
            a('v_dot2_f32_bf16 v%d, v%d, v%d, v%d' % (acc, 100 + n, 110 + n, acc))
        a('s_nop 3')
        a('v_add_f32 v10, v10, v11')
        a('v_add_f32_dpp v10, v10, v10 quad_perm:[1,0,3,2] row_mask:0xf bank_mask:0xf')
        a('v_add_f32_dpp v10, v10, v10 quad_perm:[2,3,0,1] row_mask:0xf bank_mask:0xf')
        a('v_add_f32_dpp v10, v10, v10 row_half_mirror row_mask:0xf bank_mask:0xf')
        a('v_add_f32_dpp v10, v10, v10 row_mirror row_mask:0xf bank_mask:0xf')
        a('v_add_f32_dpp v10, v10, v10 row_bcast:15 row_mask:0xa bank_mask:0xf')
        a('v_cvt_pk_bf16_f32 v10, v10, v10')
        a('v_lshlrev_b32 v10, 16, v10')
        a('v_mul_f32 v10, 0xbfb8aa3b, v10')
        a('v_exp_f32 v10, v10')
        a('v_add_f32 v10, 1.0, v10')
        a('v_rcp_f32 v10, v10')
        a('v_cvt_pk_bf16_f32 v10, v10, v10')
        a('v_lshlrev_b32 v10, 16, v10')
        a('v_lshlrev_b32 v4, 2, v14')
        a('v_add_u32 v4, 0x%x, v4' % LY.G)
        a('v_cmp_eq_u32 vcc, 31, v15')
        a('s_and_saveexec_b64 s[%d:%d], vcc' % (ST + 2, ST + 3))
        a('buffer_store_dword v10, v4, s[%d:%d], 0 offen%s' % (R_WS, R_WS + 3, SCS))
        a('s_mov_b64 exec, s[%d:%d]' % (ST + 2, ST + 3))

    def loads(self, a):
        L_gate = a.newlabel('L_gate'); L_join = a.newlabel('L_pl')
        KR, VR_, SKR = self.KR, self.VR_, self.SKR
        self.c00 = a.vm_issued
        a('s_cmp_eq_u32 s%d, 3' % S_W)
        a('s_cbranch_scc1 %s' % L_gate)
        a('v_mul_u32_u24 v12, 6554, v0')
        a('v_lshrrev_b32 v12, 16, v12')
        a('v_mul_u32_u24 v13, 10, v12')
        a('v_sub_u32 v13, v0, v13')
        a('s_mul_i32 s%d, s%d, %d' % (ST, S_Q, 64 * 1280))
        a('s_mul_i32 s%d, s%d, 160' % (ST + 1, S_J))
        a('s_add_u32 s%d, s%d, s%d' % (ST, ST, ST + 1))
        a('v_mul_u32_u24 v4, 5120, v12')
        a('v_lshl_add_u32 v4, v13, 4, v4')
        a('v_add_u32 v4, s%d, v4' % ST)
        a('v_subrev_u32 v5, 3840, v4')
        a('s_mul_i32 s%d, s%d, 640' % (ST + 1, S_J))
        a('v_lshlrev_b32 v6, 6, v13')
        a('v_add_u32 v6, s%d, v6' % (ST + 1))
        a('v_cmp_gt_u32 vcc, 160, v0')
        a('s_and_saveexec_b64 s[%d:%d], vcc' % (ST + 2, ST + 3))
        for r in range(4):
            a('buffer_load_dwordx4 %s, v4, s[%d:%d], 0 offen offset:%d%s' % (vr(KR + 12 + 4 * r, 4), R_K, R_K + 3, 1280 * r, NT()))
        for r in range(4):
            a('buffer_load_dwordx4 %s, v4, s[%d:%d], 0 offen offset:%d%s' % (vr(VR_ + 4 * r, 4), R_V, R_V + 3, 1280 * r, NT()))
        for r in range(4):
            a('buffer_load_dwordx4 %s, v4, s[%d:%d], 0 offen offset:%d%s' % (ar(4 * r, 4), R_W2, R_W2 + 3, 1280 * r, NT()))
        for i in range(4):
            a('global_load_dwordx4 %s, v6, s[%d:%d] offset:%d' % (vr(SKR + 4 * i, 4), P_SK, P_SK + 1, 16 * i))
        for r in range(3):
            a('buffer_load_dwordx4 %s, v5, s[%d:%d], 0 offen offset:%d%s' % (vr(KR + 4 * r, 4), R_K, R_K + 3, 1280 * r, NT()))
        a('s_mov_b64 exec, s[%d:%d]' % (ST + 2, ST + 3))
        a('s_branch %s' % L_join)
        endA = a.vm_issued
        a.label(L_gate)
        if self.mode == 'kv':
            a.label(L_join)
            a.vm_issued = self.c00
            self.m_all = self.c00
            return
        a('v_lshrrev_b32 v12, 3, v1')
        a('v_and_b32 v13, 7, v1')
        a('s_lshl_b32 s%d, s%d, 7' % (ST, S_R))
        a('s_lshl_b32 s%d, s%d, 3' % (ST + 1, S_CB))
        a('s_add_u32 s%d, s%d, s%d' % (ST, ST, ST + 1))
        a('v_add_u32 v12, s%d, v12' % ST)
        a('v_mul_u32_u24 v4, 1280, v12')
        a('v_lshlrev_b32 v5, 4, v13')
        a('v_add_u32 v4, v4, v5')
        for n in range(10):
            a('buffer_load_dwordx4 %s, v4, s[%d:%d], 0 offen offset:%d' % (vr(120 + 4 * n, 4), R_X, R_X + 3, 128 * n))
            a('global_load_dwordx4 %s, v5, s[%d:%d] offset:%d' % (ar(16 + 4 * n, 4), P_GW, P_GW + 1, 128 * n))
        a.label(L_join)
        a.vm_issued = endA
        self.m_all = endA

    def compute(self, a):
        L_gate = a.newlabel('L_gate'); L_join = a.newlabel('L_prepjoin')
        KR, VR_, SKR, T = self.KR, self.VR_, self.SKR, self.T
        LKV, LW2 = self.LKV, self.LW2
        a.wait_vm(self.m_all)
        a('s_cmp_eq_u32 s%d, 3' % S_W)
        a('s_cbranch_scc1 %s' % L_gate)
        a('v_mul_u32_u24 v8, 640, v12')
        a('v_lshlrev_b32 v9, 4, v13')
        a('v_sub_u32 v7, v9, v8')
        a('v_add_u32 v7, %d, v7' % (LKV + 60 * 160))
        a('v_add_u32 v8, v8, v9')
        a('v_add_u32 v8, %d, v8' % LW2)
        a('v_cmp_gt_u32 vcc, 160, v0')
        a('s_and_saveexec_b64 s[%d:%d], vcc' % (ST + 2, ST + 3))
        for r in range(4):
            a('ds_write_b128 v8, %s offset:%d' % (ar(4 * r, 4), r * 160))
        KF, SF, VF, AC = T, T + 14, T + 22, T + 30
        for d in range(4):
            for r in range(7):
                unpack(a, KF + 2 * r, KF + 2 * r + 1, KR + 4 * r + d)
            for h in range(2):
                unpack(a, SF + 0 + h, SF + 2 + h, SKR + 2 * (2 * d + h))
                unpack(a, SF + 4 + h, SF + 6 + h, SKR + 2 * (2 * d + h) + 1)
            for r in range(4):
                unpack(a, VF + 2 * r, VF + 2 * r + 1, VR_ + 4 * r + d)
            for j in range(4):
                for r in range(4):
                    acc = vr(AC + 2 * r, 2); kf = vr(KF + 2 * (r + 3 - j), 2); sf = vr(SF + 2 * j, 2)
                    if j == 0: a('v_pk_mul_f32 %s, %s, %s' % (acc, kf, sf))
                    else: a('v_pk_fma_f32 %s, %s, %s, %s' % (acc, kf, sf, acc))
            for r in range(4):
                a('v_pk_mul_f32 %s, %s, %s' % (vr(AC + 2 * r, 2), vr(AC + 2 * r, 2), vr(VF + 2 * r, 2)))
            for r in range(4):
                a('v_cvt_pk_bf16_f32 v%d, v%d, v%d' % (VR_ + 4 * r + d, AC + 2 * r, AC + 2 * r + 1))
        for r in range(4):
            a('ds_write_b128 v7, %s offset:%d' % (vr(VR_ + 4 * r, 4), (3 - r) * 160))
        a('s_mov_b64 exec, s[%d:%d]' % (ST + 2, ST + 3))
        a('s_branch %s' % L_join)
        cA = a.vm_issued
        a.label(L_gate)
        if self.mode == 'kv':
            a.label(L_join)
            return
        a('v_mov_b32 v10, 0')
        a('v_mov_b32 v11, 0')
        for n in range(40):
            a('v_accvgpr_read_b32 v%d, a%d' % (T + n, 16 + n))
        for n in range(40):
            acc = 10 + (n & 1)
            a('v_dot2_f32_bf16 v%d, v%d, v%d, v%d' % (acc, 120 + n, T + n, acc))
        a('s_nop 3')
        a('v_add_f32 v10, v10, v11')
        a('v_add_f32_dpp v10, v10, v10 quad_perm:[1,0,3,2] row_mask:0xf bank_mask:0xf')
        a('v_add_f32_dpp v10, v10, v10 quad_perm:[2,3,0,1] row_mask:0xf bank_mask:0xf')
        a('v_add_f32_dpp v10, v10, v10 row_half_mirror row_mask:0xf bank_mask:0xf')
        a('v_cvt_pk_bf16_f32 v10, v10, v10')
        a('v_lshlrev_b32 v10, 16, v10')
        a('v_mul_f32 v10, 0xbfb8aa3b, v10')
        a('v_exp_f32 v10, v10')
        a('v_add_f32 v10, 1.0, v10')
        a('v_rcp_f32 v10, v10')
        a('v_cvt_pk_bf16_f32 v10, v10, v10')
        a('v_lshlrev_b32 v10, 16, v10')
        a('v_lshlrev_b32 v4, 2, v12')
        a('v_add_u32 v4, 0x%x, v4' % LY.G)
        a('v_cmp_eq_u32 vcc, 0, v13')
        a('s_and_saveexec_b64 s[%d:%d], vcc' % (ST + 2, ST + 3))
        a('buffer_store_dword v10, v4, s[%d:%d], 0 offen%s' % (R_WS, R_WS + 3, SCS))
        a('s_mov_b64 exec, s[%d:%d]' % (ST + 2, ST + 3))
        a.label(L_join)
        a.vm_issued = cA

    def transpose(self, a):
        L_skip = a.newlabel('L_prepskip')
        LKV, LW2 = self.LKV, self.LW2
        O = self.T
        a('v_and_b32 v2, 15, v1')
        a('v_lshrrev_b32 v3, 4, v1')
        a('v_lshrrev_b32 v4, 2, v2')
        a('v_and_b32 v5, 3, v1')
        a('s_and_b32 s%d, s%d, 1' % (ST, S_W))
        a('s_cmp_ge_u32 s%d, 2' % S_W)
        a('s_cselect_b32 s%d, 2, 3' % (ST + 1))
        scsel(a, ST + 2, 2560, 640)
        scsel(a, ST + 3, LW2, LKV)
        scsel(a, ST + 4, 1024, 65536)
        a('s_mul_i32 s%d, s%d, %d' % (ST + 5, ST, 32 * 160))
        a('s_add_u32 s%d, s%d, s%d' % (ST + 3, ST + 3, ST + 5))
        a('v_lshlrev_b32 v6, s%d, v3' % (ST + 1))
        a('v_add_u32 v6, v6, v4')
        a('v_mul_u32_u24 v6, 160, v6')
        a('v_lshl_add_u32 v6, v5, 3, v6')
        a('v_add_u32 v6, s%d, v6' % (ST + 3))
        a('v_add_u32 v7, s%d, v6' % (ST + 2))
        for u in range(5):
            a('ds_read_b64_tr_b16 %s, v6 offset:%d' % (vr(O + 4 * u, 2), 32 * u))
            a('ds_read_b64_tr_b16 %s, v7 offset:%d' % (vr(O + 2 + 4 * u, 2), 32 * u))
        m = a.lgkm_mark()
        a('s_mul_i32 s%d, s%d, %d' % (ST + 5, S_J, 80 * 4096))
        a('s_lshl_b32 s%d, s%d, 7' % (ST + 6, S_Q))
        a('s_sub_u32 s%d, s%d, s%d' % (ST + 5, ST + 5, ST + 6))
        a('s_lshl_b32 s%d, s%d, 6' % (ST + 6, ST))
        a('s_add_u32 s%d, s%d, s%d' % (ST + 5, ST + 5, ST + 6))
        a('s_add_u32 s%d, s%d, %d' % (ST + 5, ST + 5, LY.KVT + 2 * 1984))
        a('v_lshlrev_b32 v8, 12, v2')
        a('v_lshl_add_u32 v8, v3, 4, v8')
        a('s_mul_i32 s%d, s%d, 48' % (ST + 6, S_J))
        a('s_lshl_b32 s%d, s%d, 1' % (ST + 7, S_Q))
        a('s_add_u32 s%d, s%d, s%d' % (ST + 6, ST + 6, ST + 7))
        a('s_add_u32 s%d, s%d, s%d' % (ST + 6, ST + 6, ST))
        a('s_mul_i32 s%d, s%d, 5120' % (ST + 6, ST + 6))
        a('s_add_u32 s%d, s%d, 0x%x' % (ST + 6, ST + 6, LY.W2T))
        a('v_lshlrev_b32 v9, 4, v1')
        a('s_cmp_ge_u32 s%d, 2' % S_W)
        a('s_cselect_b32 s%d, s%d, s%d' % (ST + 5, ST + 6, ST + 5))
        a('s_cselect_b64 vcc, -1, 0')
        a('v_cndmask_b32 v8, v8, v9, vcc')
        a('s_cselect_b32 s%d, s%d, 0' % (ST + 7, S_Q))
        a('s_cmp_ge_u32 s%d, 24' % (ST + 7))
        a.wait_lgkm(m)
        a('s_cbranch_scc1 %s' % L_skip)
        cB = a.vm_issued
        for u in range(5):
            a('buffer_store_dwordx4 %s, v8, s[%d:%d], s%d offen%s' % (vr(O + 4 * u, 4), R_WS, R_WS + 3, ST + 5, SCS))
            if u < 4:
                a('s_add_u32 s%d, s%d, s%d' % (ST + 5, ST + 5, ST + 4))
        a.label(L_skip)
        a('s_nop 1')
        a.vm_issued = cB
        self.m_st = cB

RB = 20480
SLOT = 28672
NSLOT = 5
class G1:
    VX, VW, VB = 16, 20, 24
    ACC, BIAS, BRAW = 36, 84, 108
    AF, BF = 192, 240
    SX, SWO = 96, 97

    def setup(self, a):
        a('v_lshrrev_b32 v2, 3, v1')
        a('v_and_b32 v3, 7, v1')
        a('s_lshl_b32 s%d, s%d, 7' % (ST, S_R))
        a('s_lshl_b32 s%d, s%d, 5' % (ST + 1, S_W))
        a('s_add_u32 s%d, s%d, s%d' % (ST, ST, ST + 1))
        a('s_mul_i32 s%d, s%d, 1280' % (ST, ST))
        for i in range(2):
            a('v_add_u32 v4, %d, v2' % (8 * i))
            a('v_bfe_u32 v5, v4, 1, 3')
            a('v_xor_b32 v5, v5, v3')
            a('v_mul_u32_u24 v4, 1280, v4')
            a('v_lshl_add_u32 v4, v5, 4, v4')
            a('v_add_u32 v4, s%d, v4' % ST)
            if i == 0: a('v_mov_b32 v%d, v4' % (self.VX))
            else: a('v_subrev_u32 v%d, %d, v4' % (self.VX + i, 1024 * i))
            a('v_add_u32 v%d, %d, v4' % (self.VX + i + 2, 16 * 1280 - 1024 * (i + 2)))
        a('s_mul_i32 s%d, s%d, %d' % (ST, S_W, 16 * 3072))
        a('s_mul_i32 s%d, s%d, 192' % (ST + 1, S_CB))
        a('s_add_u32 s%d, s%d, s%d' % (ST, ST, ST + 1))
        for i in range(3):
            a('v_add_u32 v4, %d, v1' % (64 * i))
            a('v_mul_u32_u24 v5, 5462, v4')
            a('v_lshrrev_b32 v5, 16, v5')
            a('v_mul_u32_u24 v6, 12, v5')
            a('v_sub_u32 v6, v4, v6')
            a('v_bfe_u32 v7, v5, 3, 1')
            a('v_lshlrev_b32 v7, 1, v7')
            a('v_sub_u32 v6, v6, v7')
            a('v_add_u32 v7, 12, v6')
            a('v_min_u32 v6, v6, v7')
            a('v_mul_u32_u24 v5, 3072, v5')
            a('v_lshl_add_u32 v5, v6, 4, v5')
            a('v_add_u32 v5, s%d, v5' % ST)
            a('v_subrev_u32 v%d, %d, v5' % (self.VW + i, 1024 * i))
        a('s_lshl_b32 s%d, s15, 7' % self.SX)
        a('s_mul_i32 s%d, s15, %d' % (self.SWO, 64 * 3072))
        a('s_lshl_b32 s98, s%d, 12' % S_W)
        a('s_mul_i32 s99, s%d, 3072' % S_W)
        a('s_add_u32 s99, s99, 16384')
        self.marks = {}

    def dma_items(self, stage):
        slot = RB + SLOT * (stage % NSLOT)
        L = []
        def first(a):
            a('s_add_u32 m0, s98, %d' % slot)
            a('buffer_load_dwordx4 v%d, s[%d:%d], s%d offen lds' % (self.VX, R_X, R_X + 3, self.SX))
        L.append(first)
        for i in range(1, 4):
            L.append('buffer_load_dwordx4 v%d, s[%d:%d], s%d offen offset:%d lds' % (self.VX + i, R_X, R_X + 3, self.SX, 1024 * i))
        def mid(a):
            a('s_add_u32 m0, s99, %d' % slot)
            a('s_add_u32 s%d, s%d, 128' % (self.SX, self.SX))
            a('buffer_load_dwordx4 v%d, s[%d:%d], s%d offen lds' % (self.VW, R_W1, R_W1 + 3, self.SWO))
        L.append(mid)
        L.append('buffer_load_dwordx4 v%d, s[%d:%d], s%d offen offset:1024 lds' % (self.VW + 1, R_W1, R_W1 + 3, self.SWO))
        def last(a):
            a('buffer_load_dwordx4 v%d, s[%d:%d], s%d offen offset:2048 lds' % (self.VW + 2, R_W1, R_W1 + 3, self.SWO))
            self.marks[stage] = a.vm_mark()
            a('s_add_u32 s%d, s%d, %d' % (self.SWO, self.SWO, 64 * 3072))
            a('s_cmp_eq_u32 s%d, 1280' % self.SX)
            a('s_cmov_b32 s%d, 0' % self.SX)
            a('s_cmov_b32 s%d, 0' % self.SWO)
        L.append(last)
        return L

    def dma(self, a, stage):
        for x in self.dma_items(stage):
            do(a, x)

    def bias_load(self, a):
        a('v_lshrrev_b32 v3, 4, v1')
        a('s_mul_i32 s%d, s%d, 192' % (ST, S_CB))
        a('v_lshlrev_b32 v4, 3, v3')
        a('v_add_u32 v4, s%d, v4' % ST)
        for ft in range(6):
            a('global_load_dwordx2 %s, v4, s[%d:%d] offset:%d' % (vr(self.BRAW + 2 * ft, 2), P_B1, P_B1 + 1, 32 * ft))
        self.m_bias = a.vm_mark()

    def setup2(self, a):
        a('v_lshrrev_b32 v3, 4, v1')
        a('v_and_b32 v2, 15, v1')
        a('v_lshrrev_b32 v4, 1, v2')
        a('v_xor_b32 v4, v4, v3')
        a('v_lshlrev_b32 v4, 4, v4')
        a('v_lshl_add_u32 v4, v2, 7, v4')
        a('v_add_u32 v4, s98, v4')
        a('v_xor_b32 v5, 64, v4')
        a('v_lshrrev_b32 v6, 2, v2')
        a('v_lshl_add_u32 v6, v3, 3, v6')
        a('v_mul_u32_u24 v6, 192, v6')
        a('v_and_b32 v7, 3, v1')
        a('v_lshl_add_u32 v6, v7, 3, v6')
        a('v_and_b32 v7, 1, v3')
        a('v_lshl_add_u32 v6, v7, 5, v6')
        a('v_mul_u32_u24 v7, 192, v7')
        a('v_sub_u32 v7, v6, v7')
        for grp in range(3):
            off = RB + 2 * SLOT * grp
            a('v_add_u32 v%d, %d, v4' % (self.VB + 4 * grp, off))
            a('v_add_u32 v%d, %d, v5' % (self.VB + 4 * grp + 1, off))
            a('v_add_u32 v%d, %d, v6' % (self.VB + 4 * grp + 2, off + 16384))
            a('v_add_u32 v%d, %d, v7' % (self.VB + 4 * grp + 3, off + 16384))

    def unpack_bias(self, a):
        a.wait_vm(self.m_bias)
        for ft in range(6):
            for d in range(2):
                unpack(a, self.BIAS + 4 * ft + 2 * d, self.BIAS + 4 * ft + 2 * d + 1, self.BRAW + 2 * ft + d)

    def reads(self, stage, kk):
        slot = stage % NSLOT
        grp, so = slot // 2, (slot % 2) * SLOT
        L = []
        for st in range(2):
            L.append('ds_read_b128 %s, v%d offset:%d' % (ar(self.BF + 8 * kk + 4 * st, 4), self.VB + 4 * grp + kk, so + 2048 * st))
        for ft in range(6):
            base = self.VB + 4 * grp + (3 if ft == 5 else 2)
            for h in range(2):
                L.append('ds_read_b64_tr_b16 %s, v%d offset:%d' % (ar(self.AF + 24 * kk + 4 * ft + 2 * h, 2), base, so + 6144 * kk + 768 * h + 32 * ft))
        return L

    def mfma(self, kk, ft, st, first):
        acc = vr(self.ACC + 8 * ft + 4 * st, 4)
        c = vr(self.BIAS + 4 * ft, 4) if first else acc
        return 'v_mfma_f32_16x16x32_bf16 %s, %s, %s, %s' % (acc, ar(self.AF + 24 * kk + 4 * ft, 4), ar(self.BF + 8 * kk + 4 * st, 4), c)

    def block(self, a, kk, first, rmarks, nxt, bg):
        newmarks = []
        ni = 0
        for ft in range(6):
            if rmarks is not None:
                a.wait_lgkm(rmarks[2 + 2 * ft + 1])
            for st in range(2):
                a(self.mfma(kk, ft, st, first))
                if ni < len(nxt):
                    for _ in range(2):
                        a(nxt[ni]); newmarks.append(a.lgkm_mark()); ni += 1
                elif bg is not None:
                    bg.emit(a, 1)
        return newmarks

    def main(self, a, pre, post, mid, bgs):
        lead = OPT['lead']
        pm = None
        for i in range(10):
            if pm is not None:
                a('s_waitcnt lgkmcnt(0)')
            a.wait_vm(max(self.marks[i], pre[i]() if i in pre else 0))
            a('s_barrier')
            bg = BG()
            if i + lead <= 9 and (i + lead) not in self.marks:
                bg.add(self.dma_items(i + lead))
            if i in bgs:
                bg.add(bgs[i])
            rd = self.reads(i, 0)
            if pm is None:
                m0 = []
                for x in rd:
                    a(x); m0.append(a.lgkm_mark())
                bg.emit(a, 4)
            else:
                m0 = self.block(a, 1, False, None, rd, bg)
            if i in post:
                post[i](a)
            pm = self.block(a, 0, i == 0, m0, self.reads(i, 1), bg)
            bg.drain(a)
            if i in mid:
                mid[i](a)
        self.block(a, 1, False, pm, [], bgs.get(10))

    def epilogue(self, a, bg, per):
        C1, C2, ONE, T, O = 84, 86, 88, 184, (90 if OPT.get('late_p') else 216)
        c1 = -2.0 * 1.4426950408889634 * 0.7978845608028654
        for r, val in ((C1, c1), (C2, c1 * 0.044715), (ONE, 1.0)):
            a('v_mov_b32 v%d, %s' % (r, f32hex(val)))
            a('v_mov_b32 v%d, %s' % (r + 1, f32hex(val)))
        a('s_lshl_b32 s%d, s%d, 3' % (ST, S_R))
        a('s_lshl_b32 s%d, s%d, 1' % (ST + 1, S_W))
        a('s_add_u32 s%d, s%d, s%d' % (ST, ST, ST + 1))
        a('s_mul_i32 s%d, s%d, 48' % (ST, ST))
        a('s_mul_i32 s%d, s%d, 3' % (ST + 1, S_CB))
        a('s_add_u32 s%d, s%d, s%d' % (ST, ST, ST + 1))
        a('s_lshl_b32 s%d, s%d, 10' % (ST, ST))
        a('s_add_u32 s%d, s%d, 0x%x' % (ST, ST, LY.HF))
        a('s_add_u32 s%d, s%d, %d' % (ST + 1, ST, 48 * 1024))
        a('v_lshlrev_b32 v2, 4, v1')
        k = 0
        for st in range(2):
            for J in range(3):
                o = O + 4 * (k % 4); t0 = T + 16 * (k % 2); k += 1
                prs = [self.ACC + 8 * (2 * J + h) + 4 * st + 2 * p for h in range(2) for p in range(2)]
                for n, x in enumerate(prs):
                    a('v_pk_mul_f32 %s, %s, %s' % (vr(t0 + 2 * n, 2), vr(x, 2), vr(x, 2)))
                for n, x in enumerate(prs):
                    a('v_pk_fma_f32 %s, %s, %s, %s' % (vr(t0 + 2 * n, 2), vr(t0 + 2 * n, 2), vr(C2, 2), vr(C1, 2)))
                for n, x in enumerate(prs):
                    a('v_pk_mul_f32 %s, %s, %s' % (vr(t0 + 2 * n, 2), vr(t0 + 2 * n, 2), vr(x, 2)))
                bg.emit(a, (per + 2) // 3)
                for n in range(8):
                    a('v_exp_f32 v%d, v%d' % (t0 + n, t0 + n))
                for n, x in enumerate(prs):
                    a('v_pk_add_f32 %s, %s, %s' % (vr(t0 + 2 * n, 2), vr(t0 + 2 * n, 2), vr(ONE, 2)))
                bg.emit(a, (per + 1) // 3)
                for n in range(8):
                    a('v_rcp_f32 v%d, v%d' % (t0 + n, t0 + n))
                for n, x in enumerate(prs):
                    a('v_pk_mul_f32 %s, %s, %s' % (vr(t0 + 2 * n, 2), vr(t0 + 2 * n, 2), vr(x, 2)))
                bg.emit(a, per // 3)
                for n in range(4):
                    a('v_cvt_pk_bf16_f32 v%d, v%d, v%d' % (o + n, t0 + 2 * n, t0 + 2 * n + 1))
                a('buffer_store_dwordx4 %s, v2, s[%d:%d], s%d offen offset:%d%s' % (vr(o, 4), R_WS, R_WS + 3, ST + st, 1024 * J, SCS))

PP = 4160
QO0 = 16656
QO1 = QO0 + 4640
CS = 25856
CB = 0
TOP = [7, 6, 5, 2]
BOT = [4, 3, 1, 0]

class Conv:
    VADR = 16
    FR, ACC = 32, 112
    PRAW, QRAW, PT = 220, 140, 180
    SCH = 90
    S_D = 93

    def channels(self, a):
        a('s_mul_i32 s%d, s%d, 80' % (ST, S_J))
        a('s_lshr_b32 s%d, s%d, 1' % (ST + 1, S_Q))
        a('s_mul_i32 s%d, s%d, 5' % (ST + 1, ST + 1))
        a('s_add_u32 s%d, s%d, s%d' % (ST, ST, ST + 1))
        a('s_and_b32 s%d, s%d, 1' % (ST + 1, S_Q))
        a('s_mul_i32 s%d, s%d, 3' % (ST + 1, ST + 1))
        a('s_add_u32 s%d, s%d, s%d' % (self.SCH, ST, ST + 1))
        a('s_add_u32 s%d, s%d, 1' % (self.SCH + 1, self.SCH))
        a('s_add_u32 s%d, s%d, 2' % (self.SCH + 2, ST))
        if OPT.get('d_early'):
            a('s_cmp_eq_u32 s%d, 1' % S_W)
            a('s_cselect_b32 s%d, s%d, s%d' % (ST + 3, self.SCH + 1, self.SCH))
            a('s_cmp_eq_u32 s%d, 2' % S_W)
            a('s_cselect_b32 s%d, s%d, s%d' % (ST + 3, self.SCH + 2, ST + 3))
            for k, ch in enumerate((ST + 3, self.SCH + 1)):
                a('s_lshr_b32 s%d, s%d, 1' % (ST, ch))
                a('s_lshl_b32 s%d, s%d, 2' % (ST, ST))
                a('s_load_dword s%d, s[%d:%d], s%d' % (self.S_D + k, P_D, P_D + 1, ST))

    def load_p(self, a):
        a('v_lshlrev_b32 v2, 4, v0')
        a('v_subrev_u32 v3, 8, v2')
        a('s_mov_b32 s%d, 4096' % (R_HK + 2))
        a('s_mov_b32 s%d, 0x20000' % (R_HK + 3))
        for sl in range(3):
            a('s_lshl_b32 s%d, s%d, 12' % (ST, self.SCH + sl))
            a('s_add_u32 s%d, s%d, s%d' % (R_HK, P_HK, ST))
            a('s_addc_u32 s%d, s%d, 0' % (R_HK + 1, P_HK + 1))
            a('s_and_b32 s%d, s%d, 0xffff' % (R_HK + 1, R_HK + 1))
            a('buffer_load_dwordx4 %s, v2, s[%d:%d], 0 offen%s' % (vr(self.PRAW + 6 * sl + 2, 4), R_HK, R_HK + 3, NT()))
            a('buffer_load_dwordx2 %s, v3, s[%d:%d], 0 offen%s' % (vr(self.PRAW + 6 * sl, 2), R_HK, R_HK + 3, NT()))
        self.m_p = a.vm_mark()

    def load_q(self, a):
        a('v_lshlrev_b32 v2, 4, v0')
        for sl in range(3):
            a('s_lshl_b32 s%d, s%d, 12' % (ST + sl, self.SCH + sl))
            if LY.KVT:
                a('s_add_u32 s%d, s%d, 0x%x' % (ST + sl, ST + sl, LY.KVT))
            a('buffer_load_dwordx4 %s, v2, s[%d:%d], s%d offen%s' % (vr(self.QRAW + 4 * sl, 4), R_WS, R_WS + 3, ST + sl, SCL()))
        self.m_q = a.vm_mark()

    def zero_fill(self, a):
        L = a.newlabel('L_zf')
        a('s_cmp_ge_u32 s%d, 3' % S_W)
        a('s_cbranch_scc1 %s' % L)
        c = a.lgkm_issued
        for i in range(4):
            a('v_mov_b32 v%d, 0' % (8 + i))
        a('s_mul_i32 s%d, s%d, %d' % (ST, S_W, CS))
        a('v_lshlrev_b32 v2, 4, v1')
        a('v_add_u32 v2, s%d, v2' % ST)
        a('v_bfe_u32 v3, v1, 2, 2')
        a('v_mul_u32_u24 v3, %d, v3' % PP)
        a('v_and_b32 v4, 3, v1')
        a('v_lshl_add_u32 v3, v4, 4, v3')
        a('v_add_u32 v3, s%d, v3' % ST)
        a('v_cmp_gt_u32 vcc, 29, v1')
        a('s_and_saveexec_b64 s[%d:%d], vcc' % (ST + 2, ST + 3))
        a('ds_write_b128 v2, v[8:11] offset:%d' % (CB + QO0 + 4080))
        a('ds_write_b128 v2, v[8:11] offset:%d' % (CB + QO1 + 4096))
        a('ds_write_b128 v3, v[8:11] offset:%d' % CB)
        a('v_and_b32 v4, 3, v1')
        a('v_lshlrev_b32 v4, 4, v4')
        a('v_add_u32 v4, %d, v4' % (3 * CS))
        a('ds_write_b128 v4, v[8:11]')
        a('s_mov_b64 exec, s[%d:%d]' % (ST + 2, ST + 3))
        a.lgkm_issued = c
        a.label(L)

    def build_p(self, a):
        a('v_lshlrev_b32 v2, 4, v0')
        a.wait_vm(self.m_p)
        for sl in range(3):
            D = self.PRAW + 6 * sl
            T = self.PT + 12 * sl
            base = CB + CS * sl + 48
            assert base + 3 * PP <= 65535
            for k in range(4):
                a('v_alignbit_b32 v%d, v%d, v%d, 16' % (T + k, D + k + 1, D + k))
            a('ds_write_b128 v2, %s offset:%d' % (vr(D + 2, 4), base + 3 * PP))
            for k in range(4):
                a('v_mov_b32 v%d, v%d' % (T + 4 + k, D + 1 + k))
            a('ds_write_b128 v2, %s offset:%d' % (vr(T, 4), base))
            for k in range(3):
                a('v_mov_b32 v%d, v%d' % (T + 8 + k, T + 1 + k))
            a('v_alignbit_b32 v%d, v%d, v%d, 16' % (T + 11, D + 5, D + 4))
            a('ds_write_b128 v2, %s offset:%d' % (vr(T + 4, 4), base + PP))
            a('ds_write_b128 v2, %s offset:%d' % (vr(T + 8, 4), base + 2 * PP))

    def build_q(self, a):
        a('v_lshlrev_b32 v2, 4, v0')
        for sl in range(3):
            a('v_add_u32 v%d, %d, v2' % (4 + sl, CB + CS * sl + QO0 - 8))
        a.wait_vm(self.m_q)
        for sl in range(3):
            Q = self.QRAW + 4 * sl
            a('ds_write_b128 v%d, %s offset:%d' % (4 + sl, vr(Q, 4), QO1 - QO0 + 8))
            a('ds_write2_b64 v%d, %s, %s offset0:0 offset1:1' % (4 + sl, vr(Q, 2), vr(Q + 2, 2)))

    def task_setup(self, a):
        a('v_and_b32 v2, 15, v1')
        a('v_lshrrev_b32 v3, 4, v1')
        a('v_and_b32 v4, 3, v1')
        a('v_lshrrev_b32 v5, 2, v2')
        a('v_add_u32 v5, v5, v3')
        a('v_mul_u32_u24 v4, %d, v4' % PP)
        a('v_lshl_add_u32 v28, v5, 4, v4')
        a('v_and_b32 v4, 1, v1')
        a('v_lshrrev_b32 v5, 1, v2')
        a('v_lshlrev_b32 v5, 6, v5')
        a('v_lshlrev_b32 v6, 4, v3')
        a('v_mul_u32_u24 v7, 4640, v4')
        a('v_add_u32 v7, v7, v6')
        a('v_sub_u32 v7, v7, v5')
        a('v_add_u32 v29, %d, v7' % (QO0 + 448))
        a('v_add_u32 v5, v5, v6')
        a('v_lshl_add_u32 v31, v4, 3, v5')
        a('v_sub_u32 v30, %d, v31' % (QO1 + 504))
        a('s_cmp_eq_u32 s%d, 3' % S_W)
        a('s_cselect_b32 s%d, 0, s%d' % (ST + 2, S_W))
        a('s_cmp_eq_u32 s%d, 1' % (ST + 2))
        a('s_cselect_b32 s%d, s%d, s%d' % (ST + 3, self.SCH + 1, self.SCH))
        a('s_cmp_eq_u32 s%d, 2' % (ST + 2))
        a('s_cselect_b32 s%d, s%d, s%d' % (ST + 3, self.SCH + 2, ST + 3))
        a('s_mov_b32 s%d, s%d' % (ST + 4, self.SCH + 1))
        for k in range(2):
            ch = ST + 3 + k
            if not OPT.get('d_early'):
                a('s_lshr_b32 s%d, s%d, 1' % (ST, ch))
                a('s_lshl_b32 s%d, s%d, 2' % (ST, ST))
                a('s_load_dword s%d, s[%d:%d], s%d' % (self.S_D + k, P_D, P_D + 1, ST))
            if k == 0:
                a('s_mul_i32 s%d, s%d, %d' % (ST, ST + 2, CS))
                if CB: a('s_add_u32 s%d, s%d, %d' % (ST, ST, CB))
            else:
                a('s_mov_b32 s%d, %d' % (ST, CB + CS))
            for n in range(3):
                a('v_add_u32 v%d, s%d, v%d' % (self.VADR + 4 * k + n, ST, 28 + n))
            a('s_lshl_b32 s%d, s%d, 12' % (ST + 1, ch))
            a('s_add_u32 s%d, s%d, 0x%x' % (ST + 1, ST + 1, LY.Y2T))
            a('v_add_u32 v%d, s%d, v31' % (self.VADR + 4 * k + 3, ST + 1))
        if not OPT.get('d_early'):
            a('s_waitcnt lgkmcnt(0)')
        for k in range(2):
            a('s_lshl_b32 s%d, s%d, 16' % (ST, self.S_D + k))
            a('s_and_b32 s%d, s%d, 0xffff0000' % (self.S_D + k, self.S_D + k))
            a('s_bitcmp0_b32 s%d, 0' % (ST + 3 + k))
            a('s_cselect_b32 s%d, s%d, s%d' % (self.S_D + k, ST, self.S_D + k))

    def task(self, a, subs, hooks, bg, bg_every):
        freg = {}
        nr = self.FR
        for k, tiles in subs:
            n = max(tiles) + 1
            for p in range(n):
                freg[(k, 'A', p)] = nr; nr += 4
            for p in range(n):
                freg[(k, 'B', p)] = nr; nr += 4
        assert nr <= self.ACC
        areg = {}
        na = self.ACC
        for k, tiles in subs:
            for t in tiles:
                areg[(k, t)] = na; na += 4
        order = []
        maxp = max(max(t) for _, t in subs)
        for p in range(maxp + 1):
            for k, tiles in subs:
                for t in tiles:
                    if t >= p:
                        order.append((k, t, p))
        def rd(key, r):
            k, ab, p = key
            if ab == 'A':
                return 'ds_read_b128 %s, v%d offset:%d' % (vr(freg[key], 4), self.VADR + 4 * k, 512 * p + 64 * r)
            return 'ds_read_b128 %s, v%d offset:%d' % (vr(freg[key], 4), self.VADR + 4 * k + 1, 512 * (7 - p) + 64 * r)
        uses = [((k, 'A', p), (k, 'B', t - p)) for k, t, p in order]
        last = {}; first = {}
        for i, us in enumerate(uses):
            for u in us:
                last[u] = i; first.setdefault(u, i)
        mark = {}
        for key in sorted(first, key=lambda u: first[u]):
            a(rd(key, 0)); mark[key] = a.lgkm_mark()
        cnt = 0
        umark = {}
        UT = 144 - 0
        for r in range(8):
            if r in hooks:
                hooks[r](a)
            waited = -1
            seen = set()
            for i, (k, t, p) in enumerate(order):
                need = max(mark[u] for u in uses[i])
                if need > waited:
                    a.wait_lgkm(need); waited = need
                acc = vr(areg[(k, t)], 4)
                c = acc if (r > 0 or (k, t) in seen) else '0'
                seen.add((k, t))
                a('v_mfma_f32_16x16x32_bf16 %s, %s, %s, %s' % (acc, vr(freg[uses[i][0]], 4), vr(freg[uses[i][1]], 4), c))
                newm = {}
                for u in uses[i]:
                    if last[u] == i and r < 7:
                        a(rd(u, r + 1)); newm[u] = a.lgkm_mark()
                    elif last[u] == i and r == 7 and u[1] == 'A' and u[2] < len(dict(subs)[u[0]]):
                        tt = dict(subs)[u[0]][u[2]]
                        a('ds_read_b64 %s, v%d offset:%d' % (vr(freg[u], 2), self.VADR + 4 * u[0] + 2, 512 * (7 - tt)))
                        umark[(u[0], tt)] = (freg[u], a.lgkm_mark())
                for u, m in newm.items():
                    mark[(u, 'next')] = m
                cnt += 1
                if cnt % bg_every == 0:
                    bg.emit(a, 1)
            for u in list(first):
                if (u, 'next') in mark:
                    mark[u] = mark.pop((u, 'next'))
        X = 2
        for k, tiles in subs:
            for t in sorted(tiles):
                U, m = umark[(k, t)]
                A = areg[(k, t)]
                a.wait_lgkm(m)
                X = 4 if X == 8 else 8
                unpack(a, X + 3, X + 2, U)
                unpack(a, X + 1, X + 0, U + 1)
                for n in range(4):
                    a('v_fma_f32 v%d, v%d, s%d, v%d' % (X + n, X + n, self.S_D + k, A + n))
                a('v_cvt_pk_bf16_f32 v%d, v%d, v%d' % (U, X, X + 1))
                a('v_cvt_pk_bf16_f32 v%d, v%d, v%d' % (U + 1, X + 2, X + 3))
                a('buffer_store_dwordx2 %s, v%d, s[%d:%d], 0 offen offset:%d%s' % (vr(U, 2), self.VADR + 4 * k + 3, R_WS, R_WS + 3, 512 * t, SCS))

    def run(self, a, hooks, bg, bg_every):
        L_b1 = a.newlabel('L_bot1'); L_b2 = a.newlabel('L_bot2'); L_done = a.newlabel('L_cdone')
        a('s_cmp_eq_u32 s%d, 3' % S_W)
        a('s_cbranch_scc1 %s' % L_b2)
        a('s_and_b32 s%d, s%d, 1' % (ST + 4, S_Q))
        a('s_add_u32 s%d, s%d, s%d' % (ST + 4, ST + 4, S_W))
        a('s_cmp_ge_u32 s%d, 3' % (ST + 4))
        a('s_cbranch_scc1 %s' % L_b1)
        c0 = a.vm_issued; b0 = bg.save(); n0 = len(bg.items)
        ends = []; bgi = []
        for lab, subs, every in ((None, [(0, TOP)], bg_every), (L_b1, [(0, BOT)], max(1, bg_every // 2)), (L_b2, [(0, BOT), (1, BOT)], bg_every)):
            a.vm_issued = c0; bg.restore(b0); del bg.items[n0:]
            if lab:
                a.label(lab)
                a('s_nop 1')
            self._bgdrain = True
            self.task_wrapper(a, subs, hooks, bg, every)
            ends.append(a.vm_issued)
            bgi.append((bg.i, len(bg.items)))
            if lab != L_b2:
                a('s_branch %s' % L_done)
        a.label(L_done)
        assert len(set(bgi)) == 1, bgi
        assert ends[0] == ends[1] == ends[2] - 4, ends
        a.vm_issued = min(ends)

    def task_wrapper(self, a, subs, hooks, bg, every):
        self.task(a, subs, hooks, bg, every)

RED = 81920
YL = 143360
class G2:
    ACC, VL = 16, 60
    HB = [144, 192, 64, 144]
    QR, B2R, GR = 112, 122, 132
    B2F, Y, YT = 192, 212, 224
    VLW = 242

    def w2_items(self):
        L = []
        def init(a):
            a('v_lshlrev_b32 v%d, 4, v1' % self.VLW)
            a('s_mul_i32 s101, s%d, 48' % S_J)
            a('s_mul_i32 s100, s%d, 12' % S_W)
            a('s_add_u32 s101, s101, s100')
            a('s_mul_i32 s101, s101, 5120')
            a('s_add_u32 s101, s101, 0x%x' % LY.W2T)
        for n in range(60):
            def f(a, n=n):
                if n == 0: init(a)
                a('buffer_load_dwordx4 %s, v%d, s[%d:%d], s101 offen offset:%d%s' % (ar(4 * n, 4), self.VLW, R_WS, R_WS + 3, 1024 * (n % 4), SCL()))
                if n % 4 == 3:
                    a('s_add_u32 s101, s101, 4096')
                self.m_w2 = a.vm_mark()
            L.append(f)
        return L

    def h_items(self, it):
        L = []
        for ks in range(12):
            def f(a, ks=ks):
                if ks == 0:
                    a('s_add_u32 s100, s%d, %d' % (S_W, 1 + it))
                    a('s_and_b32 s100, s100, 3')
                    a('s_lshl_b32 s95, s%d, 2' % S_Q)
                    a('s_add_u32 s95, s95, s100')
                    a('s_mul_i32 s95, s95, 48')
                    a('s_mul_i32 s100, s%d, 12' % S_W)
                    a('s_add_u32 s95, s95, s100')
                    a('s_lshl_b32 s95, s95, 10')
                    a('s_add_u32 s95, s95, 0x%x' % LY.HF)
                a('buffer_load_dwordx4 %s, v%d, s[%d:%d], s95 offen offset:%d%s' % (vr(self.HB[it] + 4 * ks, 4), self.VLW, R_WS, R_WS + 3, 1024 * (ks % 4), SCL()))
                self.m_h[(it, ks)] = a.vm_mark()
                if ks % 4 == 3 and ks < 11:
                    a('s_add_u32 s95, s95, 4096')
            L.append(f)
        return L

    def epi_addr(self, a):
        a('v_lshlrev_b32 v%d, 4, v1' % self.VL)
        a('v_and_b32 v10, 15, v1')
        a('v_lshrrev_b32 v11, 4, v1')
        a('s_lshl_b32 s%d, s%d, 6' % (ST, S_Q))
        a('s_lshl_b32 s%d, s%d, 4' % (ST + 1, S_W))
        a('s_add_u32 s%d, s%d, s%d' % (ST, ST, ST + 1))
        a('s_mul_i32 s%d, s%d, 160' % (ST + 1, S_J))
        a('v_add_u32 v10, s%d, v10' % ST)
        a('v_lshlrev_b32 v4, 3, v11')
        a('v_add_u32 v4, s%d, v4' % (ST + 1))
        a('v_mul_u32_u24 v3, 1280, v10')
        a('v_add_u32 v3, v3, v4')
        a('v_lshlrev_b32 v5, 2, v10')
        a('v_add_u32 v5, 0x%x, v5' % LY.G)
        a('s_mul_i32 s%d, s%d, %d' % (ST + 1, S_J, 80 * 4096))
        a('s_lshl_b32 s%d, s%d, 1' % (ST, ST))
        a('s_add_u32 s%d, s%d, s%d' % (ST, ST, ST + 1))
        a('s_add_u32 s%d, s%d, 0x%x' % (ST, ST, LY.Y2T))
        a('v_lshrrev_b32 v6, 1, v1')
        a('v_lshlrev_b32 v6, 12, v6')
        a('v_and_b32 v10, 1, v1')
        a('v_lshl_add_u32 v6, v10, 4, v6')
        a('v_add_u32 v6, s%d, v6' % ST)
        a('s_mul_i32 s%d, s%d, 2560' % (ST, S_W))
        a('s_add_u32 s%d, s%d, %d' % (ST, ST, YL))
        a('v_add_u32 v7, s%d, v%d' % (ST, self.VL))
        a('v_lshlrev_b32 v8, 3, v1')
        a('v_add_u32 v8, s%d, v8' % ST)
        for it in range(3):
            a('s_add_u32 s%d, s%d, %d' % (ST, S_W, 1 + it))
            a('s_and_b32 s%d, s%d, 3' % (ST, ST))
            a('s_mul_i32 s%d, s%d, 15360' % (ST, ST))
            a('s_add_u32 s%d, s%d, %d' % (ST, ST, RED + 5120 * it))
            a('v_add_u32 v%d, s%d, v%d' % (12 + it, ST, self.VL))
        a('s_mul_i32 s%d, s%d, 15360' % (ST, S_W))
        a('s_add_u32 s%d, s%d, %d' % (ST, ST, RED))
        a('v_add_u32 v15, s%d, v%d' % (ST, self.VL))

    def epi_input_items(self):
        L = []
        for dt in range(5):
            L.append('global_load_dwordx2 %s, v4, s[%d:%d] offset:%d' % (vr(self.B2R + 2 * dt, 2), P_B2, P_B2 + 1, 32 * dt))
        for dt in range(5):
            L.append('buffer_load_dwordx2 %s, v3, s[%d:%d], 0 offen offset:%d' % (vr(self.QR + 2 * dt, 2), R_X, R_X + 3, 32 * dt))
        def f(a):
            a('buffer_load_dword v%d, v5, s[%d:%d], 0 offen%s' % (self.GR, R_WS, R_WS + 3, SCL()))
            self.m_in = a.vm_mark()
        L.append(f)
        return L

    def y_loads(self, a):
        Y = self.Y
        a('s_mov_b32 s%d, %d' % (ST, 32 * 4096))
        a('s_mov_b32 s%d, %d' % (ST + 1, 64 * 4096))
        a('buffer_load_dwordx4 %s, v6, s[%d:%d], 0 offen%s' % (vr(Y, 4), R_WS, R_WS + 3, SCL()))
        a('buffer_load_dwordx4 %s, v6, s[%d:%d], s%d offen%s' % (vr(Y + 4, 4), R_WS, R_WS + 3, ST, SCL()))
        a('s_mov_b64 exec, 0xffffffff')
        a('buffer_load_dwordx4 %s, v6, s[%d:%d], s%d offen%s' % (vr(Y + 8, 4), R_WS, R_WS + 3, ST + 1, SCL()))
        a('s_mov_b64 exec, -1')
        self.m_y = a.vm_mark()

    def y_stage(self, a):
        Y = self.Y
        a.wait_vm(self.m_y)
        a('ds_write_b128 v7, %s' % vr(Y, 4))
        a('ds_write_b128 v7, %s offset:1024' % vr(Y + 4, 4))
        a('s_mov_b64 exec, 0xffffffff')
        a('ds_write_b128 v7, %s offset:2048' % vr(Y + 8, 4))
        a('s_mov_b64 exec, -1')
        for dt in range(5):
            a('ds_read_b64_tr_b16 %s, v8 offset:%d' % (vr(self.YT + 2 * dt, 2), 512 * dt))

    def iteration(self, a, it, fill, bg=None, bg_every=4):
        acc0 = self.ACC + 20 * (it % 2)
        fi = 0; cnt = 0
        for ks in range(12):
            while (it, ks) not in self.m_h:
                bg.emit(a, 1)
            a.wait_vm(max(self.m_h[(it, ks)], self.m_w2 if (it == 0 and ks == 0) else 0))
            for dt in range(5):
                acc = vr(acc0 + 4 * dt, 4)
                c = acc if ks > 0 else (vr(self.B2F + 4 * dt, 4) if it == 3 else '0')
                a('v_mfma_f32_16x16x32_bf16 %s, %s, %s, %s' % (acc, ar(4 * (5 * ks + dt), 4), vr(self.HB[it] + 4 * ks, 4), c))
                cnt += 1
                if bg is not None and cnt % bg_every == 0 and bg.left():
                    bg.emit(a, 1)
                elif ks >= 2 and fi < len(fill):
                    a(fill[fi]); fi += 1
        while fi < len(fill):
            a(fill[fi]); fi += 1

    def red_writes(self, it):
        acc0 = self.ACC + 20 * (it % 2)
        return ['ds_write_b128 v%d, %s offset:%d' % (12 + it, vr(acc0 + 4 * dt, 4), 1024 * dt) for dt in range(5)]

    def main(self, a, bg, after0, after1, after2):
        self.epi_addr(a)
        bg.add(self.h_items(2))
        bg.add(self.epi_input_items())
        self.iteration(a, 0, [], bg, 3)
        ts(a, 19)
        after0(a)
        bg.add(self.h_items(3))
        self.iteration(a, 1, self.red_writes(0), bg, 3)
        bg.drain(a)
        ts(a, 20)
        after1(a)
        self.iteration(a, 2, self.red_writes(1), bg)
        ts(a, 21)
        a.wait_vm(self.m_in)
        for dt in range(5):
            for d in range(2):
                unpack(a, self.B2F + 4 * dt + 2 * d, self.B2F + 4 * dt + 2 * d + 1, self.B2R + 2 * dt + d)
        after2(a)
        self.y_loads(a)
        G_, OM = 56, 58
        QF, YF, R = 64, 84, 144
        fl = self.red_writes(2)
        fl.append('v_sub_f32 v%d, 1.0, v%d' % (OM, self.GR))
        fl.append('v_mov_b32 v%d, v%d' % (G_, self.GR))
        fl.append('v_cvt_pk_bf16_f32 v%d, v%d, v%d' % (OM, OM, OM))
        fl.append('v_mov_b32 v%d, v%d' % (G_ + 1, self.GR))
        fl.append('v_lshlrev_b32 v%d, 16, v%d' % (OM, OM))
        for n in range(10):
            fl.append('v_lshlrev_b32 v%d, 16, v%d' % (QF + 2 * n, self.QR + n))
            fl.append('v_and_b32 v%d, 0xffff0000, v%d' % (QF + 2 * n + 1, self.QR + n))
        fl.append('v_mov_b32 v%d, v%d' % (OM + 1, OM))
        for n in range(20):
            fl.append('v_mul_f32 v%d, v%d, v%d' % (QF + n, QF + n, G_))
        self.iteration(a, 3, fl, bg)
        ts(a, 22)
        a('s_waitcnt lgkmcnt(0)')
        a('s_barrier')
        ts(a, 23)
        for n in range(15):
            a('ds_read_b128 %s, v15 offset:%d' % (vr(R + 4 * n, 4), 1024 * n))
        m0 = a.lgkm_mark()
        self.y_stage(a)
        my = a.lgkm_mark()
        acc0 = self.ACC + 20
        for sl in range(3):
            a.wait_lgkm(m0 - 10 + 5 * sl)
            for n in range(10):
                a('v_pk_add_f32 %s, %s, %s' % (vr(acc0 + 2 * n, 2), vr(acc0 + 2 * n, 2), vr(R + 20 * sl + 2 * n, 2)))
        for n in range(10):
            a('v_pk_mul_f32 %s, %s, %s' % (vr(acc0 + 2 * n, 2), vr(acc0 + 2 * n, 2), vr(OM, 2)))
        a.wait_lgkm(my)
        for dt in range(5):
            for d in range(2):
                n = 2 * dt + d
                unpack(a, YF + 2 * n, YF + 2 * n + 1, self.YT + n)
            for d in range(2):
                n = 2 * dt + d
                a('v_pk_fma_f32 %s, %s, %s, %s' % (vr(QF + 2 * n, 2), vr(QF + 2 * n, 2), vr(YF + 2 * n, 2), vr(acc0 + 2 * n, 2)))
            for d in range(2):
                n = 2 * dt + d
                a('v_cvt_pk_bf16_f32 v%d, v%d, v%d' % (self.QR + n, QF + 2 * n, QF + 2 * n + 1))
            a('buffer_store_dwordx2 %s, v3, s[%d:%d], 0 offen offset:%d' % (vr(self.QR + 2 * dt, 2), R_OUT, R_OUT + 3, 32 * dt))

LITE = False
def ts(a, idx, real=False):
    if OPT.get('diag') == 3 and OPT.get('dmark') == idx:
        a('s_memrealtime s[12:13]')
        a('s_waitcnt lgkmcnt(0)')
        a('s_mov_b32 s47, s12')
    if not PROF or (LITE and not real):
        return
    a('%s s[12:13]' % ('s_memrealtime' if real else 's_memtime'))
    a('s_waitcnt lgkmcnt(0)')
    a('v_writelane_b32 v%d, s12, %d' % (V_TS, idx))
def ts_flush(a):
    if not PROF:
        return
    a('s_lshl_b32 s12, s2, 2')
    a('s_add_u32 s12, s12, s%d' % S_W)
    a('s_lshl_b32 s12, s12, 7')
    a('s_add_u32 s12, s12, 0x%x' % LY.TS)
    a('v_lshlrev_b32 v2, 2, v1')
    a('s_mov_b64 exec, 0xffffffff')
    a('buffer_store_dword v%d, v2, s[%d:%d], s12 offen' % (V_TS, R_WS, R_WS + 3))
    a('s_mov_b64 exec, -1')

SPIN_MAX = 20000
def token_publish(a):
    L = a.newlabel('L_tokp')
    if OPT.get('cas'):
        a('s_cmp_ge_u32 s2, 8')
        a('s_cbranch_scc1 %s' % L)
        a('s_cmp_lg_u32 s%d, 3' % S_W)
        a('s_cbranch_scc1 %s' % L)
        a('s_memrealtime s[12:13]')
        a('s_waitcnt lgkmcnt(0)')
        a('s_or_b32 s12, s12, 1')
        a('v_mov_b32 v4, s12')
        a('v_mov_b32 v5, s13')
        a('v_mov_b32 v6, 0')
        a('v_mov_b32 v7, 0')
        c = a.vm_issued
        a('s_mov_b64 exec, 1')
        a('global_atomic_cmpswap_x2 v6, v[4:7], s[%d:%d] sc1' % (P_DBG, P_DBG + 1))
        a('s_mov_b64 exec, -1')
        a('s_nop 1')
        a.vm_issued = c
        a.label(L)
        return
    a('s_add_u32 s12, s2, s%d' % S_W)
    a('s_cmp_lg_u32 s12, 0')
    a('s_cbranch_scc1 %s' % L)
    a('s_memrealtime s[12:13]')
    a('s_waitcnt lgkmcnt(0)')
    a('s_or_b32 s12, s12, 1')
    a('v_mov_b32 v2, s12')
    a('v_mov_b32 v3, s13')
    a('v_mov_b32 v4, 0')
    c = a.vm_issued
    a('s_mov_b64 exec, 1')
    a(('global_store_dwordx2 v4, v[2:3], s[%d:%d]%%s' % (P_DBG, P_DBG + 1)) % OPT['psc'])
    a('s_mov_b64 exec, -1')
    a.vm_issued = c
    a.label(L)
def token_load(a):
    a('v_mov_b32 v%d, 0' % V_PA)
    a(('global_load_dwordx2 %s, v%d, s[%d:%d]%%s' % (vr(V_TOK, 2), V_PA, P_DBG, P_DBG + 1)) % OPT['psc'])
    return a.vm_mark()
def token_check(a, mark):
    L = a.newlabel('L_tok'); Lok = a.newlabel('L_tokok')
    a.wait_vm(mark)
    a('s_mov_b32 s14, %d' % SPIN_MAX)
    a.label(L)
    a('v_readfirstlane_b32 s%d, v%d' % (TOK, V_TOK))
    a('v_readfirstlane_b32 s%d, v%d' % (TOK + 1, V_TOK + 1))
    a('s_cmp_lg_u32 s%d, 0' % TOK)
    a('s_cbranch_scc1 %s' % Lok)
    a('s_sub_u32 s14, s14, 1')
    a('s_cmp_eq_u32 s14, 0')
    a('s_cbranch_scc1 %s' % Lok)
    a('s_sleep 2')
    c = a.vm_issued
    a(('global_load_dwordx2 %s, v%d, s[%d:%d]%%s' % (vr(V_TOK, 2), V_PA, P_DBG, P_DBG + 1)) % OPT['psc'])
    a('s_waitcnt vmcnt(0)')
    a.vm_issued = c
    a('s_branch %s' % L)
    a.label(Lok)
CNT = 3 * CS
def publish_cnt(a, mark, cnt, s_idx_expr):
    a.wait_vm(mark)
    a('v_mov_b32 v%d, %d' % (V_FA, CNT + 16 * cnt))
    a('v_mov_b32 v%d, 1' % V_TOK)
    a('s_mov_b64 exec, 1')
    a('ds_add_rtn_u32 v%d, v%d, v%d' % (V_TOK + 1, V_FA, V_TOK))
    a('s_mov_b64 exec, -1')
    a('s_waitcnt lgkmcnt(0)')
    a('v_readfirstlane_b32 s12, v%d' % (V_TOK + 1))
    flag_store(a, s_idx_expr, 12, 3)
def flag_store(a, s_idx_expr, sreg=S_W, val=0):
    L = a.newlabel('L_fs')
    a('s_cmp_lg_u32 s%d, %d' % (sreg, val))
    a('s_cbranch_scc1 %s' % L)
    s_idx_expr(a)
    a('v_mov_b32 v%d, s%d' % (V_TOK, TOK))
    a('v_mov_b32 v%d, s%d' % (V_TOK + 1, TOK + 1))
    a('v_mov_b32 v%d, s12' % V_FA)
    c = a.vm_issued
    a('s_mov_b64 exec, 1')
    a(('buffer_store_dwordx2 %s, v%d, s[%d:%d], 0 offen%%s' % (vr(V_TOK, 2), V_FA, R_WS, R_WS + 3)) % OPT['psc'])
    a('s_mov_b64 exec, -1')
    a.vm_issued = c
    a.label(L)
def poll_issue(a, base_expr, n):
    base_expr(a)
    a('v_and_b32 v%d, %d, v1' % (V_PA, n - 1))
    a('v_lshlrev_b32 v%d, %d, v%d' % (V_PA, FS(), V_PA))
    a('v_add_u32 v%d, s12, v%d' % (V_PA, V_PA))
    a(('buffer_load_dwordx2 %s, v%d, s[%d:%d], 0 offen%%s' % (vr(V_POLL, 2), V_PA, R_WS, R_WS + 3)) % OPT['psc'])
    return a.vm_mark()
def poll_check(a, mark):
    if OPT.get('nopoll'): return
    L = a.newlabel('L_poll'); Lok = a.newlabel('L_pollok')
    a.wait_vm(mark)
    a('s_mov_b32 s14, %d' % SPIN_MAX)
    a.label(L)
    a('v_cmp_eq_u64 vcc, s[%d:%d], %s' % (TOK, TOK + 1, vr(V_POLL, 2)))
    a('s_nop 0')
    a('s_cmp_eq_u64 vcc, -1')
    a('s_cbranch_scc1 %s' % Lok)
    a('s_sub_u32 s14, s14, 1')
    a('s_cmp_eq_u32 s14, 0')
    a('s_cbranch_scc1 %s' % Lok)
    a('s_sleep %d' % OPT.get('psleep', 1))
    c = a.vm_issued
    a(('buffer_load_dwordx2 %s, v%d, s[%d:%d], 0 offen%%s' % (vr(V_POLL, 2), V_PA, R_WS, R_WS + 3)) % OPT['psc'])
    a('s_waitcnt vmcnt(0)')
    a.vm_issued = c
    a('s_branch %s' % L)
    a.label(Lok)

FB = 0xF00000
F1, F2, F3 = FB, FB + 0x10000, FB + 0x20000
def FS(): return OPT.get('fs', 7)
def fbase_j(F):
    def f(a):
        a('s_lshl_b32 s12, s%d, %d' % (S_J, FS() + 5))
        a('s_add_u32 s12, s12, 0x%x' % F)
    return f
def fown_jq(F):
    def f(a):
        fbase_j(F)(a)
        a('s_lshl_b32 s13, s%d, %d' % (S_Q, FS()))
        a('s_add_u32 s12, s12, s13')
    return f
def fown_g1(a):
    a('s_lshl_b32 s12, s%d, %d' % (S_R, FS() + 4))
    a('s_lshl_b32 s13, s%d, %d' % (S_CB, FS()))
    a('s_add_u32 s12, s12, s13')
    a('s_add_u32 s12, s12, 0x%x' % F2)
def fbase_g2(a):
    a('s_lshr_b32 s12, s%d, 1' % S_Q)
    a('s_lshl_b32 s12, s12, %d' % (FS() + 4))
    a('s_add_u32 s12, s12, 0x%x' % F2)

def fused_body(a):
    p = Prep(); g = G1(); c = Conv(); h = G2()
    h.m_h = {}
    if OPT.get('gate_late', 0): p.mode = 'kv'
    spr = OPT.get('spr', 0)
    nd = OPT.get('dma_first', 0)
    def stamp(a):
        if PROF:
            a('v_mov_b32 v%d, 0' % V_TS)
            a('v_writelane_b32 v%d, s46, 30' % V_TS)
        ts(a, 0)
    if OPT.get('fast_start', 0):
        a('s_waitcnt lgkmcnt(0)')
        srd(a, R_K, P_K, NB_SD)
        srd(a, R_V, P_V, NB_SD)
        srd(a, R_W2, P_W2, 1536 * 1280)
        p.loads(a)
        stamp(a)
        token_publish(a)
        g.setup(a)
        srd(a, R_X, P_Q, NB_SD)
        srd(a, R_W1, P_W1, 640 * 3072)
        srd(a, R_WS, P_WS, 0x10000000)
        srd(a, R_OUT, P_OUT, NB_SD)
    else:
        g.setup(a)
        srds(a)
        stamp(a)
        for s_ in range(nd):
            g.dma(a, s_)
        srds2(a)
        token_publish(a)
        if spr:
            p.addr(a)
        else:
            p.loads(a)
    g.bias_load(a)
    if OPT['prep_stage'] < 0:
        for s_ in range(nd, OPT.get('e_dma', 1)):
            g.dma(a, s_)
        g.setup2(a)
        p.compute(a)
        for s_ in range(OPT.get('e_dma', 1), OPT.get('e_dma2', 2)):
            g.dma(a, s_)
        a('s_waitcnt lgkmcnt(0)')
        a('s_barrier')
        p.transpose(a)
        for s_ in range(OPT.get('e_dma2', 2), OPT['lead']):
            g.dma(a, s_)
    else:
        for s_ in range(nd, OPT['lead']):
            g.dma(a, s_)
        g.setup2(a)
    m_tok = token_load(a)
    c.channels(a)
    g.unpack_bias(a)
    a('s_waitcnt lgkmcnt(0)')
    ts(a, 1)
    st = {}
    w2bg = BG(h.w2_items())
    ps = OPT['prep_stage']
    pre, post, mid, bgs = {}, {}, {}, {}
    def addhook(d, i, f):
        old = d.get(i)
        d[i] = (lambda a, old=old, f=f: ((old(a) if old else None), f(a)))
    if spr:
        items = p.load_items()
        npre = OPT.get('spr_pre', 0)
        for x in items[:npre]:
            do(a, x)
        items = items[npre:]
        i_ = OPT.get('spr0', 0)
        while items:
            bgs[i_] = items[:spr]; items = items[spr:]; i_ += 1
        assert i_ <= ps + 1, (i_, ps)
    if ps >= 0:
        addhook(mid, ps, p.compute)
        addhook(mid if OPT.get('tr_stage') else post, OPT.get('tr_stage', ps + 1), p.transpose)
    addhook(mid, OPT.get('p_ld', 1), c.load_p)
    if OPT.get('gate_late', 0):
        addhook(mid, OPT['gate_late'], p.gate_loads)
        addhook(mid, OPT.get('gate_cp', 7), p.gate_compute)
    pre[OPT['f1_pub']] = lambda: p.m_st
    def pub_f1(a):
        token_check(a, m_tok)
        flag_store(a, fown_jq(F1))
    addhook(post, OPT['f1_pub'], pub_f1)
    if OPT['f1_issue'] < 10:
        addhook(mid, OPT['f1_issue'], lambda a: st.__setitem__('f1', poll_issue(a, fbase_j(F1), 32)))
    if not OPT.get('late_p', 0):
        addhook(post, 7, c.zero_fill)
        addhook(post, 8, c.build_p)
    else:
        addhook(post, 8, c.zero_fill)
    def chk_f1(a):
        poll_check(a, st['f1'])
        ts(a, 14)
        c.load_q(a)
    if OPT['f1_chk'] < 10:
        addhook(mid, OPT['f1_chk'], chk_f1)
    n1 = OPT['w2_g1']
    if OPT['f1_chk'] < 9:
        items = [(lambda a: w2bg.emit(a, 1))] * n1
        bgs[9] = items
    bgs[10] = w2bg if OPT.get('w2_tail', 1) else None
    if PROF:
        for i in range(10):
            addhook(mid, i, lambda a, i=i: ts(a, 3 + i))
    tail = BG([(lambda a: w2bg.emit(a, 1)) if k % 4 == 3 else (lambda a: None) for k in range(12)])
    bgs[10] = tail if OPT['f1_chk'] < 10 else None
    g.main(a, pre, post, mid, bgs)
    ts(a, 13)
    g.epilogue(a, w2bg, OPT['w2_gelu'] // 6 if OPT['f1_chk'] < 10 else 0)
    m_hst = a.vm_mark()
    ts(a, 15)
    if OPT['f1_issue'] >= 10:
        st['f1'] = poll_issue(a, fbase_j(F1), 32)
    if OPT.get('late_p', 0):
        c.PT = 36
        c.build_p(a)
    if OPT['f1_chk'] >= 10:
        a.wait_vm(m_hst)
        a('s_barrier')
        flag_store(a, fown_g1)
        chk_f1(a)
        w2bg.emit(a, OPT.get('w2_gap', 8))
    c.build_q(a)
    c.task_setup(a)
    w2bg.emit(a, 2)
    a('s_waitcnt lgkmcnt(0)')
    if not OPT.get('cnt2'):
        a.wait_vm(m_hst)
    a('s_barrier')
    if not OPT.get('cnt2') and OPT['f1_chk'] < 10:
        flag_store(a, fown_g1)
    ts(a, 16)
    hooks = {}
    if OPT.get('cnt2'):
        hooks[OPT['f2_pub']] = lambda a: publish_cnt(a, m_hst, 0, fown_g1)
    hooks[OPT['f2_issue']] = lambda a: st.__setitem__('f2', poll_issue(a, fbase_g2, 16))
    def chk_f2(a):
        w2bg.drain(a)
        poll_check(a, st['f2'])
        w2bg.add(h.h_items(0) + h.h_items(1))
    if OPT['f2_chk'] < 8:
        hooks[OPT['f2_chk']] = chk_f2
    def tw(a, subs, hooks_, bg, every):
        h.m_h.clear()
        c.task(a, subs, hooks_, bg, every)
    c.task_wrapper = tw
    c.run(a, hooks, w2bg, OPT.get('conv_every', 4))
    m_yst = a.vm_mark()
    ts(a, 17)
    if OPT['f2_chk'] >= 8:
        chk_f2(a)
    def pub_f3(a):
        if OPT.get('cnt3'):
            publish_cnt(a, m_yst, 1, fown_jq(F3))
            return
        a.wait_vm(m_yst)
        a('s_barrier')
        flag_store(a, fown_jq(F3))
    nop = lambda a: None
    iss = lambda a: st.__setitem__('f3', poll_issue(a, fbase_j(F3), 32))
    chk = lambda a: poll_check(a, st['f3'])
    if OPT.get('f3_late', 0):
        h.main(a, w2bg, nop, pub_f3, lambda a: (iss(a), chk(a)))
    else:
        h.main(a, w2bg, pub_f3, iss, chk)
    if OPT.get('diag') == 1:
        L = a.newlabel('L_dg')
        a('s_memrealtime s[12:13]')
        a('s_waitcnt lgkmcnt(0)')
        a('s_sub_u32 s14, s12, s46')
        a('s_add_u32 s14, s14, s12')
        a.label(L)
        a('s_memrealtime s[12:13]')
        a('s_waitcnt lgkmcnt(0)')
        a('s_sub_u32 s13, s14, s12')
        a('s_cmp_gt_i32 s13, 0')
        a('s_cbranch_scc1 %s' % L)
    if OPT.get('diag') == 2:
        L = a.newlabel('L_dg')
        a('s_memtime s[12:13]')
        a('s_waitcnt lgkmcnt(0)')
        a('s_add_u32 s14, s12, 20000')
        a.label(L)
        a('s_memtime s[12:13]')
        a('s_waitcnt lgkmcnt(0)')
        a('s_sub_u32 s13, s14, s12')
        a('s_cmp_gt_i32 s13, 0')
        a('s_cbranch_scc1 %s' % L)
    if OPT.get('diag') == 3:
        L = a.newlabel('L_dg')
        a('s_memrealtime s[12:13]')
        a('s_waitcnt lgkmcnt(0)')
        a('s_sub_u32 s14, s47, s46')
        a('s_add_u32 s14, s14, s12')
        a.label(L)
        a('s_memrealtime s[12:13]')
        a('s_waitcnt lgkmcnt(0)')
        a('s_sub_u32 s13, s14, s12')
        a('s_cmp_gt_i32 s13, 0')
        a('s_cbranch_scc1 %s' % L)
    ts(a, 24)
    ts(a, 31, True)
    ts_flush(a)

def build_fused(path):
    name = NAME + '_kernel'
    a = Asm()
    end = 'END_' + name
    prologue(a, end)
    fused_body(a)
    abl = OPT.get('abl', '')
    if abl:
        def kill(t):
            if 'k' in abl and (('s[%d:%d]' % (R_K, R_K + 3)) in t or ('s[%d:%d]' % (R_V, R_V + 3)) in t or ('s[%d:%d]' % (R_W2, R_W2 + 3)) in t): return True
            if 's' in abl and t.startswith('buffer_store_dwordx4 v[18') or ('s' in abl and t.startswith('buffer_store_dwordx4 v[19')): return True
            if 'h' in abl and t.startswith('buffer_store_dwordx4 v[9') or ('h' in abl and t.startswith('buffer_store_dwordx4 v[10')): return True
            if 'c' in abl and t.startswith('v_mfma') and ' a[' not in t: return True
            if 'C' in abl and (t.startswith('v_mfma') and ' a[' not in t or (t.startswith('ds_read_b128 v') and ('v16 ' in t or 'v17 ' in t or 'v20 ' in t or 'v21 ' in t))): return True
            if 'e' in abl and (t.startswith('v_exp') or t.startswith('v_rcp') or t.startswith('v_pk')): return True
            if 'w' in abl and 's101 offen' in t: return True
            if 'H' in abl and 's95 offen' in t: return True
            if 'g' in abl and t.startswith('v_mfma') and ', a[' in t and ', v[' in t.split(', a[')[1][:20] and 'a[19' not in t and 'a[2' not in t: return False
            if 'D' in abl and t.endswith(' lds'): return True
            return False
        a.items = [it for it in a.items if not (isinstance(it, Ins) and kill(it.text))]
    a.label(end)
    a('s_endpgm')
    a.raw('.p2align 12\n.fill %d, 4, 0xbf800000' % (1024 if not OPT.get('abl') else 5120))
    s = HEADER
    s += '; @launch grid=(256,1,1) block=(256,1,1) lds=163840\n'
    s += '.amdgcn_target "amdgcn-amd-amdhsa--gfx950"\n'
    s += '.text\n.globl %s\n.p2align 8\n.type %s,@function\n%s:\n' % (name, name, name) + a.text()
    s += '.section .rodata,"a"\n.p2align 6\n.amdhsa_kernel %s\n' % name
    s += '  .amdhsa_next_free_vgpr 512\n  .amdhsa_next_free_sgpr 102\n  .amdhsa_accum_offset 256\n'
    s += '  .amdhsa_group_segment_fixed_size 0\n  .amdhsa_kernarg_size 120\n  .amdhsa_user_sgpr_count 2\n'
    s += '  .amdhsa_user_sgpr_kernarg_segment_ptr 1\n  .amdhsa_system_sgpr_workgroup_id_x 1\n.end_amdhsa_kernel\n'
    open(path, 'w').write(s)

if __name__ == '__main__':
    for kv in sys.argv[1:]:
        k_, v_ = kv.split('=')
        OPT[k_] = int(v_) if v_.lstrip('-').isdigit() else v_.replace('_', ' ')
    build_fused('k_fused.s')
    PROF = True
    build_fused('k_fused_prof.s')
```

```python
import sys, struct
from asmlib import *
import layout as LY

NAME = 'gated_mix__ssm_conv_h3__dense_activation_gelu__prompt'
HEADER = open('cdna_kernels/%s.s.ref' % NAME).read().split('; Override launch')[0]
OPT = dict(nt=1, scl=' sc1', lead=3, prep_stage=0, f1_pub=3, f1_issue=6, f1_chk=8, late_p=1, gate_late=5, p_ld=3, d_early=1, gate4=1, fast_start=1, psc=' sc1', cas=1, cnt2=0, cnt3=0, f2_pub=2, rot=1, arr=1, f2_issue=4, f2_chk=6, w2_g1=8, w2_gelu=18)

S_XCD, S_IDX, S_Q, S_J, S_R, S_CB, S_W = 3, 4, 5, 6, 7, 8, 9
TOK = 10
P_Q, P_K, P_V, P_SK, P_HK, P_D, P_BX, P_W1, P_B1, P_W2, P_B2, P_GW, P_OUT, P_DBG, P_WS = range(16, 46, 2)
R_X, R_K, R_V, R_W1, R_W2, R_WS, R_OUT, R_HK = range(48, 80, 4)
ST = 80
NB_SD = 2048 * 1280
SCS = ' sc1'
def NT():
    return ' nt' if OPT.get('nt', 0) else ''
def SCL():
    return OPT.get('scl', '')
V_FA, V_TOK, V_POLL, V_PA, V_TS = 243, 244, 246, 248, 251
PROF = False

def f32hex(x):
    return '0x%08x' % struct.unpack('<I', struct.pack('<f', x))[0]
def srd(a, r, p, nbytes):
    a('s_mov_b32 s%d, s%d' % (r, p))
    a('s_and_b32 s%d, s%d, 0xffff' % (r + 1, p + 1))
    a('s_mov_b32 s%d, 0x%x' % (r + 2, nbytes))
    a('s_mov_b32 s%d, 0x20000' % (r + 3))
def scsel(a, dst, vt, vf):
    a('s_mov_b32 s%d, %d' % (dst, vf))
    a('s_cmov_b32 s%d, %d' % (dst, vt))
def unpack(a, dst_lo, dst_hi, src):
    a('v_lshlrev_b32 v%d, 16, v%d' % (dst_lo, src))
    a('v_and_b32 v%d, 0xffff0000, v%d' % (dst_hi, src))
def do(a, x):
    if callable(x): x(a)
    else: a(x)

class BG:
    def __init__(self, items=None):
        self.items = list(items or []); self.i = 0
    def add(self, items): self.items += items
    def left(self): return len(self.items) - self.i
    def emit(self, a, n=1):
        for _ in range(n):
            if self.i < len(self.items):
                do(a, self.items[self.i]); self.i += 1
    def drain(self, a): self.emit(a, self.left())
    def save(self): return self.i
    def restore(self, i): self.i = i

CODE_PIECES = 7
def prologue(a, end_label):
    if PROF or OPT.get('diag'): a('s_memrealtime s[46:47]')
    a('s_cmp_ge_u32 s2, 256')
    a('s_cbranch_scc1 %s' % end_label)
    a('s_load_dwordx16 s[16:31], s[0:1], 0')
    a('s_load_dwordx8 s[32:39], s[0:1], 64')
    a('s_load_dwordx4 s[40:43], s[0:1], 96')
    a('s_load_dwordx2 s[44:45], s[0:1], 112')
    a('s_and_b32 s%d, s2, 7' % S_XCD)
    a('s_lshr_b32 s%d, s2, 3' % S_IDX)
    a('s_getpc_b64 s[12:13]')
    a('s_and_b32 s14, s%d, 7' % S_IDX)
    a('s_min_u32 s14, s14, %d' % (CODE_PIECES - 1))
    a('s_lshl_b32 s14, s14, 12')
    a('s_add_u32 s12, s12, s14')
    a('s_addc_u32 s13, s13, 0')
    a('v_lshlrev_b32 v2, 4, v0')
    a('v_mov_b32 v3, s13')
    a('v_add_co_u32 v2, vcc, s12, v2')
    a('v_addc_co_u32 v3, vcc, 0, v3, vcc')
    a('global_load_dwordx4 v[252:255], v[2:3], off')
    a('v_lshrrev_b32 v2, 6, v0')
    a('v_and_b32 v1, 63, v0')
    a('s_and_b32 s%d, s%d, 3' % (S_Q, S_IDX))
    a('v_readfirstlane_b32 s%d, v2' % S_W)
    a('s_lshl_b32 s%d, s%d, 2' % (ST, S_XCD))
    a('s_lshr_b32 s%d, s%d, 2' % (S_J, S_IDX))
    if OPT['arr']:
        a('s_lshr_b32 s%d, s%d, 1' % (S_R, S_XCD))
        a('s_lshl_b32 s%d, s%d, 2' % (S_R, S_R))
        a('s_add_u32 s%d, s%d, s%d' % (S_R, S_R, S_Q))
        a('s_and_b32 s%d, s%d, 1' % (S_CB, S_XCD))
        a('s_lshl_b32 s%d, s%d, 3' % (S_CB, S_CB))
        a('s_add_u32 s%d, s%d, s%d' % (S_CB, S_CB, S_J))
    else:
        a('s_and_b32 s%d, s%d, 1' % (S_R, S_IDX))
        a('s_lshl_b32 s%d, s%d, 1' % (ST + 1, S_XCD))
        a('s_add_u32 s%d, s%d, s%d' % (S_R, S_R, ST + 1))
        a('s_lshr_b32 s%d, s%d, 1' % (S_CB, S_IDX))
    a('s_mul_i32 s15, s%d, 3' % S_Q)
    a('s_add_u32 s15, s15, s%d' % S_J)
    a('s_sub_u32 s14, s15, 10')
    a('s_cmp_ge_u32 s15, 10')
    a('s_cselect_b32 s15, s14, s15')
    if not OPT['rot']:
        a('s_mov_b32 s15, 0')
    a('s_add_u32 s%d, s%d, s%d' % (S_Q, S_Q, ST))

def srds(a):
    a('s_waitcnt lgkmcnt(0)')
    srd(a, R_X, P_Q, NB_SD)
    srd(a, R_W1, P_W1, 640 * 3072)
def srds2(a):
    srd(a, R_K, P_K, NB_SD)
    srd(a, R_V, P_V, NB_SD)
    srd(a, R_W2, P_W2, 1536 * 1280)
    srd(a, R_WS, P_WS, 0x10000000)
    srd(a, R_OUT, P_OUT, NB_SD)

class Prep:
    LKV, LW2 = 0, 10240
    KR, VR_, SKR, T = 120, 148, 164, 180

    def addr(self, a):
        L_gate = a.newlabel('L_gate'); L_join = a.newlabel('L_pl')
        a('s_cmp_eq_u32 s%d, 3' % S_W)
        a('s_cbranch_scc1 %s' % L_gate)
        a('v_min_u32 v14, 159, v0')
        a('v_mul_u32_u24 v12, 6554, v14')
        a('v_lshrrev_b32 v12, 16, v12')
        a('v_mul_u32_u24 v13, 10, v12')
        a('v_sub_u32 v13, v14, v13')
        a('s_mul_i32 s%d, s%d, %d' % (ST, S_Q, 64 * 1280))
        a('s_mul_i32 s%d, s%d, 160' % (ST + 1, S_J))
        a('s_add_u32 s%d, s%d, s%d' % (ST, ST, ST + 1))
        a('v_mul_u32_u24 v238, 5120, v12')
        a('v_lshl_add_u32 v238, v13, 4, v238')
        a('v_add_u32 v238, s%d, v238' % ST)
        a('v_subrev_u32 v239, 3840, v238')
        a('s_mul_i32 s%d, s%d, 640' % (ST + 1, S_J))
        a('v_lshlrev_b32 v240, 6, v13')
        a('v_add_u32 v240, s%d, v240' % (ST + 1))
        a('s_branch %s' % L_join)
        a.label(L_gate)
        a('v_lshrrev_b32 v12, 3, v1')
        a('v_and_b32 v13, 7, v1')
        a('s_lshl_b32 s%d, s%d, 7' % (ST, S_R))
        a('s_lshl_b32 s%d, s%d, 3' % (ST + 1, S_CB))
        a('s_add_u32 s%d, s%d, s%d' % (ST, ST, ST + 1))
        a('v_add_u32 v12, s%d, v12' % ST)
        a('v_mul_u32_u24 v238, 1280, v12')
        a('v_lshlrev_b32 v239, 4, v13')
        a('v_add_u32 v238, v238, v239')
        a('v_mov_b32 v240, 0')
        a.label(L_join)

    def load_items(self):
        KR, VR_, SKR = self.KR, self.VR_, self.SKR
        kv = []
        for r in range(4):
            kv.append('buffer_load_dwordx4 %s, v238, s[%d:%d], 0 offen offset:%d%s' % (vr(KR + 12 + 4 * r, 4), R_K, R_K + 3, 1280 * r, NT()))
        for r in range(3):
            kv.append('buffer_load_dwordx4 %s, v239, s[%d:%d], 0 offen offset:%d%s' % (vr(KR + 4 * r, 4), R_K, R_K + 3, 1280 * r, NT()))
        for r in range(4):
            kv.append('buffer_load_dwordx4 %s, v238, s[%d:%d], 0 offen offset:%d%s' % (vr(VR_ + 4 * r, 4), R_V, R_V + 3, 1280 * r, NT()))
        for r in range(4):
            kv.append('buffer_load_dwordx4 %s, v238, s[%d:%d], 0 offen offset:%d%s' % (ar(4 * r, 4), R_W2, R_W2 + 3, 1280 * r, NT()))
        for i in range(4):
            kv.append('global_load_dwordx4 %s, v240, s[%d:%d] offset:%d' % (vr(SKR + 4 * i, 4), P_SK, P_SK + 1, 16 * i))
        kv.append(kv[-1])
        gt = []
        for n in range(10):
            gt.append('buffer_load_dwordx4 %s, v238, s[%d:%d], 0 offen offset:%d' % (vr(120 + 4 * n, 4), R_X, R_X + 3, 128 * n))
            gt.append('global_load_dwordx4 %s, v239, s[%d:%d] offset:%d' % (ar(16 + 4 * n, 4), P_GW, P_GW + 1, 128 * n))
        L = []
        for k in range(20):
            def f(a, k=k):
                Lg = a.newlabel('L_ig'); Lj = a.newlabel('L_ij')
                a('s_cmp_eq_u32 s%d, 3' % S_W)
                a('s_cbranch_scc1 %s' % Lg)
                a(kv[k])
                c = a.vm_issued
                a('s_branch %s' % Lj)
                a.label(Lg)
                a(gt[k])
                a.vm_issued = c
                a.label(Lj)
                self.m_all = c
            L.append(f)
        return L

    mode = 'both'
    def gate_loads1(self, a):
        L = a.newlabel('L_gl')
        c = a.vm_issued
        a('s_cmp_lg_u32 s%d, 3' % S_W)
        a('s_cbranch_scc1 %s' % L)
        a('v_lshrrev_b32 v14, 3, v1')
        a('v_and_b32 v15, 7, v1')
        a('s_lshl_b32 s%d, s%d, 7' % (ST, S_R))
        a('s_lshl_b32 s%d, s%d, 3' % (ST + 1, S_CB))
        a('s_add_u32 s%d, s%d, s%d' % (ST, ST, ST + 1))
        a('v_add_u32 v14, s%d, v14' % ST)
        a('v_mul_u32_u24 v4, 1280, v14')
        a('v_lshlrev_b32 v5, 4, v15')
        a('v_add_u32 v4, v4, v5')
        for n in range(10):
            a('buffer_load_dwordx4 %s, v4, s[%d:%d], 0 offen offset:%d' % (vr(100 + 4 * n, 4), R_X, R_X + 3, 128 * n))
            a('global_load_dwordx4 %s, v5, s[%d:%d] offset:%d' % (vr(160 + 4 * n, 4), P_GW, P_GW + 1, 128 * n))
        a.label(L)
        a.vm_issued = c
        self.m_gate = c
    def gate_compute1(self, a):
        L = a.newlabel('L_gc')
        c = a.vm_issued
        a('s_cmp_lg_u32 s%d, 3' % S_W)
        a('s_cbranch_scc1 %s' % L)
        a.wait_vm(self.m_gate)
        a('v_mov_b32 v10, 0')
        a('v_mov_b32 v11, 0')
        for n in range(40):
            acc = 10 + (n & 1)
            a('v_dot2_f32_bf16 v%d, v%d, v%d, v%d' % (acc, 100 + n, 160 + n, acc))
        a('s_nop 3')
        a('v_add_f32 v10, v10, v11')
        a('v_add_f32_dpp v10, v10, v10 quad_perm:[1,0,3,2] row_mask:0xf bank_mask:0xf')
        a('v_add_f32_dpp v10, v10, v10 quad_perm:[2,3,0,1] row_mask:0xf bank_mask:0xf')
        a('v_add_f32_dpp v10, v10, v10 row_half_mirror row_mask:0xf bank_mask:0xf')
        a('v_cvt_pk_bf16_f32 v10, v10, v10')
        a('v_lshlrev_b32 v10, 16, v10')
        a('v_mul_f32 v10, 0xbfb8aa3b, v10')
        a('v_exp_f32 v10, v10')
        a('v_add_f32 v10, 1.0, v10')
        a('v_rcp_f32 v10, v10')
        a('v_cvt_pk_bf16_f32 v10, v10, v10')
        a('v_lshlrev_b32 v10, 16, v10')
        a('v_lshlrev_b32 v4, 2, v14')
        a('v_add_u32 v4, 0x%x, v4' % LY.G)
        a('v_cmp_eq_u32 vcc, 0, v15')
        a('s_and_saveexec_b64 s[%d:%d], vcc' % (ST + 2, ST + 3))
        a('buffer_store_dword v10, v4, s[%d:%d], 0 offen%s' % (R_WS, R_WS + 3, SCS))
        a('s_mov_b64 exec, s[%d:%d]' % (ST + 2, ST + 3))
        a.label(L)
        a.vm_issued = c

    def gate_loads(self, a):
        if not OPT.get('gate4'): return self.gate_loads1(a)
        a('v_lshrrev_b32 v14, 5, v1')
        a('v_and_b32 v15, 31, v1')
        a('s_lshl_b32 s%d, s%d, 7' % (ST, S_R))
        a('s_lshl_b32 s%d, s%d, 3' % (ST + 1, S_CB))
        a('s_add_u32 s%d, s%d, s%d' % (ST, ST, ST + 1))
        a('s_lshl_b32 s%d, s%d, 1' % (ST + 1, S_W))
        a('s_add_u32 s%d, s%d, s%d' % (ST, ST, ST + 1))
        a('v_add_u32 v14, s%d, v14' % ST)
        a('v_mul_u32_u24 v4, 1280, v14')
        a('v_lshlrev_b32 v5, 3, v15')
        a('v_add_u32 v4, v4, v5')
        for n in range(5):
            a('buffer_load_dwordx2 %s, v4, s[%d:%d], 0 offen offset:%d' % (vr(100 + 2 * n, 2), R_X, R_X + 3, 256 * n))
            a('global_load_dwordx2 %s, v5, s[%d:%d] offset:%d' % (vr(110 + 2 * n, 2), P_GW, P_GW + 1, 256 * n))
        self.m_gate = a.vm_mark()
    def gate_compute(self, a):
        if not OPT.get('gate4'): return self.gate_compute1(a)
        a.wait_vm(self.m_gate)
        a('v_mov_b32 v10, 0')
        a('v_mov_b32 v11, 0')
        for n in range(10):
            acc = 10 + (n & 1)
            a('v_dot2_f32_bf16 v%d, v%d, v%d, v%d' % (acc, 100 + n, 110 + n, acc))
        a('s_nop 3')
        a('v_add_f32 v10, v10, v11')
        a('v_add_f32_dpp v10, v10, v10 quad_perm:[1,0,3,2] row_mask:0xf bank_mask:0xf')
        a('v_add_f32_dpp v10, v10, v10 quad_perm:[2,3,0,1] row_mask:0xf bank_mask:0xf')
        a('v_add_f32_dpp v10, v10, v10 row_half_mirror row_mask:0xf bank_mask:0xf')
        a('v_add_f32_dpp v10, v10, v10 row_mirror row_mask:0xf bank_mask:0xf')
        a('v_add_f32_dpp v10, v10, v10 row_bcast:15 row_mask:0xa bank_mask:0xf')
        a('v_cvt_pk_bf16_f32 v10, v10, v10')
        a('v_lshlrev_b32 v10, 16, v10')
        a('v_mul_f32 v10, 0xbfb8aa3b, v10')
        a('v_exp_f32 v10, v10')
        a('v_add_f32 v10, 1.0, v10')
        a('v_rcp_f32 v10, v10')
        a('v_cvt_pk_bf16_f32 v10, v10, v10')
        a('v_lshlrev_b32 v10, 16, v10')
        a('v_lshlrev_b32 v4, 2, v14')
        a('v_add_u32 v4, 0x%x, v4' % LY.G)
        a('v_cmp_eq_u32 vcc, 31, v15')
        a('s_and_saveexec_b64 s[%d:%d], vcc' % (ST + 2, ST + 3))
        a('buffer_store_dword v10, v4, s[%d:%d], 0 offen%s' % (R_WS, R_WS + 3, SCS))
        a('s_mov_b64 exec, s[%d:%d]' % (ST + 2, ST + 3))

    def loads(self, a):
        L_gate = a.newlabel('L_gate'); L_join = a.newlabel('L_pl')
        KR, VR_, SKR = self.KR, self.VR_, self.SKR
        self.c00 = a.vm_issued
        a('s_cmp_eq_u32 s%d, 3' % S_W)
        a('s_cbranch_scc1 %s' % L_gate)
        a('v_mul_u32_u24 v12, 6554, v0')
        a('v_lshrrev_b32 v12, 16, v12')
        a('v_mul_u32_u24 v13, 10, v12')
        a('v_sub_u32 v13, v0, v13')
        a('s_mul_i32 s%d, s%d, %d' % (ST, S_Q, 64 * 1280))
        a('s_mul_i32 s%d, s%d, 160' % (ST + 1, S_J))
        a('s_add_u32 s%d, s%d, s%d' % (ST, ST, ST + 1))
        a('v_mul_u32_u24 v4, 5120, v12')
        a('v_lshl_add_u32 v4, v13, 4, v4')
        a('v_add_u32 v4, s%d, v4' % ST)
        a('v_subrev_u32 v5, 3840, v4')
        a('s_mul_i32 s%d, s%d, 640' % (ST + 1, S_J))
        a('v_lshlrev_b32 v6, 6, v13')
        a('v_add_u32 v6, s%d, v6' % (ST + 1))
        a('v_cmp_gt_u32 vcc, 160, v0')
        a('s_and_saveexec_b64 s[%d:%d], vcc' % (ST + 2, ST + 3))
        for r in range(4):
            a('buffer_load_dwordx4 %s, v4, s[%d:%d], 0 offen offset:%d%s' % (vr(KR + 12 + 4 * r, 4), R_K, R_K + 3, 1280 * r, NT()))
        for r in range(4):
            a('buffer_load_dwordx4 %s, v4, s[%d:%d], 0 offen offset:%d%s' % (vr(VR_ + 4 * r, 4), R_V, R_V + 3, 1280 * r, NT()))
        for r in range(4):
            a('buffer_load_dwordx4 %s, v4, s[%d:%d], 0 offen offset:%d%s' % (ar(4 * r, 4), R_W2, R_W2 + 3, 1280 * r, NT()))
        for i in range(4):
            a('global_load_dwordx4 %s, v6, s[%d:%d] offset:%d' % (vr(SKR + 4 * i, 4), P_SK, P_SK + 1, 16 * i))
        for r in range(3):
            a('buffer_load_dwordx4 %s, v5, s[%d:%d], 0 offen offset:%d%s' % (vr(KR + 4 * r, 4), R_K, R_K + 3, 1280 * r, NT()))
        a('s_mov_b64 exec, s[%d:%d]' % (ST + 2, ST + 3))
        a('s_branch %s' % L_join)
        endA = a.vm_issued
        a.label(L_gate)
        if self.mode == 'kv':
            a.label(L_join)
            a.vm_issued = self.c00
            self.m_all = self.c00
            return
        a('v_lshrrev_b32 v12, 3, v1')
        a('v_and_b32 v13, 7, v1')
        a('s_lshl_b32 s%d, s%d, 7' % (ST, S_R))
        a('s_lshl_b32 s%d, s%d, 3' % (ST + 1, S_CB))
        a('s_add_u32 s%d, s%d, s%d' % (ST, ST, ST + 1))
        a('v_add_u32 v12, s%d, v12' % ST)
        a('v_mul_u32_u24 v4, 1280, v12')
        a('v_lshlrev_b32 v5, 4, v13')
        a('v_add_u32 v4, v4, v5')
        for n in range(10):
            a('buffer_load_dwordx4 %s, v4, s[%d:%d], 0 offen offset:%d' % (vr(120 + 4 * n, 4), R_X, R_X + 3, 128 * n))
            a('global_load_dwordx4 %s, v5, s[%d:%d] offset:%d' % (ar(16 + 4 * n, 4), P_GW, P_GW + 1, 128 * n))
        a.label(L_join)
        a.vm_issued = endA
        self.m_all = endA

    def compute(self, a):
        L_gate = a.newlabel('L_gate'); L_join = a.newlabel('L_prepjoin')
        KR, VR_, SKR, T = self.KR, self.VR_, self.SKR, self.T
        LKV, LW2 = self.LKV, self.LW2
        a.wait_vm(self.m_all)
        a('s_cmp_eq_u32 s%d, 3' % S_W)
        a('s_cbranch_scc1 %s' % L_gate)
        a('v_mul_u32_u24 v8, 640, v12')
        a('v_lshlrev_b32 v9, 4, v13')
        a('v_sub_u32 v7, v9, v8')
        a('v_add_u32 v7, %d, v7' % (LKV + 60 * 160))
        a('v_add_u32 v8, v8, v9')
        a('v_add_u32 v8, %d, v8' % LW2)
        a('v_cmp_gt_u32 vcc, 160, v0')
        a('s_and_saveexec_b64 s[%d:%d], vcc' % (ST + 2, ST + 3))
        for r in range(4):
            a('ds_write_b128 v8, %s offset:%d' % (ar(4 * r, 4), r * 160))
        KF, SF, VF, AC = T, T + 14, T + 22, T + 30
        for d in range(4):
            for r in range(7):
                unpack(a, KF + 2 * r, KF + 2 * r + 1, KR + 4 * r + d)
            for h in range(2):
                unpack(a, SF + 0 + h, SF + 2 + h, SKR + 2 * (2 * d + h))
                unpack(a, SF + 4 + h, SF + 6 + h, SKR + 2 * (2 * d + h) + 1)
            for r in range(4):
                unpack(a, VF + 2 * r, VF + 2 * r + 1, VR_ + 4 * r + d)
            for j in range(4):
                for r in range(4):
                    acc = vr(AC + 2 * r, 2); kf = vr(KF + 2 * (r + 3 - j), 2); sf = vr(SF + 2 * j, 2)
                    if j == 0: a('v_pk_mul_f32 %s, %s, %s' % (acc, kf, sf))
                    else: a('v_pk_fma_f32 %s, %s, %s, %s' % (acc, kf, sf, acc))
            for r in range(4):
                a('v_pk_mul_f32 %s, %s, %s' % (vr(AC + 2 * r, 2), vr(AC + 2 * r, 2), vr(VF + 2 * r, 2)))
            for r in range(4):
                a('v_cvt_pk_bf16_f32 v%d, v%d, v%d' % (VR_ + 4 * r + d, AC + 2 * r, AC + 2 * r + 1))
        for r in range(4):
            a('ds_write_b128 v7, %s offset:%d' % (vr(VR_ + 4 * r, 4), (3 - r) * 160))
        a('s_mov_b64 exec, s[%d:%d]' % (ST + 2, ST + 3))
        a('s_branch %s' % L_join)
        cA = a.vm_issued
        a.label(L_gate)
        if self.mode == 'kv':
            a.label(L_join)
            return
        a('v_mov_b32 v10, 0')
        a('v_mov_b32 v11, 0')
        for n in range(40):
            a('v_accvgpr_read_b32 v%d, a%d' % (T + n, 16 + n))
        for n in range(40):
            acc = 10 + (n & 1)
            a('v_dot2_f32_bf16 v%d, v%d, v%d, v%d' % (acc, 120 + n, T + n, acc))
        a('s_nop 3')
        a('v_add_f32 v10, v10, v11')
        a('v_add_f32_dpp v10, v10, v10 quad_perm:[1,0,3,2] row_mask:0xf bank_mask:0xf')
        a('v_add_f32_dpp v10, v10, v10 quad_perm:[2,3,0,1] row_mask:0xf bank_mask:0xf')
        a('v_add_f32_dpp v10, v10, v10 row_half_mirror row_mask:0xf bank_mask:0xf')
        a('v_cvt_pk_bf16_f32 v10, v10, v10')
        a('v_lshlrev_b32 v10, 16, v10')
        a('v_mul_f32 v10, 0xbfb8aa3b, v10')
        a('v_exp_f32 v10, v10')
        a('v_add_f32 v10, 1.0, v10')
        a('v_rcp_f32 v10, v10')
        a('v_cvt_pk_bf16_f32 v10, v10, v10')
        a('v_lshlrev_b32 v10, 16, v10')
        a('v_lshlrev_b32 v4, 2, v12')
        a('v_add_u32 v4, 0x%x, v4' % LY.G)
        a('v_cmp_eq_u32 vcc, 0, v13')
        a('s_and_saveexec_b64 s[%d:%d], vcc' % (ST + 2, ST + 3))
        a('buffer_store_dword v10, v4, s[%d:%d], 0 offen%s' % (R_WS, R_WS + 3, SCS))
        a('s_mov_b64 exec, s[%d:%d]' % (ST + 2, ST + 3))
        a.label(L_join)
        a.vm_issued = cA

    def transpose(self, a):
        L_skip = a.newlabel('L_prepskip')
        LKV, LW2 = self.LKV, self.LW2
        O = self.T
        a('v_and_b32 v2, 15, v1')
        a('v_lshrrev_b32 v3, 4, v1')
        a('v_lshrrev_b32 v4, 2, v2')
        a('v_and_b32 v5, 3, v1')
        a('s_and_b32 s%d, s%d, 1' % (ST, S_W))
        a('s_cmp_ge_u32 s%d, 2' % S_W)
        a('s_cselect_b32 s%d, 2, 3' % (ST + 1))
        scsel(a, ST + 2, 2560, 640)
        scsel(a, ST + 3, LW2, LKV)
        scsel(a, ST + 4, 1024, 65536)
        a('s_mul_i32 s%d, s%d, %d' % (ST + 5, ST, 32 * 160))
        a('s_add_u32 s%d, s%d, s%d' % (ST + 3, ST + 3, ST + 5))
        a('v_lshlrev_b32 v6, s%d, v3' % (ST + 1))
        a('v_add_u32 v6, v6, v4')
        a('v_mul_u32_u24 v6, 160, v6')
        a('v_lshl_add_u32 v6, v5, 3, v6')
        a('v_add_u32 v6, s%d, v6' % (ST + 3))
        a('v_add_u32 v7, s%d, v6' % (ST + 2))
        for u in range(5):
            a('ds_read_b64_tr_b16 %s, v6 offset:%d' % (vr(O + 4 * u, 2), 32 * u))
            a('ds_read_b64_tr_b16 %s, v7 offset:%d' % (vr(O + 2 + 4 * u, 2), 32 * u))
        m = a.lgkm_mark()
        a('s_mul_i32 s%d, s%d, %d' % (ST + 5, S_J, 80 * 4096))
        a('s_lshl_b32 s%d, s%d, 7' % (ST + 6, S_Q))
        a('s_sub_u32 s%d, s%d, s%d' % (ST + 5, ST + 5, ST + 6))
        a('s_lshl_b32 s%d, s%d, 6' % (ST + 6, ST))
        a('s_add_u32 s%d, s%d, s%d' % (ST + 5, ST + 5, ST + 6))
        a('s_add_u32 s%d, s%d, %d' % (ST + 5, ST + 5, LY.KVT + 2 * 1984))
        a('v_lshlrev_b32 v8, 12, v2')
        a('v_lshl_add_u32 v8, v3, 4, v8')
        a('s_mul_i32 s%d, s%d, 48' % (ST + 6, S_J))
        a('s_lshl_b32 s%d, s%d, 1' % (ST + 7, S_Q))
        a('s_add_u32 s%d, s%d, s%d' % (ST + 6, ST + 6, ST + 7))
        a('s_add_u32 s%d, s%d, s%d' % (ST + 6, ST + 6, ST))
        a('s_mul_i32 s%d, s%d, 5120' % (ST + 6, ST + 6))
        a('s_add_u32 s%d, s%d, 0x%x' % (ST + 6, ST + 6, LY.W2T))
        a('v_lshlrev_b32 v9, 4, v1')
        a('s_cmp_ge_u32 s%d, 2' % S_W)
        a('s_cselect_b32 s%d, s%d, s%d' % (ST + 5, ST + 6, ST + 5))
        a('s_cselect_b64 vcc, -1, 0')
        a('v_cndmask_b32 v8, v8, v9, vcc')
        a('s_cselect_b32 s%d, s%d, 0' % (ST + 7, S_Q))
        a('s_cmp_ge_u32 s%d, 24' % (ST + 7))
        a.wait_lgkm(m)
        a('s_cbranch_scc1 %s' % L_skip)
        cB = a.vm_issued
        for u in range(5):
            a('buffer_store_dwordx4 %s, v8, s[%d:%d], s%d offen%s' % (vr(O + 4 * u, 4), R_WS, R_WS + 3, ST + 5, SCS))
            if u < 4 or OPT.get('w3load'):
                a('s_add_u32 s%d, s%d, s%d' % (ST + 5, ST + 5, ST + 4))
        if OPT.get('w3load'):
            a('s_cmp_lg_u32 s%d, 2' % S_W)
            a('s_cbranch_scc1 %s' % L_skip)
            for u in range(5):
                a('ds_read_b64_tr_b16 %s, v6 offset:%d' % (vr(O + 20 + 4 * u, 2), 32 * u + 5120))
                a('ds_read_b64_tr_b16 %s, v7 offset:%d' % (vr(O + 22 + 4 * u, 2), 32 * u + 5120))
            a('s_waitcnt lgkmcnt(0)')
            for u in range(5):
                a('buffer_store_dwordx4 %s, v8, s[%d:%d], s%d offen%s' % (vr(O + 20 + 4 * u, 4), R_WS, R_WS + 3, ST + 5, SCS))
                if u < 4:
                    a('s_add_u32 s%d, s%d, s%d' % (ST + 5, ST + 5, ST + 4))
        a.label(L_skip)
        a('s_nop 1')
        a.vm_issued = cB
        self.m_st = cB

RB = 20480
SLOT = 28672
NSLOT = 5
class G1:
    VX, VW, VB = 16, 20, 24
    ACC, BIAS, BRAW = 36, 84, 108
    AF, BF = 192, 240
    SX, SWO = 96, 97

    def setup(self, a):
        a('v_lshrrev_b32 v2, 3, v1')
        a('v_and_b32 v3, 7, v1')
        a('s_lshl_b32 s%d, s%d, 7' % (ST, S_R))
        a('s_lshl_b32 s%d, s%d, 5' % (ST + 1, S_W))
        a('s_add_u32 s%d, s%d, s%d' % (ST, ST, ST + 1))
        a('s_mul_i32 s%d, s%d, 1280' % (ST, ST))
        for i in range(2):
            a('v_add_u32 v4, %d, v2' % (8 * i))
            a('v_bfe_u32 v5, v4, 1, 3')
            a('v_xor_b32 v5, v5, v3')
            a('v_mul_u32_u24 v4, 1280, v4')
            a('v_lshl_add_u32 v4, v5, 4, v4')
            a('v_add_u32 v4, s%d, v4' % ST)
            if i == 0: a('v_mov_b32 v%d, v4' % (self.VX))
            else: a('v_subrev_u32 v%d, %d, v4' % (self.VX + i, 1024 * i))
            a('v_add_u32 v%d, %d, v4' % (self.VX + i + 2, 16 * 1280 - 1024 * (i + 2)))
        a('s_mul_i32 s%d, s%d, %d' % (ST, S_W, 16 * 3072))
        a('s_mul_i32 s%d, s%d, 192' % (ST + 1, S_CB))
        a('s_add_u32 s%d, s%d, s%d' % (ST, ST, ST + 1))
        for i in range(3):
            a('v_add_u32 v4, %d, v1' % (64 * i))
            a('v_mul_u32_u24 v5, 5462, v4')
            a('v_lshrrev_b32 v5, 16, v5')
            a('v_mul_u32_u24 v6, 12, v5')
            a('v_sub_u32 v6, v4, v6')
            a('v_bfe_u32 v7, v5, 3, 1')
            a('v_lshlrev_b32 v7, 1, v7')
            a('v_sub_u32 v6, v6, v7')
            a('v_add_u32 v7, 12, v6')
            a('v_min_u32 v6, v6, v7')
            a('v_mul_u32_u24 v5, 3072, v5')
            a('v_lshl_add_u32 v5, v6, 4, v5')
            a('v_add_u32 v5, s%d, v5' % ST)
            a('v_subrev_u32 v%d, %d, v5' % (self.VW + i, 1024 * i))
        a('s_lshl_b32 s%d, s15, 7' % self.SX)
        a('s_mul_i32 s%d, s15, %d' % (self.SWO, 64 * 3072))
        a('s_lshl_b32 s98, s%d, 12' % S_W)
        a('s_mul_i32 s99, s%d, 3072' % S_W)
        a('s_add_u32 s99, s99, 16384')
        self.marks = {}

    def dma_items(self, stage):
        slot = RB + SLOT * (stage % NSLOT)
        L = []
        def first(a):
            a('s_add_u32 m0, s98, %d' % slot)
            a('buffer_load_dwordx4 v%d, s[%d:%d], s%d offen lds' % (self.VX, R_X, R_X + 3, self.SX))
        L.append(first)
        for i in range(1, 4):
            L.append('buffer_load_dwordx4 v%d, s[%d:%d], s%d offen offset:%d lds' % (self.VX + i, R_X, R_X + 3, self.SX, 1024 * i))
        def mid(a):
            a('s_add_u32 m0, s99, %d' % slot)
            a('s_add_u32 s%d, s%d, 128' % (self.SX, self.SX))
            a('buffer_load_dwordx4 v%d, s[%d:%d], s%d offen lds' % (self.VW, R_W1, R_W1 + 3, self.SWO))
        L.append(mid)
        L.append('buffer_load_dwordx4 v%d, s[%d:%d], s%d offen offset:1024 lds' % (self.VW + 1, R_W1, R_W1 + 3, self.SWO))
        def last(a):
            a('buffer_load_dwordx4 v%d, s[%d:%d], s%d offen offset:2048 lds' % (self.VW + 2, R_W1, R_W1 + 3, self.SWO))
            self.marks[stage] = a.vm_mark()
            a('s_add_u32 s%d, s%d, %d' % (self.SWO, self.SWO, 64 * 3072))
            a('s_cmp_eq_u32 s%d, 1280' % self.SX)
            a('s_cmov_b32 s%d, 0' % self.SX)
            a('s_cmov_b32 s%d, 0' % self.SWO)
        L.append(last)
        return L

    def dma(self, a, stage):
        for x in self.dma_items(stage):
            do(a, x)

    def adv(self, a):
        a('s_add_u32 s%d, s%d, 128' % (self.SX, self.SX))
        a('s_add_u32 s%d, s%d, %d' % (self.SWO, self.SWO, 64 * 3072))
        a('s_cmp_eq_u32 s%d, 1280' % self.SX)
        a('s_cmov_b32 s%d, 0' % self.SX)
        a('s_cmov_b32 s%d, 0' % self.SWO)

    def dma_all(self, a, stages):
        for i in range(4):
            a('v_subrev_u32 v%d, %d, v%d' % (120 + i, 3 * 32 * 1280, self.VX + i))
        for i in range(3):
            a('v_subrev_u32 v%d, %d, v%d' % (124 + i, 3 * 16 * 3072, self.VW + i))
        for stage in stages:
            slot = RB + SLOT * (stage % NSLOT)
            for u in range(4):
                a('s_mov_b32 m0, %d' % (slot + 4096 * u))
                a('s_add_u32 s12, s%d, %d' % (self.SX, 40960 * u))
                for i in range(4):
                    a('buffer_load_dwordx4 v%d, s[%d:%d], s12 offen offset:%d lds' % (120 + i, R_X, R_X + 3, 1024 * i))
                a('s_mov_b32 m0, %d' % (slot + 16384 + 3072 * u))
                a('s_add_u32 s12, s%d, %d' % (self.SWO, 49152 * u))
                for i in range(3):
                    a('buffer_load_dwordx4 v%d, s[%d:%d], s12 offen offset:%d lds' % (124 + i, R_W1, R_W1 + 3, 1024 * i))
            self.adv(a)

    def bias_load(self, a):
        a('v_lshrrev_b32 v3, 4, v1')
        a('s_mul_i32 s%d, s%d, 192' % (ST, S_CB))
        a('v_lshlrev_b32 v4, 3, v3')
        a('v_add_u32 v4, s%d, v4' % ST)
        for ft in range(6):
            a('global_load_dwordx2 %s, v4, s[%d:%d] offset:%d' % (vr(self.BRAW + 2 * ft, 2), P_B1, P_B1 + 1, 32 * ft))
        self.m_bias = a.vm_mark()

    def setup2(self, a):
        a('v_lshrrev_b32 v3, 4, v1')
        a('v_and_b32 v2, 15, v1')
        a('v_lshrrev_b32 v4, 1, v2')
        a('v_xor_b32 v4, v4, v3')
        a('v_lshlrev_b32 v4, 4, v4')
        a('v_lshl_add_u32 v4, v2, 7, v4')
        a('v_add_u32 v4, s98, v4')
        a('v_xor_b32 v5, 64, v4')
        a('v_lshrrev_b32 v6, 2, v2')
        a('v_lshl_add_u32 v6, v3, 3, v6')
        a('v_mul_u32_u24 v6, 192, v6')
        a('v_and_b32 v7, 3, v1')
        a('v_lshl_add_u32 v6, v7, 3, v6')
        a('v_and_b32 v7, 1, v3')
        a('v_lshl_add_u32 v6, v7, 5, v6')
        a('v_mul_u32_u24 v7, 192, v7')
        a('v_sub_u32 v7, v6, v7')
        for grp in range(3):
            off = RB + 2 * SLOT * grp
            a('v_add_u32 v%d, %d, v4' % (self.VB + 4 * grp, off))
            a('v_add_u32 v%d, %d, v5' % (self.VB + 4 * grp + 1, off))
            a('v_add_u32 v%d, %d, v6' % (self.VB + 4 * grp + 2, off + 16384))
            a('v_add_u32 v%d, %d, v7' % (self.VB + 4 * grp + 3, off + 16384))

    def unpack_bias(self, a):
        a.wait_vm(self.m_bias)
        for ft in range(6):
            for d in range(2):
                unpack(a, self.BIAS + 4 * ft + 2 * d, self.BIAS + 4 * ft + 2 * d + 1, self.BRAW + 2 * ft + d)

    def reads(self, stage, kk):
        slot = stage % NSLOT
        grp, so = slot // 2, (slot % 2) * SLOT
        L = []
        for st in range(2):
            L.append('ds_read_b128 %s, v%d offset:%d' % (ar(self.BF + 8 * kk + 4 * st, 4), self.VB + 4 * grp + kk, so + 2048 * st))
        for ft in range(6):
            base = self.VB + 4 * grp + (3 if ft == 5 else 2)
            for h in range(2):
                L.append('ds_read_b64_tr_b16 %s, v%d offset:%d' % (ar(self.AF + 24 * kk + 4 * ft + 2 * h, 2), base, so + 6144 * kk + 768 * h + 32 * ft))
        return L

    def mfma(self, kk, ft, st, first):
        acc = vr(self.ACC + 8 * ft + 4 * st, 4)
        c = vr(self.BIAS + 4 * ft, 4) if first else acc
        return 'v_mfma_f32_16x16x32_bf16 %s, %s, %s, %s' % (acc, ar(self.AF + 24 * kk + 4 * ft, 4), ar(self.BF + 8 * kk + 4 * st, 4), c)

    def block(self, a, kk, first, rmarks, nxt, bg):
        newmarks = []
        ni = 0
        for ft in range(6):
            if rmarks is not None:
                a.wait_lgkm(rmarks[2 + 2 * ft + 1])
            for st in range(2):
                a(self.mfma(kk, ft, st, first))
                if ni < len(nxt):
                    for _ in range(2):
                        a(nxt[ni]); newmarks.append(a.lgkm_mark()); ni += 1
                elif bg is not None:
                    bg.emit(a, 1)
        return newmarks

    def main(self, a, pre, post, mid, bgs):
        lead = OPT['lead']
        pm = None
        for i in range(10):
            if pm is not None:
                a('s_waitcnt lgkmcnt(0)')
            if i < getattr(self, 'ne', 0):
                Lw = a.newlabel('L_w3')
                a('s_cmp_lg_u32 s%d, 3' % S_W)
                a('s_cbranch_scc1 %s' % Lw)
                a.wait_vm(self.marks[i])
                a.label(Lw)
                if i in pre: a.wait_vm(pre[i]())
            else:
                a.wait_vm(max(self.marks[i], pre[i]() if i in pre else 0))
            a('s_barrier')
            bg = BG()
            for k_ in range(i + 1, min(i + lead, 9) + 1):
                if k_ not in self.marks:
                    bg.add(self.dma_items(k_))
            if i in bgs:
                bg.add(bgs[i])
            rd = self.reads(i, 0)
            if pm is None:
                m0 = []
                for x in rd:
                    a(x); m0.append(a.lgkm_mark())
                bg.emit(a, 4)
            else:
                m0 = self.block(a, 1, False, None, rd, bg)
            if i in post:
                post[i](a)
            pm = self.block(a, 0, i == 0, m0, self.reads(i, 1), bg)
            bg.drain(a)
            if i in mid:
                mid[i](a)
        self.block(a, 1, False, pm, [], bgs.get(10))

    def epilogue(self, a, bg, per):
        C1, C2, ONE, T, O = 84, 86, 88, 184, (90 if OPT.get('late_p') else 216)
        c1 = -2.0 * 1.4426950408889634 * 0.7978845608028654
        for r, val in ((C1, c1), (C2, c1 * 0.044715), (ONE, 1.0)):
            a('v_mov_b32 v%d, %s' % (r, f32hex(val)))
            a('v_mov_b32 v%d, %s' % (r + 1, f32hex(val)))
        a('s_lshl_b32 s%d, s%d, 3' % (ST, S_R))
        a('s_lshl_b32 s%d, s%d, 1' % (ST + 1, S_W))
        a('s_add_u32 s%d, s%d, s%d' % (ST, ST, ST + 1))
        a('s_mul_i32 s%d, s%d, 48' % (ST, ST))
        a('s_mul_i32 s%d, s%d, 3' % (ST + 1, S_CB))
        a('s_add_u32 s%d, s%d, s%d' % (ST, ST, ST + 1))
        a('s_lshl_b32 s%d, s%d, 10' % (ST, ST))
        a('s_add_u32 s%d, s%d, 0x%x' % (ST, ST, LY.HF))
        a('s_add_u32 s%d, s%d, %d' % (ST + 1, ST, 48 * 1024))
        a('v_lshlrev_b32 v2, 4, v1')
        k = 0
        for st in range(2):
            for J in range(3):
                o = O + 4 * (k % 4); t0 = T + 16 * (k % 2); k += 1
                prs = [self.ACC + 8 * (2 * J + h) + 4 * st + 2 * p for h in range(2) for p in range(2)]
                for n, x in enumerate(prs):
                    a('v_pk_mul_f32 %s, %s, %s' % (vr(t0 + 2 * n, 2), vr(x, 2), vr(x, 2)))
                for n, x in enumerate(prs):
                    a('v_pk_fma_f32 %s, %s, %s, %s' % (vr(t0 + 2 * n, 2), vr(t0 + 2 * n, 2), vr(C2, 2), vr(C1, 2)))
                for n, x in enumerate(prs):
                    a('v_pk_mul_f32 %s, %s, %s' % (vr(t0 + 2 * n, 2), vr(t0 + 2 * n, 2), vr(x, 2)))
                bg.emit(a, (per + 2) // 3)
                for n in range(8):
                    a('v_exp_f32 v%d, v%d' % (t0 + n, t0 + n))
                for n, x in enumerate(prs):
                    a('v_pk_add_f32 %s, %s, %s' % (vr(t0 + 2 * n, 2), vr(t0 + 2 * n, 2), vr(ONE, 2)))
                bg.emit(a, (per + 1) // 3)
                for n in range(8):
                    a('v_rcp_f32 v%d, v%d' % (t0 + n, t0 + n))
                for n, x in enumerate(prs):
                    a('v_pk_mul_f32 %s, %s, %s' % (vr(t0 + 2 * n, 2), vr(t0 + 2 * n, 2), vr(x, 2)))
                bg.emit(a, per // 3)
                for n in range(4):
                    a('v_cvt_pk_bf16_f32 v%d, v%d, v%d' % (o + n, t0 + 2 * n, t0 + 2 * n + 1))
                a('buffer_store_dwordx4 %s, v2, s[%d:%d], s%d offen offset:%d%s' % (vr(o, 4), R_WS, R_WS + 3, ST + st, 1024 * J, SCS))

PP = 4160
QO0 = 16656
QO1 = QO0 + 4640
CS = 25856
CB = 0
TOP = [7, 6, 5, 2]
BOT = [4, 3, 1, 0]

class Conv:
    VADR = 16
    FR, ACC = 32, 112
    PRAW, QRAW, PT = 220, 140, 180
    SCH = 90
    S_D = 93

    def channels(self, a):
        a('s_mul_i32 s%d, s%d, 80' % (ST, S_J))
        a('s_lshr_b32 s%d, s%d, 1' % (ST + 1, S_Q))
        a('s_mul_i32 s%d, s%d, 5' % (ST + 1, ST + 1))
        a('s_add_u32 s%d, s%d, s%d' % (ST, ST, ST + 1))
        a('s_and_b32 s%d, s%d, 1' % (ST + 1, S_Q))
        a('s_mul_i32 s%d, s%d, 3' % (ST + 1, ST + 1))
        a('s_add_u32 s%d, s%d, s%d' % (self.SCH, ST, ST + 1))
        a('s_add_u32 s%d, s%d, 1' % (self.SCH + 1, self.SCH))
        a('s_add_u32 s%d, s%d, 2' % (self.SCH + 2, ST))
        if OPT.get('d_early'):
            a('s_cmp_eq_u32 s%d, 1' % S_W)
            a('s_cselect_b32 s%d, s%d, s%d' % (ST + 3, self.SCH + 1, self.SCH))
            a('s_cmp_eq_u32 s%d, 2' % S_W)
            a('s_cselect_b32 s%d, s%d, s%d' % (ST + 3, self.SCH + 2, ST + 3))
            for k, ch in enumerate((ST + 3, self.SCH + 1)):
                a('s_lshr_b32 s%d, s%d, 1' % (ST, ch))
                a('s_lshl_b32 s%d, s%d, 2' % (ST, ST))
                a('s_load_dword s%d, s[%d:%d], s%d' % (self.S_D + k, P_D, P_D + 1, ST))

    def load_p(self, a):
        a('v_lshlrev_b32 v2, 4, v0')
        a('v_subrev_u32 v3, 8, v2')
        a('s_mov_b32 s%d, 4096' % (R_HK + 2))
        a('s_mov_b32 s%d, 0x20000' % (R_HK + 3))
        for sl in range(3):
            a('s_lshl_b32 s%d, s%d, 12' % (ST, self.SCH + sl))
            a('s_add_u32 s%d, s%d, s%d' % (R_HK, P_HK, ST))
            a('s_addc_u32 s%d, s%d, 0' % (R_HK + 1, P_HK + 1))
            a('s_and_b32 s%d, s%d, 0xffff' % (R_HK + 1, R_HK + 1))
            a('buffer_load_dwordx4 %s, v2, s[%d:%d], 0 offen%s' % (vr(self.PRAW + 6 * sl + 2, 4), R_HK, R_HK + 3, '' if OPT.get('spf') else NT()))
            a('buffer_load_dwordx2 %s, v3, s[%d:%d], 0 offen%s' % (vr(self.PRAW + 6 * sl, 2), R_HK, R_HK + 3, '' if OPT.get('spf') else NT()))
        self.m_p = a.vm_mark()

    def load_q(self, a):
        a('v_lshlrev_b32 v2, 4, v0')
        for sl in range(3):
            a('s_lshl_b32 s%d, s%d, 12' % (ST + sl, self.SCH + sl))
            if LY.KVT:
                a('s_add_u32 s%d, s%d, 0x%x' % (ST + sl, ST + sl, LY.KVT))
            a('buffer_load_dwordx4 %s, v2, s[%d:%d], s%d offen%s' % (vr(self.QRAW + 4 * sl, 4), R_WS, R_WS + 3, ST + sl, SCL()))
        self.m_q = a.vm_mark()

    def zero_fill(self, a):
        L = a.newlabel('L_zf')
        a('s_cmp_ge_u32 s%d, 3' % S_W)
        a('s_cbranch_scc1 %s' % L)
        c = a.lgkm_issued
        for i in range(4):
            a('v_mov_b32 v%d, 0' % (8 + i))
        a('s_mul_i32 s%d, s%d, %d' % (ST, S_W, CS))
        a('v_lshlrev_b32 v2, 4, v1')
        a('v_add_u32 v2, s%d, v2' % ST)
        a('v_bfe_u32 v3, v1, 2, 2')
        a('v_mul_u32_u24 v3, %d, v3' % PP)
        a('v_and_b32 v4, 3, v1')
        a('v_lshl_add_u32 v3, v4, 4, v3')
        a('v_add_u32 v3, s%d, v3' % ST)
        a('v_cmp_gt_u32 vcc, 29, v1')
        a('s_and_saveexec_b64 s[%d:%d], vcc' % (ST + 2, ST + 3))
        a('ds_write_b128 v2, v[8:11] offset:%d' % (CB + QO0 + 4080))
        a('ds_write_b128 v2, v[8:11] offset:%d' % (CB + QO1 + 4096))
        a('ds_write_b128 v3, v[8:11] offset:%d' % CB)
        a('v_and_b32 v4, 3, v1')
        a('v_lshlrev_b32 v4, 4, v4')
        a('v_add_u32 v4, %d, v4' % (3 * CS))
        a('ds_write_b128 v4, v[8:11]')
        a('s_mov_b64 exec, s[%d:%d]' % (ST + 2, ST + 3))
        a.lgkm_issued = c
        a.label(L)

    def build_p(self, a):
        a('v_lshlrev_b32 v2, 4, v0')
        a.wait_vm(self.m_p)
        for sl in range(3):
            D = self.PRAW + 6 * sl
            T = self.PT + 12 * sl
            base = CB + CS * sl + 48
            assert base + 3 * PP <= 65535
            for k in range(4):
                a('v_alignbit_b32 v%d, v%d, v%d, 16' % (T + k, D + k + 1, D + k))
            a('ds_write_b128 v2, %s offset:%d' % (vr(D + 2, 4), base + 3 * PP))
            for k in range(4):
                a('v_mov_b32 v%d, v%d' % (T + 4 + k, D + 1 + k))
            a('ds_write_b128 v2, %s offset:%d' % (vr(T, 4), base))
            for k in range(3):
                a('v_mov_b32 v%d, v%d' % (T + 8 + k, T + 1 + k))
            a('v_alignbit_b32 v%d, v%d, v%d, 16' % (T + 11, D + 5, D + 4))
            a('ds_write_b128 v2, %s offset:%d' % (vr(T + 4, 4), base + PP))
            a('ds_write_b128 v2, %s offset:%d' % (vr(T + 8, 4), base + 2 * PP))

    def build_q(self, a):
        a('v_lshlrev_b32 v2, 4, v0')
        for sl in range(3):
            a('v_add_u32 v%d, %d, v2' % (4 + sl, CB + CS * sl + QO0 - 8))
        a.wait_vm(self.m_q)
        for sl in range(3):
            Q = self.QRAW + 4 * sl
            a('ds_write_b128 v%d, %s offset:%d' % (4 + sl, vr(Q, 4), QO1 - QO0 + 8))
            a('ds_write2_b64 v%d, %s, %s offset0:0 offset1:1' % (4 + sl, vr(Q, 2), vr(Q + 2, 2)))

    def task_setup(self, a):
        a('v_and_b32 v2, 15, v1')
        a('v_lshrrev_b32 v3, 4, v1')
        a('v_and_b32 v4, 3, v1')
        a('v_lshrrev_b32 v5, 2, v2')
        a('v_add_u32 v5, v5, v3')
        a('v_mul_u32_u24 v4, %d, v4' % PP)
        a('v_lshl_add_u32 v28, v5, 4, v4')
        a('v_and_b32 v4, 1, v1')
        a('v_lshrrev_b32 v5, 1, v2')
        a('v_lshlrev_b32 v5, 6, v5')
        a('v_lshlrev_b32 v6, 4, v3')
        a('v_mul_u32_u24 v7, 4640, v4')
        a('v_add_u32 v7, v7, v6')
        a('v_sub_u32 v7, v7, v5')
        a('v_add_u32 v29, %d, v7' % (QO0 + 448))
        a('v_add_u32 v5, v5, v6')
        a('v_lshl_add_u32 v31, v4, 3, v5')
        a('v_sub_u32 v30, %d, v31' % (QO1 + 504))
        a('s_cmp_eq_u32 s%d, 3' % S_W)
        a('s_cselect_b32 s%d, 0, s%d' % (ST + 2, S_W))
        a('s_cmp_eq_u32 s%d, 1' % (ST + 2))
        a('s_cselect_b32 s%d, s%d, s%d' % (ST + 3, self.SCH + 1, self.SCH))
        a('s_cmp_eq_u32 s%d, 2' % (ST + 2))
        a('s_cselect_b32 s%d, s%d, s%d' % (ST + 3, self.SCH + 2, ST + 3))
        a('s_mov_b32 s%d, s%d' % (ST + 4, self.SCH + 1))
        for k in range(2):
            ch = ST + 3 + k
            if not OPT.get('d_early'):
                a('s_lshr_b32 s%d, s%d, 1' % (ST, ch))
                a('s_lshl_b32 s%d, s%d, 2' % (ST, ST))
                a('s_load_dword s%d, s[%d:%d], s%d' % (self.S_D + k, P_D, P_D + 1, ST))
            if k == 0:
                a('s_mul_i32 s%d, s%d, %d' % (ST, ST + 2, CS))
                if CB: a('s_add_u32 s%d, s%d, %d' % (ST, ST, CB))
            else:
                a('s_mov_b32 s%d, %d' % (ST, CB + CS))
            for n in range(3):
                a('v_add_u32 v%d, s%d, v%d' % (self.VADR + 4 * k + n, ST, 28 + n))
            a('s_lshl_b32 s%d, s%d, 12' % (ST + 1, ch))
            a('s_add_u32 s%d, s%d, 0x%x' % (ST + 1, ST + 1, LY.Y2T))
            a('v_add_u32 v%d, s%d, v31' % (self.VADR + 4 * k + 3, ST + 1))
        if not OPT.get('d_early'):
            a('s_waitcnt lgkmcnt(0)')
        for k in range(2):
            a('s_lshl_b32 s%d, s%d, 16' % (ST, self.S_D + k))
            a('s_and_b32 s%d, s%d, 0xffff0000' % (self.S_D + k, self.S_D + k))
            a('s_bitcmp0_b32 s%d, 0' % (ST + 3 + k))
            a('s_cselect_b32 s%d, s%d, s%d' % (self.S_D + k, ST, self.S_D + k))

    def task(self, a, subs, hooks, bg, bg_every):
        freg = {}
        nr = self.FR
        for k, tiles in subs:
            n = max(tiles) + 1
            for p in range(n):
                freg[(k, 'A', p)] = nr; nr += 4
            for p in range(n):
                freg[(k, 'B', p)] = nr; nr += 4
        assert nr <= self.ACC
        areg = {}
        na = self.ACC
        for k, tiles in subs:
            for t in tiles:
                areg[(k, t)] = na; na += 4
        order = []
        maxp = max(max(t) for _, t in subs)
        for p in range(maxp + 1):
            for k, tiles in subs:
                for t in tiles:
                    if t >= p:
                        order.append((k, t, p))
        def rd(key, r):
            k, ab, p = key
            if ab == 'A':
                return 'ds_read_b128 %s, v%d offset:%d' % (vr(freg[key], 4), self.VADR + 4 * k, 512 * p + 64 * r)
            return 'ds_read_b128 %s, v%d offset:%d' % (vr(freg[key], 4), self.VADR + 4 * k + 1, 512 * (7 - p) + 64 * r)
        uses = [((k, 'A', p), (k, 'B', t - p)) for k, t, p in order]
        last = {}; first = {}
        for i, us in enumerate(uses):
            for u in us:
                last[u] = i; first.setdefault(u, i)
        mark = {}
        for key in sorted(first, key=lambda u: first[u]):
            a(rd(key, 0)); mark[key] = a.lgkm_mark()
        cnt = 0
        umark = {}
        UT = 144 - 0
        for r in range(8):
            if r in hooks:
                hooks[r](a)
            waited = -1
            seen = set()
            for i, (k, t, p) in enumerate(order):
                need = max(mark[u] for u in uses[i])
                if need > waited:
                    a.wait_lgkm(need); waited = need
                acc = vr(areg[(k, t)], 4)
                c = acc if (r > 0 or (k, t) in seen) else '0'
                seen.add((k, t))
                a('v_mfma_f32_16x16x32_bf16 %s, %s, %s, %s' % (acc, vr(freg[uses[i][0]], 4), vr(freg[uses[i][1]], 4), c))
                newm = {}
                for u in uses[i]:
                    if last[u] == i and r < 7:
                        a(rd(u, r + 1)); newm[u] = a.lgkm_mark()
                    elif last[u] == i and r == 7 and u[1] == 'A' and u[2] < len(dict(subs)[u[0]]):
                        tt = dict(subs)[u[0]][u[2]]
                        a('ds_read_b64 %s, v%d offset:%d' % (vr(freg[u], 2), self.VADR + 4 * u[0] + 2, 512 * (7 - tt)))
                        umark[(u[0], tt)] = (freg[u], a.lgkm_mark())
                for u, m in newm.items():
                    mark[(u, 'next')] = m
                cnt += 1
                if cnt % bg_every == 0:
                    bg.emit(a, 1)
            for u in list(first):
                if (u, 'next') in mark:
                    mark[u] = mark.pop((u, 'next'))
        X = 2
        for k, tiles in subs:
            for t in sorted(tiles):
                U, m = umark[(k, t)]
                A = areg[(k, t)]
                a.wait_lgkm(m)
                X = 4 if X == 8 else 8
                unpack(a, X + 3, X + 2, U)
                unpack(a, X + 1, X + 0, U + 1)
                for n in range(4):
                    a('v_fma_f32 v%d, v%d, s%d, v%d' % (X + n, X + n, self.S_D + k, A + n))
                a('v_cvt_pk_bf16_f32 v%d, v%d, v%d' % (U, X, X + 1))
                a('v_cvt_pk_bf16_f32 v%d, v%d, v%d' % (U + 1, X + 2, X + 3))
                a('buffer_store_dwordx2 %s, v%d, s[%d:%d], 0 offen offset:%d%s' % (vr(U, 2), self.VADR + 4 * k + 3, R_WS, R_WS + 3, 512 * t, SCS))

    def run(self, a, hooks, bg, bg_every):
        L_b1 = a.newlabel('L_bot1'); L_b2 = a.newlabel('L_bot2'); L_done = a.newlabel('L_cdone')
        a('s_cmp_eq_u32 s%d, 3' % S_W)
        a('s_cbranch_scc1 %s' % L_b2)
        a('s_and_b32 s%d, s%d, 1' % (ST + 4, S_Q))
        a('s_add_u32 s%d, s%d, s%d' % (ST + 4, ST + 4, S_W))
        a('s_cmp_ge_u32 s%d, 3' % (ST + 4))
        a('s_cbranch_scc1 %s' % L_b1)
        c0 = a.vm_issued; b0 = bg.save(); n0 = len(bg.items)
        ends = []; bgi = []
        for lab, subs, every in ((None, [(0, TOP)], bg_every), (L_b1, [(0, BOT)], max(1, bg_every // 2)), (L_b2, [(0, BOT), (1, BOT)], bg_every)):
            a.vm_issued = c0; bg.restore(b0); del bg.items[n0:]
            if lab:
                a.label(lab)
                a('s_nop 1')
            self._bgdrain = True
            self.task_wrapper(a, subs, hooks, bg, every)
            ends.append(a.vm_issued)
            bgi.append((bg.i, len(bg.items)))
            if lab != L_b2:
                a('s_branch %s' % L_done)
        a.label(L_done)
        assert len(set(bgi)) == 1, bgi
        assert ends[0] == ends[1] == ends[2] - 4, ends
        a.vm_issued = min(ends)

    def task_wrapper(self, a, subs, hooks, bg, every):
        self.task(a, subs, hooks, bg, every)

RED = 81920
YL = 143360
class G2:
    ACC, VL = 16, 60
    HB = [144, 192, 64, 144]
    QR, B2R, GR = 112, 122, 132
    B2F, Y, YT = 192, 212, 224
    VLW = 242

    def w2_items(self):
        L = []
        def init(a):
            a('v_lshlrev_b32 v%d, 4, v1' % self.VLW)
            a('s_mul_i32 s101, s%d, 48' % S_J)
            a('s_mul_i32 s100, s%d, 12' % S_W)
            a('s_add_u32 s101, s101, s100')
            a('s_mul_i32 s101, s101, 5120')
            a('s_add_u32 s101, s101, 0x%x' % LY.W2T)
        for n in range(60):
            def f(a, n=n):
                if n == 0: init(a)
                a('buffer_load_dwordx4 %s, v%d, s[%d:%d], s101 offen offset:%d%s' % (ar(4 * n, 4), self.VLW, R_WS, R_WS + 3, 1024 * (n % 4), SCL()))
                if n % 4 == 3:
                    a('s_add_u32 s101, s101, 4096')
                self.m_w2 = a.vm_mark()
            L.append(f)
        return L

    def h_items(self, it):
        L = []
        for ks in range(12):
            def f(a, ks=ks):
                if ks == 0:
                    a('s_add_u32 s100, s%d, %d' % (S_W, 1 + it))
                    a('s_and_b32 s100, s100, 3')
                    a('s_lshl_b32 s95, s%d, 2' % S_Q)
                    a('s_add_u32 s95, s95, s100')
                    a('s_mul_i32 s95, s95, 48')
                    a('s_mul_i32 s100, s%d, 12' % S_W)
                    a('s_add_u32 s95, s95, s100')
                    a('s_lshl_b32 s95, s95, 10')
                    a('s_add_u32 s95, s95, 0x%x' % LY.HF)
                a('buffer_load_dwordx4 %s, v%d, s[%d:%d], s95 offen offset:%d%s' % (vr(self.HB[it] + 4 * ks, 4), self.VLW, R_WS, R_WS + 3, 1024 * (ks % 4), SCL()))
                self.m_h[(it, ks)] = a.vm_mark()
                if ks % 4 == 3 and ks < 11:
                    a('s_add_u32 s95, s95, 4096')
            L.append(f)
        return L

    def epi_addr(self, a):
        a('v_lshlrev_b32 v%d, 4, v1' % self.VL)
        a('v_and_b32 v10, 15, v1')
        a('v_lshrrev_b32 v11, 4, v1')
        a('s_lshl_b32 s%d, s%d, 6' % (ST, S_Q))
        a('s_lshl_b32 s%d, s%d, 4' % (ST + 1, S_W))
        a('s_add_u32 s%d, s%d, s%d' % (ST, ST, ST + 1))
        a('s_mul_i32 s%d, s%d, 160' % (ST + 1, S_J))
        a('v_add_u32 v10, s%d, v10' % ST)
        a('v_lshlrev_b32 v4, 3, v11')
        a('v_add_u32 v4, s%d, v4' % (ST + 1))
        a('v_mul_u32_u24 v3, 1280, v10')
        a('v_add_u32 v3, v3, v4')
        a('v_lshlrev_b32 v5, 2, v10')
        a('v_add_u32 v5, 0x%x, v5' % LY.G)
        a('s_mul_i32 s%d, s%d, %d' % (ST + 1, S_J, 80 * 4096))
        a('s_lshl_b32 s%d, s%d, 1' % (ST, ST))
        a('s_add_u32 s%d, s%d, s%d' % (ST, ST, ST + 1))
        a('s_add_u32 s%d, s%d, 0x%x' % (ST, ST, LY.Y2T))
        a('v_lshrrev_b32 v6, 1, v1')
        a('v_lshlrev_b32 v6, 12, v6')
        a('v_and_b32 v10, 1, v1')
        a('v_lshl_add_u32 v6, v10, 4, v6')
        a('v_add_u32 v6, s%d, v6' % ST)
        a('s_mul_i32 s%d, s%d, 2560' % (ST, S_W))
        a('s_add_u32 s%d, s%d, %d' % (ST, ST, YL))
        a('v_add_u32 v7, s%d, v%d' % (ST, self.VL))
        a('v_lshlrev_b32 v8, 3, v1')
        a('v_add_u32 v8, s%d, v8' % ST)
        for it in range(3):
            a('s_add_u32 s%d, s%d, %d' % (ST, S_W, 1 + it))
            a('s_and_b32 s%d, s%d, 3' % (ST, ST))
            a('s_mul_i32 s%d, s%d, 15360' % (ST, ST))
            a('s_add_u32 s%d, s%d, %d' % (ST, ST, RED + 5120 * it))
            a('v_add_u32 v%d, s%d, v%d' % (12 + it, ST, self.VL))
        a('s_mul_i32 s%d, s%d, 15360' % (ST, S_W))
        a('s_add_u32 s%d, s%d, %d' % (ST, ST, RED))
        a('v_add_u32 v15, s%d, v%d' % (ST, self.VL))

    def epi_input_items(self):
        L = []
        for dt in range(5):
            L.append('global_load_dwordx2 %s, v4, s[%d:%d] offset:%d' % (vr(self.B2R + 2 * dt, 2), P_B2, P_B2 + 1, 32 * dt))
        for dt in range(5):
            L.append('buffer_load_dwordx2 %s, v3, s[%d:%d], 0 offen offset:%d' % (vr(self.QR + 2 * dt, 2), R_X, R_X + 3, 32 * dt))
        def f(a):
            a('buffer_load_dword v%d, v5, s[%d:%d], 0 offen%s' % (self.GR, R_WS, R_WS + 3, SCL()))
            self.m_in = a.vm_mark()
        L.append(f)
        return L

    def y_loads(self, a):
        Y = self.Y
        a('s_mov_b32 s%d, %d' % (ST, 32 * 4096))
        a('s_mov_b32 s%d, %d' % (ST + 1, 64 * 4096))
        a('buffer_load_dwordx4 %s, v6, s[%d:%d], 0 offen%s' % (vr(Y, 4), R_WS, R_WS + 3, SCL()))
        a('buffer_load_dwordx4 %s, v6, s[%d:%d], s%d offen%s' % (vr(Y + 4, 4), R_WS, R_WS + 3, ST, SCL()))
        a('s_mov_b64 exec, 0xffffffff')
        a('buffer_load_dwordx4 %s, v6, s[%d:%d], s%d offen%s' % (vr(Y + 8, 4), R_WS, R_WS + 3, ST + 1, SCL()))
        a('s_mov_b64 exec, -1')
        self.m_y = a.vm_mark()

    def y_stage(self, a):
        Y = self.Y
        a.wait_vm(self.m_y)
        a('ds_write_b128 v7, %s' % vr(Y, 4))
        a('ds_write_b128 v7, %s offset:1024' % vr(Y + 4, 4))
        a('s_mov_b64 exec, 0xffffffff')
        a('ds_write_b128 v7, %s offset:2048' % vr(Y + 8, 4))
        a('s_mov_b64 exec, -1')
        for dt in range(5):
            a('ds_read_b64_tr_b16 %s, v8 offset:%d' % (vr(self.YT + 2 * dt, 2), 512 * dt))

    def iteration(self, a, it, fill, bg=None, bg_every=4):
        acc0 = self.ACC + 20 * (it % 2)
        fi = 0; cnt = 0
        for ks in range(12):
            while (it, ks) not in self.m_h:
                bg.emit(a, 1)
            a.wait_vm(max(self.m_h[(it, ks)], self.m_w2 if (it == 0 and ks == 0) else 0))
            for dt in range(5):
                acc = vr(acc0 + 4 * dt, 4)
                c = acc if ks > 0 else (vr(self.B2F + 4 * dt, 4) if it == 3 else '0')
                a('v_mfma_f32_16x16x32_bf16 %s, %s, %s, %s' % (acc, ar(4 * (5 * ks + dt), 4), vr(self.HB[it] + 4 * ks, 4), c))
                cnt += 1
                if bg is not None and cnt % bg_every == 0 and bg.left():
                    bg.emit(a, 1)
                elif ks >= 2 and fi < len(fill):
                    a(fill[fi]); fi += 1
        while fi < len(fill):
            a(fill[fi]); fi += 1

    def red_writes(self, it):
        acc0 = self.ACC + 20 * (it % 2)
        return ['ds_write_b128 v%d, %s offset:%d' % (12 + it, vr(acc0 + 4 * dt, 4), 1024 * dt) for dt in range(5)]

    def main(self, a, bg, after0, after1, after2):
        self.epi_addr(a)
        bg.add(self.h_items(2))
        bg.add(self.epi_input_items())
        self.iteration(a, 0, [], bg, 3)
        ts(a, 19)
        after0(a)
        bg.add(self.h_items(3))
        self.iteration(a, 1, self.red_writes(0), bg, 3)
        bg.drain(a)
        ts(a, 20)
        after1(a)
        self.iteration(a, 2, self.red_writes(1), bg)
        ts(a, 21)
        a.wait_vm(self.m_in)
        for dt in range(5):
            for d in range(2):
                unpack(a, self.B2F + 4 * dt + 2 * d, self.B2F + 4 * dt + 2 * d + 1, self.B2R + 2 * dt + d)
        after2(a)
        self.y_loads(a)
        G_, OM = 56, 58
        QF, YF, R = 64, 84, 144
        fl = self.red_writes(2)
        fl.append('v_sub_f32 v%d, 1.0, v%d' % (OM, self.GR))
        fl.append('v_mov_b32 v%d, v%d' % (G_, self.GR))
        fl.append('v_cvt_pk_bf16_f32 v%d, v%d, v%d' % (OM, OM, OM))
        fl.append('v_mov_b32 v%d, v%d' % (G_ + 1, self.GR))
        fl.append('v_lshlrev_b32 v%d, 16, v%d' % (OM, OM))
        for n in range(10):
            fl.append('v_lshlrev_b32 v%d, 16, v%d' % (QF + 2 * n, self.QR + n))
            fl.append('v_and_b32 v%d, 0xffff0000, v%d' % (QF + 2 * n + 1, self.QR + n))
        fl.append('v_mov_b32 v%d, v%d' % (OM + 1, OM))
        for n in range(20):
            fl.append('v_mul_f32 v%d, v%d, v%d' % (QF + n, QF + n, G_))
        self.iteration(a, 3, fl, bg)
        ts(a, 22)
        a('s_waitcnt lgkmcnt(0)')
        a('s_barrier')
        ts(a, 23)
        for n in range(15):
            a('ds_read_b128 %s, v15 offset:%d' % (vr(R + 4 * n, 4), 1024 * n))
        m0 = a.lgkm_mark()
        self.y_stage(a)
        my = a.lgkm_mark()
        acc0 = self.ACC + 20
        for sl in range(3):
            a.wait_lgkm(m0 - 10 + 5 * sl)
            for n in range(10):
                a('v_pk_add_f32 %s, %s, %s' % (vr(acc0 + 2 * n, 2), vr(acc0 + 2 * n, 2), vr(R + 20 * sl + 2 * n, 2)))
        for n in range(10):
            a('v_pk_mul_f32 %s, %s, %s' % (vr(acc0 + 2 * n, 2), vr(acc0 + 2 * n, 2), vr(OM, 2)))
        a.wait_lgkm(my)
        for dt in range(5):
            for d in range(2):
                n = 2 * dt + d
                unpack(a, YF + 2 * n, YF + 2 * n + 1, self.YT + n)
            for d in range(2):
                n = 2 * dt + d
                a('v_pk_fma_f32 %s, %s, %s, %s' % (vr(QF + 2 * n, 2), vr(QF + 2 * n, 2), vr(YF + 2 * n, 2), vr(acc0 + 2 * n, 2)))
            for d in range(2):
                n = 2 * dt + d
                a('v_cvt_pk_bf16_f32 v%d, v%d, v%d' % (self.QR + n, QF + 2 * n, QF + 2 * n + 1))
            a('buffer_store_dwordx2 %s, v3, s[%d:%d], 0 offen offset:%d' % (vr(self.QR + 2 * dt, 2), R_OUT, R_OUT + 3, 32 * dt))

LITE = False
def ts(a, idx, real=False):
    if OPT.get('diag') == 3 and OPT.get('dmark') == idx:
        a('s_memrealtime s[12:13]')
        a('s_waitcnt lgkmcnt(0)')
        a('s_mov_b32 s47, s12')
    if not PROF or (LITE and not real):
        return
    a('%s s[12:13]' % ('s_memrealtime' if real else 's_memtime'))
    a('s_waitcnt lgkmcnt(0)')
    a('v_writelane_b32 v%d, s12, %d' % (V_TS, idx))
def ts_flush(a):
    if not PROF:
        return
    a('s_lshl_b32 s12, s2, 2')
    a('s_add_u32 s12, s12, s%d' % S_W)
    a('s_lshl_b32 s12, s12, 7')
    a('s_add_u32 s12, s12, 0x%x' % LY.TS)
    a('v_lshlrev_b32 v2, 2, v1')
    a('s_mov_b64 exec, 0xffffffff')
    a('buffer_store_dword v%d, v2, s[%d:%d], s12 offen' % (V_TS, R_WS, R_WS + 3))
    a('s_mov_b64 exec, -1')

SPIN_MAX = 20000
def token_publish(a):
    L = a.newlabel('L_tokp')
    if OPT.get('cas'):
        a('s_cmp_ge_u32 s2, 8')
        a('s_cbranch_scc1 %s' % L)
        a('s_cmp_lg_u32 s%d, 3' % S_W)
        a('s_cbranch_scc1 %s' % L)
        a('s_memrealtime s[12:13]')
        a('s_waitcnt lgkmcnt(0)')
        a('s_or_b32 s12, s12, 1')
        a('v_mov_b32 v4, s12')
        a('v_mov_b32 v5, s13')
        a('v_mov_b32 v6, 0')
        a('v_mov_b32 v7, 0')
        c = a.vm_issued
        a('s_mov_b64 exec, 1')
        a('global_atomic_cmpswap_x2 v6, v[4:7], s[%d:%d] sc1' % (P_DBG, P_DBG + 1))
        a('s_mov_b64 exec, -1')
        a('s_nop 1')
        a.vm_issued = c
        a.label(L)
        return
    a('s_add_u32 s12, s2, s%d' % S_W)
    a('s_cmp_lg_u32 s12, 0')
    a('s_cbranch_scc1 %s' % L)
    a('s_memrealtime s[12:13]')
    a('s_waitcnt lgkmcnt(0)')
    a('s_or_b32 s12, s12, 1')
    a('v_mov_b32 v2, s12')
    a('v_mov_b32 v3, s13')
    a('v_mov_b32 v4, 0')
    c = a.vm_issued
    a('s_mov_b64 exec, 1')
    a(('global_store_dwordx2 v4, v[2:3], s[%d:%d]%%s' % (P_DBG, P_DBG + 1)) % OPT['psc'])
    a('s_mov_b64 exec, -1')
    a.vm_issued = c
    a.label(L)
def token_load(a):
    a('v_mov_b32 v%d, 0' % V_PA)
    a(('global_load_dwordx2 %s, v%d, s[%d:%d]%%s' % (vr(V_TOK, 2), V_PA, P_DBG, P_DBG + 1)) % OPT['psc'])
    return a.vm_mark()
def token_check(a, mark):
    L = a.newlabel('L_tok'); Lok = a.newlabel('L_tokok')
    a.wait_vm(mark)
    a('s_mov_b32 s14, %d' % SPIN_MAX)
    a.label(L)
    a('v_readfirstlane_b32 s%d, v%d' % (TOK, V_TOK))
    a('v_readfirstlane_b32 s%d, v%d' % (TOK + 1, V_TOK + 1))
    a('s_cmp_lg_u32 s%d, 0' % TOK)
    a('s_cbranch_scc1 %s' % Lok)
    a('s_sub_u32 s14, s14, 1')
    a('s_cmp_eq_u32 s14, 0')
    a('s_cbranch_scc1 %s' % Lok)
    a('s_sleep 2')
    c = a.vm_issued
    a(('global_load_dwordx2 %s, v%d, s[%d:%d]%%s' % (vr(V_TOK, 2), V_PA, P_DBG, P_DBG + 1)) % OPT['psc'])
    a('s_waitcnt vmcnt(0)')
    a.vm_issued = c
    a('s_branch %s' % L)
    a.label(Lok)
CNT = 3 * CS
def publish_cnt(a, mark, cnt, s_idx_expr):
    a.wait_vm(mark)
    a('v_mov_b32 v%d, %d' % (V_FA, CNT + 16 * cnt))
    a('v_mov_b32 v%d, 1' % V_TOK)
    a('s_mov_b64 exec, 1')
    a('ds_add_rtn_u32 v%d, v%d, v%d' % (V_TOK + 1, V_FA, V_TOK))
    a('s_mov_b64 exec, -1')
    a('s_waitcnt lgkmcnt(0)')
    a('v_readfirstlane_b32 s12, v%d' % (V_TOK + 1))
    flag_store(a, s_idx_expr, 12, 3)
def flag_store(a, s_idx_expr, sreg=S_W, val=0):
    L = a.newlabel('L_fs')
    a('s_cmp_lg_u32 s%d, %d' % (sreg, val))
    a('s_cbranch_scc1 %s' % L)
    s_idx_expr(a)
    a('v_mov_b32 v%d, s%d' % (V_TOK, TOK))
    a('v_mov_b32 v%d, s%d' % (V_TOK + 1, TOK + 1))
    a('v_mov_b32 v%d, s12' % V_FA)
    c = a.vm_issued
    a('s_mov_b64 exec, 1')
    a(('buffer_store_dwordx2 %s, v%d, s[%d:%d], 0 offen%%s' % (vr(V_TOK, 2), V_FA, R_WS, R_WS + 3)) % OPT['psc'])
    a('s_mov_b64 exec, -1')
    a.vm_issued = c
    a.label(L)
def poll_issue(a, base_expr, n):
    base_expr(a)
    a('v_and_b32 v%d, %d, v1' % (V_PA, n - 1))
    a('v_lshlrev_b32 v%d, %d, v%d' % (V_PA, FS(), V_PA))
    a('v_add_u32 v%d, s12, v%d' % (V_PA, V_PA))
    a(('buffer_load_dwordx2 %s, v%d, s[%d:%d], 0 offen%%s' % (vr(V_POLL, 2), V_PA, R_WS, R_WS + 3)) % OPT['psc'])
    return a.vm_mark()
def poll_check(a, mark):
    if OPT.get('nopoll'): return
    L = a.newlabel('L_poll'); Lok = a.newlabel('L_pollok')
    a.wait_vm(mark)
    a('s_mov_b32 s14, %d' % SPIN_MAX)
    a.label(L)
    a('v_cmp_eq_u64 vcc, s[%d:%d], %s' % (TOK, TOK + 1, vr(V_POLL, 2)))
    a('s_nop 0')
    a('s_cmp_eq_u64 vcc, -1')
    a('s_cbranch_scc1 %s' % Lok)
    a('s_sub_u32 s14, s14, 1')
    a('s_cmp_eq_u32 s14, 0')
    a('s_cbranch_scc1 %s' % Lok)
    a('s_sleep %d' % OPT.get('psleep', 1))
    c = a.vm_issued
    a(('buffer_load_dwordx2 %s, v%d, s[%d:%d], 0 offen%%s' % (vr(V_POLL, 2), V_PA, R_WS, R_WS + 3)) % OPT['psc'])
    a('s_waitcnt vmcnt(0)')
    a.vm_issued = c
    a('s_branch %s' % L)
    a.label(Lok)

FB = 0xF00000
F1, F2, F3 = FB, FB + 0x10000, FB + 0x20000
def FS(): return OPT.get('fs', 7)
def fbase_j(F):
    def f(a):
        a('s_lshl_b32 s12, s%d, %d' % (S_J, FS() + 5))
        a('s_add_u32 s12, s12, 0x%x' % F)
    return f
def fown_jq(F):
    def f(a):
        fbase_j(F)(a)
        a('s_lshl_b32 s13, s%d, %d' % (S_Q, FS()))
        a('s_add_u32 s12, s12, s13')
    return f
def fown_g1(a):
    a('s_lshl_b32 s12, s%d, %d' % (S_R, FS() + 4))
    a('s_lshl_b32 s13, s%d, %d' % (S_CB, FS()))
    a('s_add_u32 s12, s12, s13')
    a('s_add_u32 s12, s12, 0x%x' % F2)
def fbase_g2(a):
    a('s_lshr_b32 s12, s%d, 1' % S_Q)
    a('s_lshl_b32 s12, s12, %d' % (FS() + 4))
    a('s_add_u32 s12, s12, 0x%x' % F2)

def fused_body(a):
    p = Prep(); g = G1(); c = Conv(); h = G2()
    h.m_h = {}
    if OPT.get('gate_late', 0): p.mode = 'kv'
    spr = OPT.get('spr', 0)
    nd = OPT.get('dma_first', 0)
    def stamp(a):
        if PROF:
            a('v_mov_b32 v%d, 0' % V_TS)
            a('v_writelane_b32 v%d, s46, 30' % V_TS)
        ts(a, 0)
    if OPT.get('fast_start', 0):
        a('s_waitcnt lgkmcnt(0)')
        srd(a, R_K, P_K, NB_SD)
        srd(a, R_V, P_V, NB_SD)
        srd(a, R_W2, P_W2, 1536 * 1280)
        p.loads(a)
        if OPT.get('p_ld', 1) < 0:
            c.channels(a)
            c.load_p(a)
        if OPT.get('warm', 0):
            a('v_lshlrev_b32 v2, 2, v0')
            a('global_load_dword v252, v2, s[%d:%d]' % (P_B2, P_B2 + 1))
            a('global_load_dword v253, v2, s[%d:%d]' % (P_GW, P_GW + 1))
            a('global_load_dword v254, v2, s[%d:%d] offset:256' % (P_B2, P_B2 + 1))
            a('global_load_dword v255, v2, s[%d:%d] offset:256' % (P_GW, P_GW + 1))
        stamp(a)
        token_publish(a)
        if OPT.get('spf', 0):
            c.channels(a)
            a('s_lshl_b32 s%d, s%d, 10' % (ST + 1, S_W))
            for sl in range(3):
                a('s_lshl_b32 s%d, s%d, 12' % (ST, c.SCH + sl))
                a('s_add_u32 s%d, s%d, s%d' % (ST, ST, ST + 1))
                a('s_add_u32 s12, s%d, s%d' % (P_HK, ST))
                a('s_addc_u32 s13, s%d, 0' % (P_HK + 1))
                for n in range(8):
                    a('s_load_dword s14, s[12:13], %d' % (128 * n))
        g.setup(a)
        srd(a, R_X, P_Q, NB_SD)
        srd(a, R_W1, P_W1, 640 * 3072)
        srd(a, R_WS, P_WS, 0x10000000)
        srd(a, R_OUT, P_OUT, NB_SD)
    else:
        g.setup(a)
        srds(a)
        stamp(a)
        for s_ in range(nd):
            g.dma(a, s_)
        srds2(a)
        token_publish(a)
        if spr:
            p.addr(a)
        else:
            p.loads(a)
    g.bias_load(a)
    if OPT.get('w3load'):
        ne = OPT['w3load']
        PC = RB + 4 * SLOT
        a('v_mov_b32 v2, %d' % PC)
        a('v_mov_b32 v3, 0')
        a('ds_write_b32 v2, v3')
        a('s_waitcnt lgkmcnt(0)')
        a('s_barrier')
        L3 = a.newlabel('L_e3'); Lj = a.newlabel('L_ej')
        c0 = a.vm_issued
        a('s_cmp_eq_u32 s%d, 3' % S_W)
        a('s_cbranch_scc1 %s' % L3)
        for _ in range(ne): g.adv(a)
        g.setup2(a)
        p.m_all = a.vm_issued
        p.compute(a)
        a('v_mov_b32 v2, %d' % PC)
        a('v_mov_b32 v3, 1')
        a('s_mov_b64 exec, 1')
        a('ds_add_u32 v2, v3')
        a('s_mov_b64 exec, -1')
        Ls = a.newlabel('L_ps'); Lok = a.newlabel('L_psok')
        a('s_mov_b32 s14, %d' % (SPIN_MAX * 16))
        a.label(Ls)
        a('ds_read_b32 v3, v2')
        a('s_waitcnt lgkmcnt(0)')
        a('v_readfirstlane_b32 s12, v3')
        a('s_cmp_ge_u32 s12, 3')
        a('s_cbranch_scc1 %s' % Lok)
        a('s_sub_u32 s14, s14, 1')
        a('s_cmp_lg_u32 s14, 0')
        a('s_cbranch_scc1 %s' % Ls)
        a.label(Lok)
        p.transpose(a)
        a('s_branch %s' % Lj)
        a.label(L3)
        g.dma_all(a, list(range(ne)))
        g.setup2(a)
        a('s_waitcnt vmcnt(%d)' % min(63, 28 * ne))
        a.label(Lj)
        a.vm_issued = c0
        for k_ in range(ne):
            g.marks[k_] = c0 - 28 * (ne - 1 - k_)
        g.ne = ne
        g.m_bias = c0 - 1000
    elif OPT['prep_stage'] < 0:
        for s_ in range(nd, OPT.get('e_dma', 1)):
            g.dma(a, s_)
        g.setup2(a)
        p.compute(a)
        for s_ in range(OPT.get('e_dma', 1), OPT.get('e_dma2', 2)):
            g.dma(a, s_)
        a('s_waitcnt lgkmcnt(0)')
        a('s_barrier')
        p.transpose(a)
        for s_ in range(OPT.get('e_dma2', 2), OPT['lead']):
            g.dma(a, s_)
    else:
        for s_ in range(nd, OPT['lead']):
            g.dma(a, s_)
        g.setup2(a)
    m_tok = token_load(a)
    if OPT.get('p_ld', 1) >= 0 and not OPT.get('spf', 0): c.channels(a)
    g.unpack_bias(a)
    a('s_waitcnt lgkmcnt(0)')
    ts(a, 1)
    st = {}
    w2bg = BG(h.w2_items())
    ps = OPT['prep_stage']
    pre, post, mid, bgs = {}, {}, {}, {}
    def addhook(d, i, f):
        old = d.get(i)
        d[i] = (lambda a, old=old, f=f: ((old(a) if old else None), f(a)))
    if spr:
        items = p.load_items()
        npre = OPT.get('spr_pre', 0)
        for x in items[:npre]:
            do(a, x)
        items = items[npre:]
        i_ = OPT.get('spr0', 0)
        while items:
            bgs[i_] = items[:spr]; items = items[spr:]; i_ += 1
        assert i_ <= ps + 1, (i_, ps)
    if ps >= 0 and not OPT.get('w3load'):
        addhook(mid, ps, p.compute)
        addhook(mid if OPT.get('tr_stage') else post, OPT.get('tr_stage', ps + 1), p.transpose)
    if OPT.get('p_ld', 1) >= 0:
        addhook(mid, OPT.get('p_ld', 1), c.load_p)
    if OPT.get('gate_late', 0):
        addhook(mid, OPT['gate_late'], p.gate_loads)
        addhook(mid, OPT.get('gate_cp', 7), p.gate_compute)
    pre[OPT['f1_pub']] = lambda: p.m_st
    def pub_f1(a):
        token_check(a, m_tok)
        flag_store(a, fown_jq(F1))
    addhook(post, OPT['f1_pub'], pub_f1)
    if OPT['f1_issue'] < 10:
        addhook(mid, OPT['f1_issue'], lambda a: st.__setitem__('f1', poll_issue(a, fbase_j(F1), 32)))
    if not OPT.get('late_p', 0):
        addhook(post, 7, c.zero_fill)
        addhook(post, 8, c.build_p)
    else:
        addhook(post, 8, c.zero_fill)
    def chk_f1(a):
        poll_check(a, st['f1'])
        ts(a, 14)
        c.load_q(a)
    if OPT['f1_chk'] < 10:
        addhook(mid, OPT['f1_chk'], chk_f1)
    n1 = OPT['w2_g1']
    if OPT['f1_chk'] < 9:
        items = [(lambda a: w2bg.emit(a, 1))] * n1
        bgs[9] = items
    bgs[10] = w2bg if OPT.get('w2_tail', 1) else None
    if PROF:
        for i in range(10):
            addhook(mid, i, lambda a, i=i: ts(a, 3 + i))
    tail = BG([(lambda a: w2bg.emit(a, 1)) if k % 4 == 3 else (lambda a: None) for k in range(12)])
    bgs[10] = tail if OPT['f1_chk'] < 10 else None
    g.main(a, pre, post, mid, bgs)
    ts(a, 13)
    g.epilogue(a, w2bg, OPT['w2_gelu'] // 6 if OPT['f1_chk'] < 10 else 0)
    m_hst = a.vm_mark()
    ts(a, 15)
    if OPT['f1_issue'] >= 10:
        st['f1'] = poll_issue(a, fbase_j(F1), 32)
    if OPT.get('late_p', 0):
        c.PT = 36
        c.build_p(a)
    if OPT['f1_chk'] >= 10:
        a.wait_vm(m_hst)
        a('s_barrier')
        flag_store(a, fown_g1)
        chk_f1(a)
        w2bg.emit(a, OPT.get('w2_gap', 8))
    c.build_q(a)
    c.task_setup(a)
    w2bg.emit(a, 2)
    a('s_waitcnt lgkmcnt(0)')
    if not OPT.get('cnt2'):
        a.wait_vm(m_hst)
    a('s_barrier')
    if not OPT.get('cnt2') and OPT['f1_chk'] < 10:
        flag_store(a, fown_g1)
    ts(a, 16)
    hooks = {}
    if OPT.get('cnt2'):
        hooks[OPT['f2_pub']] = lambda a: publish_cnt(a, m_hst, 0, fown_g1)
    hooks[OPT['f2_issue']] = lambda a: st.__setitem__('f2', poll_issue(a, fbase_g2, 16))
    def chk_f2(a):
        w2bg.drain(a)
        poll_check(a, st['f2'])
        w2bg.add(h.h_items(0) + h.h_items(1))
    if OPT['f2_chk'] < 8:
        hooks[OPT['f2_chk']] = chk_f2
    def tw(a, subs, hooks_, bg, every):
        h.m_h.clear()
        c.task(a, subs, hooks_, bg, every)
    c.task_wrapper = tw
    c.run(a, hooks, w2bg, OPT.get('conv_every', 4))
    m_yst = a.vm_mark()
    ts(a, 17)
    if OPT['f2_chk'] >= 8:
        chk_f2(a)
    def pub_f3(a):
        if OPT.get('cnt3'):
            publish_cnt(a, m_yst, 1, fown_jq(F3))
            return
        a.wait_vm(m_yst)
        a('s_barrier')
        flag_store(a, fown_jq(F3))
    nop = lambda a: None
    iss = lambda a: st.__setitem__('f3', poll_issue(a, fbase_j(F3), 32))
    chk = lambda a: poll_check(a, st['f3'])
    if OPT.get('f3_late', 0):
        h.main(a, w2bg, nop, pub_f3, lambda a: (iss(a), chk(a)))
    else:
        h.main(a, w2bg, pub_f3, iss, chk)
    if OPT.get('diag') == 1:
        L = a.newlabel('L_dg')
        a('s_memrealtime s[12:13]')
        a('s_waitcnt lgkmcnt(0)')
        a('s_sub_u32 s14, s12, s46')
        a('s_add_u32 s14, s14, s12')
        a.label(L)
        a('s_memrealtime s[12:13]')
        a('s_waitcnt lgkmcnt(0)')
        a('s_sub_u32 s13, s14, s12')
        a('s_cmp_gt_i32 s13, 0')
        a('s_cbranch_scc1 %s' % L)
    if OPT.get('diag') == 2:
        L = a.newlabel('L_dg')
        a('s_memtime s[12:13]')
        a('s_waitcnt lgkmcnt(0)')
        a('s_add_u32 s14, s12, 20000')
        a.label(L)
        a('s_memtime s[12:13]')
        a('s_waitcnt lgkmcnt(0)')
        a('s_sub_u32 s13, s14, s12')
        a('s_cmp_gt_i32 s13, 0')
        a('s_cbranch_scc1 %s' % L)
    if OPT.get('diag') == 3:
        L = a.newlabel('L_dg')
        a('s_memrealtime s[12:13]')
        a('s_waitcnt lgkmcnt(0)')
        a('s_sub_u32 s14, s47, s46')
        a('s_add_u32 s14, s14, s12')
        a.label(L)
        a('s_memrealtime s[12:13]')
        a('s_waitcnt lgkmcnt(0)')
        a('s_sub_u32 s13, s14, s12')
        a('s_cmp_gt_i32 s13, 0')
        a('s_cbranch_scc1 %s' % L)
    ts(a, 24)
    ts(a, 31, True)
    ts_flush(a)

def build_fused(path):
    name = NAME + '_kernel'
    a = Asm()
    end = 'END_' + name
    prologue(a, end)
    fused_body(a)
    abl = OPT.get('abl', '')
    if abl:
        def kill(t):
            if 'k' in abl and (('s[%d:%d]' % (R_K, R_K + 3)) in t or ('s[%d:%d]' % (R_V, R_V + 3)) in t or ('s[%d:%d]' % (R_W2, R_W2 + 3)) in t): return True
            if 's' in abl and t.startswith('buffer_store_dwordx4 v[18') or ('s' in abl and t.startswith('buffer_store_dwordx4 v[19')): return True
            if 'h' in abl and t.startswith('buffer_store_dwordx4 v[9') or ('h' in abl and t.startswith('buffer_store_dwordx4 v[10')): return True
            if 'c' in abl and t.startswith('v_mfma') and ' a[' not in t: return True
            if 'C' in abl and (t.startswith('v_mfma') and ' a[' not in t or (t.startswith('ds_read_b128 v') and ('v16 ' in t or 'v17 ' in t or 'v20 ' in t or 'v21 ' in t))): return True
            if 'e' in abl and (t.startswith('v_exp') or t.startswith('v_rcp') or t.startswith('v_pk')): return True
            if 'w' in abl and 's101 offen' in t: return True
            if 'H' in abl and 's95 offen' in t: return True
            if 'g' in abl and t.startswith('v_mfma') and ', a[' in t and ', v[' in t.split(', a[')[1][:20] and 'a[19' not in t and 'a[2' not in t: return False
            if 'D' in abl and t.endswith(' lds'): return True
            return False
        a.items = [it for it in a.items if not (isinstance(it, Ins) and kill(it.text))]
    a.label(end)
    a('s_endpgm')
    a.raw('.p2align 12\n.fill %d, 4, 0xbf800000' % (1024 if not OPT.get('abl') else 5120))
    s = HEADER
    s += '; @launch grid=(256,1,1) block=(256,1,1) lds=163840\n'
    s += '.amdgcn_target "amdgcn-amd-amdhsa--gfx950"\n'
    s += '.text\n.globl %s\n.p2align 8\n.type %s,@function\n%s:\n' % (name, name, name) + a.text()
    s += '.section .rodata,"a"\n.p2align 6\n.amdhsa_kernel %s\n' % name
    s += '  .amdhsa_next_free_vgpr 512\n  .amdhsa_next_free_sgpr 102\n  .amdhsa_accum_offset 256\n'
    s += '  .amdhsa_group_segment_fixed_size 0\n  .amdhsa_kernarg_size 120\n  .amdhsa_user_sgpr_count 2\n'
    s += '  .amdhsa_user_sgpr_kernarg_segment_ptr 1\n  .amdhsa_system_sgpr_workgroup_id_x 1\n.end_amdhsa_kernel\n'
    open(path, 'w').write(s)

if __name__ == '__main__':
    for kv in sys.argv[1:]:
        k_, v_ = kv.split('=')
        OPT[k_] = int(v_) if v_.lstrip('-').isdigit() else v_.replace('_', ' ')
    build_fused('k_fused.s')
    PROF = True
    build_fused('k_fused_prof.s')
```
